```python
import torch

def _softmax(x, axis=-1):
    return torch.softmax(x, dim=axis)
def _gelu(x):
    return torch.nn.functional.gelu(x, approximate="tanh")
def _silu(x):
    return torch.nn.functional.silu(x)
def _sigmoid(x):
    return torch.sigmoid(x)
def _layernorm(x, axis=-1, eps=1e-5):
    m = x.mean(dim=axis, keepdim=True)
    v = x.var(dim=axis, keepdim=True, unbiased=False)
    return (x - m) / torch.sqrt(v + eps)
def _scatter_add(tgt, idx, src, axis=0):
    return tgt.clone().index_add_(axis, idx, src)
def _segment_sum(src, seg, n):
    out = torch.zeros((n,) + src.shape[1:], dtype=src.dtype)
    return out.index_add_(0, seg, src)
def _pad(x, pw):
    flat = tuple(v for pair in reversed(pw) for v in pair)
    return torch.nn.functional.pad(x, flat)

kernel_name = 'concat_heads__mha_block_cached__mha_block_cached__near_ridge'

def setup_inputs():

    _w = (lambda a: (lambda t: t.to(torch.bfloat16) if t.is_floating_point() else t)(torch.as_tensor(a)))
    def _A_setup():
        B, Sq, D = 8, 256, 576
        H, Sk, Dh = 32, 1024, 128
        return {
            "x": _w((lambda *s: torch.randn(*s, dtype=torch.bfloat16) * 0.8)(B, Sq, D)),
            "k_cache": _w((lambda *s: torch.randn(*s, dtype=torch.bfloat16) * 0.8)(B, H, Sk, Dh)),
            "v_cache": _w((lambda *s: torch.randn(*s, dtype=torch.bfloat16) * 0.05)(B, H, Sk, Dh)),
            "wq": _w((lambda *s: torch.randn(*s, dtype=torch.bfloat16) * 0.8)(D, H * Dh) * (D ** -0.5)),
            "wo": _w((lambda *s: torch.randn(*s, dtype=torch.bfloat16) * 0.05)(H * Dh, D) * ((H * Dh) ** -0.5)),
        }
    _A_in = _A_setup()

    def _B_setup():
        B, Sq, D = 8, 256, 576
        H, Sk, Dh = 32, 1024, 128
        return {
            "x": _w((lambda *s: torch.randn(*s, dtype=torch.bfloat16) * 0.8)(B, Sq, D)),
            "k_cache": _w((lambda *s: torch.randn(*s, dtype=torch.bfloat16) * 0.8)(B, H, Sk, Dh)),
            "v_cache": _w((lambda *s: torch.randn(*s, dtype=torch.bfloat16) * 0.05)(B, H, Sk, Dh)),
            "wq": _w((lambda *s: torch.randn(*s, dtype=torch.bfloat16) * 0.8)(D, H * Dh) * (D ** -0.5)),
            "wo": _w((lambda *s: torch.randn(*s, dtype=torch.bfloat16) * 0.05)(H * Dh, D) * ((H * Dh) ** -0.5)),
        }
    _B_in = _B_setup()

    return {
        "A_x": _A_in["x"],
        "A_k_cache": _A_in["k_cache"],
        "A_v_cache": _A_in["v_cache"],
        "A_wq": _A_in["wq"],
        "A_wo": _A_in["wo"],
        "B_x": _B_in["x"],
        "B_k_cache": _B_in["k_cache"],
        "B_v_cache": _B_in["v_cache"],
        "B_wq": _B_in["wq"],
        "B_wo": _B_in["wo"],
    }

def reference(A_x, A_k_cache, A_v_cache, A_wq, A_wo, B_x, B_k_cache, B_v_cache, B_wq, B_wo):
    def _A_ref(x, k_cache, v_cache, wq, wo):
        B, Sq, D = x.shape
        H, Dh = 32, 128
        q = (lambda x, *d: x.permute(*d))((x @ wq).reshape(B, Sq, H, Dh), 0, 2, 1, 3)
        scores = torch.einsum("bhqd,bhkd->bhqk", q, k_cache) * (Dh ** -0.5)
        p = _softmax(scores, axis=-1)
        o = torch.einsum("bhqk,bhkd->bhqd", p, v_cache)
        return (lambda x, *d: x.permute(*d))(o, 0, 2, 1, 3).reshape(B, Sq, H * Dh) @ wo

    def _B_ref(x, k_cache, v_cache, wq, wo):
        B, Sq, D = x.shape
        H, Dh = 32, 128
        q = (lambda x, *d: x.permute(*d))((x @ wq).reshape(B, Sq, H, Dh), 0, 2, 1, 3)
        scores = torch.einsum("bhqd,bhkd->bhqk", q, k_cache) * (Dh ** -0.5)
        p = _softmax(scores, axis=-1)
        o = torch.einsum("bhqk,bhkd->bhqd", p, v_cache)
        return (lambda x, *d: x.permute(*d))(o, 0, 2, 1, 3).reshape(B, Sq, H * Dh) @ wo

    a = _A_ref(A_x, A_k_cache, A_v_cache, A_wq, A_wo)
    b = _B_ref(B_x, B_k_cache, B_v_cache, B_wq, B_wo)
    return torch.concatenate([a, b], axis=-1)
```

```python
import re

def regs_of(tok):
    tok = tok.strip()
    neg = tok.startswith("-")
    if neg: tok = tok[1:]
    m = re.fullmatch(r"abs\((.*)\)", tok) or re.fullmatch(r"\|(.*)\|", tok)
    if m: tok = m.group(1)
    m = re.fullmatch(r"([vas])(\d+)", tok)
    if m: return [(m.group(1), int(m.group(2)))]
    m = re.fullmatch(r"([vas])\[(\d+):(\d+)\]", tok)
    if m: return [(m.group(1), i) for i in range(int(m.group(2)), int(m.group(3)) + 1)]
    if tok == "vcc": return [("x", "vcc")]
    if tok == "exec": return [("x", "exec")]
    if tok == "m0": return [("x", "m0")]
    return []

TRANS = ("v_exp_f32", "v_log_f32", "v_rcp_f32", "v_rsq_f32", "v_sqrt_f32", "v_sin_f32", "v_cos_f32")

class I:
    def __init__(self, text):
        self.text = text
        t = text.split(";")[0].strip()
        parts = t.split(None, 1)
        self.op = parts[0]
        rest = parts[1] if len(parts) > 1 else ""
        ops = [o.strip() for o in re.split(r",(?![^\[]*\])", rest)] if rest else []
        self.mods = ""
        if ops:
            sp = ops[-1].split(None, 1)
            ops[-1] = sp[0]
            self.mods = sp[1] if len(sp) > 1 else ""
        self.ops = ops
        op = self.op
        R = lambda i: regs_of(ops[i]) if i < len(ops) else []
        allr = lambda a: sum((R(i) for i in range(a, len(ops))), [])
        self.w = []; self.r = []; self.kind = None
        self.passes = 0
        if op.startswith("v_mfma"):
            self.kind = "mfma"; self.w = R(0); self.A = R(1); self.B = R(2); self.C = R(3); self.r = self.A + self.B + self.C
            self.passes = 8 if "32x32x16" in op else 4
        elif op.startswith("v_cmp"):
            self.kind = "valu"; self.w = R(0); self.r = allr(1)
        elif op.startswith("v_permlane") and "swap" in op:
            self.kind = "valu"; self.w = R(0) + R(1); self.r = R(0) + R(1)
        elif op.startswith("v_"):
            self.kind = "valu"; self.w = R(0); self.r = allr(1)
            if op.startswith(("v_fmac", "v_pk_fmac")): self.r += R(0)
            if op.startswith(("v_add_co", "v_sub_co", "v_addc_co")): self.w += R(1); self.r = allr(2)
            if op == "v_nop": self.kind = "nop"
        elif op.startswith("ds_read"):
            self.kind = "dsr"; self.w = R(0); self.r = R(1)
        elif op.startswith("ds_write"):
            self.kind = "dsw"; self.r = allr(0)
        elif op.startswith(("ds_bpermute", "ds_swizzle")):
            self.kind = "dsr"; self.w = R(0); self.r = allr(1)
        elif op.startswith("buffer_load") or op.startswith("global_load"):
            if re.search(r"\blds\b", self.mods):
                self.kind = "dma"; self.r = allr(0) + [("x", "m0")]
            else:
                self.kind = "vld"; self.w = R(0); self.r = allr(1)
        elif op.startswith("buffer_store") or op.startswith("global_store") or op.startswith("buffer_atomic") or op.startswith("global_atomic"):
            self.kind = "vst"; self.r = allr(0)
            self.data = R(0) if op.startswith("buffer") else R(1)
        elif op.startswith("buffer_") :
            self.kind = "vmisc"
        elif op.startswith("s_load") or op.startswith("s_memtime") or op.startswith("s_memrealtime"):
            self.kind = "smem"; self.w = R(0); self.r = allr(1)
        elif op == "s_waitcnt":
            self.kind = "wait"
            m = re.search(r"vmcnt\((\d+)\)", t); self.vm = int(m.group(1)) if m else None
            m = re.search(r"lgkmcnt\((\d+)\)", t); self.lg = int(m.group(1)) if m else None
        elif op == "s_nop":
            self.kind = "nop"; self.n = int(ops[0], 0) + 1
        elif op == "s_barrier":
            self.kind = "barrier"
        elif op.startswith(("s_cbranch", "s_branch", "s_endpgm", "s_setprio", "s_sleep", "s_setpc", "s_call")):
            self.kind = "ctl"
            if "vcc" in op: self.r = [("x", "vcc")]
        elif op.startswith("s_cmp"):
            self.kind = "salu"; self.r = allr(0)
        elif op.startswith("s_"):
            self.kind = "salu"; self.w = R(0); self.r = allr(1)
            if "saveexec" in op: self.w += [("x", "exec")]
        else:
            raise ValueError("unknown instr: " + text)
        self.trans = op.split("_e")[0] in TRANS or op in TRANS
        self.dpp = "dpp" in op or "row_" in self.mods
        self.ws = getattr(self, "n", 1)

def check(lines, verbose=True, maxerr=30):
    ins = [I(l) for l in lines if l.strip() and not l.strip().endswith(":") and not l.strip().startswith((".", ";"))]
    errs = []
    pos = 0
    P = []
    for x in ins:
        P.append(pos); pos += x.ws
    def dist(i, j): return P[j] - P[i] - ins[i].ws
    lastw = {}
    lastC = {}
    lastst = {}
    pend_lg = []
    pend_vm = []
    pend_reg = {}
    smem_out = False
    def err(j, msg):
        errs.append(f"[{j}] {ins[j].text}  -- {msg}")
    for j, x in enumerate(ins):
        if x.kind == "wait":
            if x.lg is not None:
                if smem_out and x.lg != 0:
                    pass
                keep = pend_lg[len(pend_lg) - x.lg:] if x.lg > 0 else []
                if x.lg >= len(pend_lg): keep = pend_lg
                if any(ins[i].kind == "smem" for i, _ in pend_lg) and x.lg != 0:
                    keep = pend_lg
                done = pend_lg[:len(pend_lg) - len(keep)]
                for i, rs in done:
                    for r in rs:
                        if pend_reg.get(r) == ("lg", i): del pend_reg[r]
                pend_lg = list(keep)
            if x.vm is not None:
                keep = pend_vm[len(pend_vm) - x.vm:] if x.vm > 0 else []
                if x.vm >= len(pend_vm): keep = pend_vm
                done = pend_vm[:len(pend_vm) - len(keep)]
                for i, rs in done:
                    for r in rs:
                        if pend_reg.get(r) == ("vm", i): del pend_reg[r]
                pend_vm = list(keep)
            continue
        for r in set(x.r + x.w):
            if r in pend_reg and not (x.kind == "vld" and r in x.w and r not in x.r and ins[pend_reg[r][1]].kind == "vld" and "PF" in x.text):
                err(j, f"reg {r} still pending from [{pend_reg[r][1]}] {ins[pend_reg[r][1]].text}")
        for r in set(x.r):
            if r not in lastw: continue
            i = lastw[r]; p = ins[i]; d = dist(i, j); need = 0
            if p.kind == "valu":
                if x.kind == "mfma" and r[0] in "va": need = 2
                if x.kind == "valu":
                    if p.trans and not x.trans: need = max(need, 1)
                    if x.op.startswith("v_permlane") and r[0] == "v": need = max(need, 2)
                    if x.op.startswith(("v_readfirstlane", "v_readlane")) and r[0] == "v": need = max(need, 1)
                    if x.dpp and r[0] == "v": need = max(need, 2)
                    if r[0] == "s" or r == ("x", "vcc"): need = max(need, 2)
                if x.kind in ("vld", "vst", "dma") and r[0] == "s": need = max(need, 5)
                if x.kind == "salu" and r[0] == "s": need = max(need, 1)
            if p.kind == "mfma":
                big = p.passes == 8
                if x.kind == "mfma":
                    if r in x.A or r in x.B: need = 12 if big else 8
                    elif r in x.C:
                        if x.C == p.w and x.passes == p.passes: need = 0
                        else: need = 10 if big else 6
                else:
                    need = 12 if big else 8
            if p.kind == "salu" and r == ("x", "m0") and x.kind == "dma": need = 1
            if d < need:
                err(j, f"RAW {r}: dist {d} < {need} from [{i}] {p.text}")
        for r in set(x.w):
            if r in lastw:
                i = lastw[r]; p = ins[i]; d = dist(i, j)
                if p.kind == "mfma" and x.kind != "mfma":
                    need = 12 if p.passes == 8 else 8
                    if d < need: err(j, f"WAW {r}: dist {d} < {need} from [{i}] {p.text}")
                if p.kind == "mfma" and x.kind == "mfma" and not (x.C == p.w):
                    need = 10 if p.passes == 8 else 6
                    if d < need and (x.passes != p.passes): err(j, f"WAW mfma {r}: dist {d} < {need} from [{i}] {p.text}")
            if r in lastC and x.kind == "valu":
                i = lastC[r]; p = ins[i]; d = dist(i, j); need = 7 if p.passes == 8 else 3
                if d < need: err(j, f"WAR srcC {r}: dist {d} < {need} from [{i}] {p.text}")
            if r in lastst:
                i = lastst[r]; d = dist(i, j); need = 2
                if d < need: err(j, f"WAR store data {r}: dist {d} < {need} from [{i}] {ins[i].text}")
        for r in x.w: lastw[r] = j
        if x.kind == "mfma":
            for r in x.C: lastC[r] = j
        if x.kind == "vst" and len(x.data) >= 3:
            for r in x.data: lastst[r] = j
        if x.kind in ("dsr", "dsw", "smem"):
            pend_lg.append((j, list(x.w)))
            for r in x.w: pend_reg[r] = ("lg", j)
        if x.kind in ("vld", "vst", "dma"):
            pend_vm.append((j, list(x.w)))
            for r in x.w: pend_reg[r] = ("vm", j)
            if len(pend_vm) > 63: err(j, "vmcnt overflow >63 (harmless stall?)")
    if verbose:
        for e in errs[:maxerr]: print("HAZARD", e)
        print(f"checked {len(ins)} instrs, {len(errs)} problems")
    return errs
```

```python
NAME = "concat_heads__mha_block_cached__mha_block_cached__near_ridge_kernel"

class Asm:
    def __init__(self):
        self.lines = []
    def __call__(self, s):
        for l in s.split("\n"):
            l = l.strip()
            if l:
                self.lines.append(l)
    def label(self, n):
        self.lines.append(n + ":")
    def text(self):
        out = []
        for l in self.lines:
            if l.endswith(":") or l.startswith("."):
                out.append(l)
            else:
                out.append("    " + l)
        return "\n".join(out) + "\n"

def kernel_header(name):
    return f""".globl {name}
.p2align 8
.type {name},@function
{name}:
"""

def kernel_desc(name, vgpr=512, sgpr=102, accum=256):
    return f""".p2align 6
.amdhsa_kernel {name}
  .amdhsa_next_free_vgpr {vgpr}
  .amdhsa_next_free_sgpr {sgpr}
  .amdhsa_accum_offset {accum}
  .amdhsa_group_segment_fixed_size 0
  .amdhsa_kernarg_size 104
  .amdhsa_user_sgpr_count 2
  .amdhsa_user_sgpr_kernarg_segment_ptr 1
  .amdhsa_system_sgpr_workgroup_id_x 1
.end_amdhsa_kernel
"""

def single_kernel_file(body, grid, block, lds, vgpr=512, sgpr=102, accum=256):
    s = f"; @launch grid=({grid},1,1) block=({block},1,1) lds={lds}\n"
    s += '.amdgcn_target "amdgcn-amd-amdhsa--gfx950"\n.text\n'
    s += kernel_header(NAME) + body + "s_endpgm\n"
    s += '.section .rodata,"a"\n' + kernel_desc(NAME, vgpr, sgpr, accum)
    return s
```

```python
from g import *
import chk, re
from k2 import WOT_OFF, mf16, R

KR, VR, SP = 0, 65536, 131072
SL = [32768, 98304, 131072]
C_SCALE = 0x3e0293ee
THRESH = 0x53800000

sW = 3
SK, SV, SX, SWQ, SWO, SOW, SWT = 8, 12, 16, 20, 24, 28, 32
sBR, sB, sHP, sW4K, sW8K, sT, sC, sXO, sKOFF, sIT, sHD, sOO, sTH = 36, 37, 38, 39, 40, 41, 42, 44, 48, 49, 50, 51, 52
srd = lambda s: f"s[{s}:{s+3}]"
vX, vWQ, vL16, vKD, vVD, vWA, vKA, vVA, vWOR, vWOD, vTMP = 1, 2, 3, 4, 8, 10, 10, 14, 26, 28, 29
ONES, L_, NEGM, P_, S_, O_ = 44, 48, 64, 80, 96, 128
Q_, Q2_, KF, VF = 0, 64, 128, 192

class Gaps:
    def __init__(self, mf):
        self.mf = mf
        self.pre = [[] for _ in mf]
        self.val = [[] for _ in mf]
        self.used = [0] * len(mf)
    def put(self, g, txt, cost=1):
        (self.val if txt.startswith("v_") else self.pre)[g].append(txt)
        self.used[g] += cost
    def place(self, txt, lo, hi=None, cost=1, cap=2):
        hi = len(self.mf) - 1 if hi is None else hi
        for g in range(lo, hi + 1):
            if self.used[g] + cost <= cap:
                self.put(g, txt, cost); return g
        g = min(range(lo, hi + 1), key=lambda x: self.used[x])
        self.put(g, txt, cost)
        return g
    def lines(self):
        out = []
        for m, p, v in zip(self.mf, self.pre, self.val):
            out.append(m); out += p; out += v
        return out

def auto_lgkm(lines, pend=None, age=10):
    out = []
    pend = [] if pend is None else pend
    pos = pend[-1][1] + 1000 if pend else 0
    for l in lines:
        if l.endswith(":") or l.startswith("."):
            out.append(l); continue
        x = chk.I(l)
        if x.kind == "wait" and x.lg is not None:
            pend = pend[len(pend) - x.lg:] if 0 < x.lg < len(pend) else ([] if x.lg == 0 else pend)
        touched = set(x.r + x.w)
        need = -1
        for i, (rs, _) in enumerate(pend):
            if touched & rs: need = i
        if need >= 0:
            for i, (rs, p) in enumerate(pend):
                if pos - p >= age: need = max(need, i)
            n = len(pend) - 1 - need
            n = min(n, 15)
            out.append(f"s_waitcnt lgkmcnt({n})")
            pend = pend[len(pend) - n:] if n > 0 else []
        out.append(l)
        if x.kind in ("dsr", "dsw"):
            pend.append((set(x.w), pos))
        pos += 1
    return out, pend

def resolve_vm(lines):
    out = []; ops = []; done = -1
    for l in lines:
        if l.startswith("WAITVM"):
            tag = l.split()[1]
            idx = max(i for i, t in enumerate(ops) if t == tag)
            if idx <= done: continue
            n = len(ops) - 1 - idx
            assert n <= 63
            done = idx
            out.append(f"s_waitcnt vmcnt({n})")
            continue
        if l.startswith(("buffer_", "global_")):
            ops.append(l.split(";")[1].strip() if ";" in l else None)
        out.append(l)
    return out

def kv_dma(tile_slot, soff, tag, which="KV"):
    r = []
    if "K" in which:
        r.append(f"s_add_u32 m0, s{sW4K}, {KR + tile_slot * 16384}")
        for n in range(4):
            r.append(f"buffer_load_dwordx4 v{vKD+n}, {srd(SK)}, {soff} offen offset:{n*1024} nt lds ;{tag}")
    if "V" in which:
        r.append(f"s_add_u32 m0, s{sW4K}, {VR + tile_slot * 16384}")
        for n in range(4):
            r.append(f"buffer_load_dwordx4 v{vVD+(n&1)}, {srd(SV)}, {soff} offen offset:{n*1024} nt lds ;{tag}")
    return r

def gen_prologue():
    p = Asm()
    p("s_cmp_ge_u32 s2, 256\ns_cbranch_scc1 K1_END")
    p("s_load_dwordx16 s[64:79], s[0:1], 0\ns_load_dwordx4 s[80:83], s[0:1], 64\ns_load_dwordx2 s[84:85], s[0:1], 96")
    p(f"v_lshrrev_b32 v29, 6, v0\nv_and_b32 v0, 63, v0\ns_nop 0\nv_readfirstlane_b32 s{sW}, v29")
    p("s_and_b32 s4, s2, 7\ns_lshr_b32 s5, s2, 3")
    p(f"s_lshr_b32 s{sBR}, s4, 2")
    p(f"s_and_b32 s6, s4, 1\ns_lshl_b32 s6, s6, 2\ns_and_b32 s7, s5, 3\ns_add_u32 s{sB}, s6, s7")
    p(f"s_and_b32 s6, s4, 2\ns_lshl_b32 s6, s6, 2\ns_lshr_b32 s7, s5, 2\ns_add_u32 s{sHP}, s6, s7")
    p(f"s_lshl_b32 s{sW4K}, s{sW}, 12\ns_lshl_b32 s{sW8K}, s{sW}, 13")
    p(f"s_mov_b32 s{sC}, {C_SCALE}\ns_mov_b32 s{sC+1}, {C_SCALE}\ns_mov_b32 s{sTH}, {THRESH}")
    for qb in range(4): p(f"s_mov_b32 s{sXO+qb}, {qb*18432}")
    p("v_and_b32 v30, 15, v0\nv_lshrrev_b32 v31, 4, v0\nv_bfe_u32 v32, v0, 2, 2\nv_and_b32 v33, 3, v0")
    p(f"v_lshlrev_b32 v{vL16}, 4, v0")
    p("v_lshrrev_b32 v34, 5, v0")
    p("v_and_b32 v35, 1, v29\nv_lshl_add_u32 v34, v35, 1, v34")
    p("v_lshrrev_b32 v35, 1, v29")
    p("v_lshl_add_u32 v36, v35, 2, v34")
    p("v_lshl_add_u32 v34, v35, 3, v34\nv_lshlrev_b32 v34, 13, v34")
    p(f"v_and_b32 v35, 0x1f0, v{vL16}\nv_lshlrev_b32 v36, 5, v36\nv_xor_b32 v35, v35, v36\nv_add_u32 v{vWQ}, v34, v35")
    p(f"v_lshl_add_u32 v34, v29, 6, v30\nv_mul_u32_u24 v34, 1152, v34\nv_lshl_add_u32 v{vX}, v31, 4, v34")
    p("s_waitcnt lgkmcnt(0)")
    p(f"s_cmp_eq_u32 s{sBR}, 0")
    for i in range(10): p(f"s_cselect_b32 s{64+i}, s{64+i}, s{74+i}")
    p(f"s_lshl_b32 s4, s{sHP}, 9")
    p(f"s_add_u32 s{SWQ}, s70, s4\ns_addc_u32 s{SWQ+1}, s71, 0\ns_sub_u32 s{SWQ+2}, {576*8192}, s4\ns_mov_b32 s{SWQ+3}, 0x20000")
    p(f"s_mul_i32 s4, s{sB}, 294912")
    p(f"s_add_u32 s{SX}, s64, s4\ns_addc_u32 s{SX+1}, s65, 0\ns_mov_b32 s{SX+2}, 294912\ns_mov_b32 s{SX+3}, 0x20000")
    return p

def gen_prologue2():
    p = Asm()
    p(f"s_lshl_b32 s4, s{sB}, 4\ns_add_u32 s4, s4, s{sHP}")
    p("s_lshl_b32 s5, s4, 19")
    p(f"s_add_u32 s{SK}, s66, s5\ns_addc_u32 s{SK+1}, s67, 0\ns_mov_b32 s{SK+2}, 0x80000\ns_mov_b32 s{SK+3}, 0x20000")
    p(f"s_add_u32 s{SV}, s68, s5\ns_addc_u32 s{SV+1}, s69, 0\ns_mov_b32 s{SV+2}, 0x80000\ns_mov_b32 s{SV+3}, 0x20000")
    p("s_mul_i32 s5, s4, 36864")
    p(f"s_add_u32 s{SWO}, s72, s5\ns_addc_u32 s{SWO+1}, s73, 0\ns_mov_b32 s{SWO+2}, 36864\ns_mov_b32 s{SWO+3}, 0x20000")
    p(f"s_lshl_b32 s5, s{sBR}, 2\ns_add_u32 s5, s5, s{sW}\ns_lshl_b32 s5, s5, 7\ns_add_u32 s5, s5, s4\ns_mul_i32 s5, s5, 9216\ns_add_u32 s5, s5, {WOT_OFF}")
    p(f"s_add_u32 s{SWT}, s84, s5\ns_addc_u32 s{SWT+1}, s85, 0\ns_mov_b32 s{SWT+2}, 9216\ns_mov_b32 s{SWT+3}, 0x20000")
    p(f"s_lshl_b32 s5, s{sBR}, 5\ns_lshl_b32 s6, s{sB}, 2\ns_add_u32 s5, s5, s6\ns_add_u32 s5, s5, s{sW}\ns_lshl_b32 s5, s5, 7")
    p(f"s_lshl_b32 s6, s{sHP}, 3\ns_add_u32 s5, s5, s6\ns_lshl_b32 s5, s5, 12")
    p(f"s_add_u32 s{SOW}, s84, s5\ns_addc_u32 s{SOW+1}, s85, 0\ns_mov_b32 s{SOW+2}, 32768\ns_mov_b32 s{SOW+3}, 0x20000")
    p(f"v_mul_u32_u24 v34, 9216, v29\nv_add_u32 v{vWOD}, v34, v{vL16}")
    return p

def gen_prologue3():
    p = Asm()
    p("v_and_b32 v34, 1, v31\nv_lshrrev_b32 v35, 1, v32\nv_lshl_add_u32 v35, v34, 1, v35\nv_lshlrev_b32 v35, 13, v35")
    p("v_lshrrev_b32 v36, 1, v31\nv_lshl_add_u32 v35, v36, 11, v35")
    p("v_and_b32 v36, 1, v32\nv_lshl_add_u32 v35, v36, 9, v35\nv_lshl_add_u32 v35, v33, 3, v35")
    p("v_lshl_add_u32 v36, v34, 2, v32\nv_lshl_add_u32 v35, v36, 5, v35")
    for d3 in range(8):
        p(f"v_xor_b32 v36, {d3*32}, v35\nv_add_u32 v{vWA+d3}, {SL[0]}, v36\nv_add_u32 v{vWA+8+d3}, {SL[1]}, v36")
    p("v_lshl_add_u32 v34, v29, 4, v31\nv_lshlrev_b32 v34, 8, v34")
    p(f"v_xor_b32 v35, v30, v31\nv_lshl_add_u32 v{vKD}, v35, 4, v34")
    for n in range(1, 4): p(f"v_xor_b32 v{vKD+n}, {n<<6}, v{vKD}")
    p(f"v_lshlrev_b32 v35, 1, v31\nv_xor_b32 v35, v30, v35\nv_lshl_add_u32 v{vVD}, v35, 4, v34\nv_xor_b32 v{vVD+1}, 0x80, v{vVD}")
    p("v_lshl_add_u32 v34, v31, 2, v32\nv_mul_u32_u24 v34, 1152, v34\nv_mul_u32_u24 v35, 288, v29\nv_add_u32 v34, v34, v35")
    p(f"v_lshl_add_u32 v{vWOR}, v33, 3, v34\nv_add_u32 v{vWOR+1}, 0x10000, v{vWOR}")
    return p

def slab_dma(ss):
    r = []
    for i in range(8):
        a_, b_ = i >> 1, i & 1
        if i % 4 == 0:
            r.append(f"s_add_u32 m0, s{sW8K}, {SL[ss % 3] + (i >> 2) * 4096}")
        r.append(f"s_mov_b32 s{sT}, {(ss * 64 + 16 * a_ + 4 * b_) * 8192 - (i & 3) * 1024}")
        r.append(f"buffer_load_dwordx4 v{vWQ}, {srd(SWQ)}, s{sT} offen offset:{(i&3)*1024} lds ;W{ss}")
    return r

xf = lambda ss, qb, kc: R("a", 32 * (ss % 4) + 8 * qb + 4 * kc)
def x_loads(ss):
    return [f"buffer_load_dwordx4 {xf(ss, qb, kc)}, v{vX}, {srd(SX)}, s{sXO+qb} offen offset:{ss*128+kc*64} ;X{ss}" for qb in range(4) for kc in range(2)]

def wo_dma():
    r = []
    r.append(f"s_lshr_b32 s4, s{sW}, 1\ns_lshl_b32 s4, s4, 16\ns_and_b32 s5, s{sW}, 1\ns_mul_i32 s5, s5, 9216\ns_add_u32 s4, s4, s5")
    for i in range(9):
        if i % 4 == 0:
            r.append(f"s_add_u32 m0, s4, {(i >> 2) * 4096}")
            r.append(f"s_mov_b32 s{sT}, {(i >> 2) * 4096}")
        r.append(f"buffer_load_dwordx4 v{vWOD}, {srd(SWO)}, s{sT} offen offset:{(i&3)*1024} lds ;WO")
    return r

def qacc(dt, qb):
    return R("v", 128 + 16 * dt + 4 * qb) if dt < 8 else R("a", 128 + 16 * (dt - 8) + 4 * qb)

def gen_qproj():
    D = 3
    NR = 6
    wfr = lambda G, kc: 80 + 8 * (G % NR) + 4 * kc
    def rd(G):
        ss, dt = G // 16, G % 16
        base = vWA + (0 if ss % 3 == 0 else 8) + (dt & 7)
        extra = 32768 if ss % 3 == 2 else 0
        return [f"ds_read_b64_tr_b16 v[{wfr(G,kc)+2*h}:{wfr(G,kc)+2*h+1}], v{base} offset:{extra + 4096*kc + 1024*h + 256*(dt>>3)}" for kc in range(2) for h in range(2)]
    mf = []
    for G in range(144):
        ss, dt = G // 16, G % 16
        for qb in range(4):
            for kc in range(2):
                c = "0" if (ss == 0 and kc == 0) else qacc(dt, qb)
                mf.append(mf16(qacc(dt, qb), R("v", wfr(G, kc)), xf(ss, qb, kc), c))
    g = Gaps(mf)
    head = ["WAITVM W0", "s_barrier"]
    for G in range(D): head += rd(G)
    head += ["WAITVM X0"]
    for G in range(144):
        ss, dt = G // 16, G % 16
        g0 = 8 * G
        if G + D < 144:
            for i, t in enumerate(rd(G + D)): g.put(g0 + i, t)
        if dt == 15 - D and ss < 8:
            g.put(g0 + 6, f"WAITVM W{ss+1}")
            g.put(g0 + 7, "s_waitcnt lgkmcnt(0)"); g.put(g0 + 7, "s_barrier")
        if dt == 15 and ss < 8:
            g.put(g0 + 7, f"WAITVM X{ss+1}")
    def spread(items, lo):
        gg = lo
        for t in items:
            for u in t.split("\n"):
                gg = g.place(u, gg)
                if u.startswith("s_add_u32 m0") or u.startswith("buffer"): gg += 1
        return gg
    for ss in range(9):
        g0 = 128 * ss
        nxt = g0 + 4
        if ss + 3 <= 8:
            nxt = spread(x_loads(ss + 3), nxt)
        if ss == 2:
            rds = []
            for nt in range(9):
                for h in range(2):
                    rds.append(f"ds_read_b64_tr_b16 v[{44+4*nt+2*h}:{45+4*nt+2*h}], v{vWOR+h} offset:{32*nt}")
            nxt = spread(rds, nxt)
            nxt += 12
            sts = []
            for nt in range(9):
                if nt % 4 == 0: sts.append(f"s_mov_b32 s{sT}, {(nt>>2)*4096}")
                sts.append(f"buffer_store_dwordx4 {R('v', 44+4*nt)}, v{vL16}, {srd(SWT)}, s{sT} offen offset:{(nt&3)*1024} ;WT")
            nxt = spread(sts, nxt)
        if ss == 3:
            nxt = spread([f"s_mov_b32 s{sKOFF}, 0"] + kv_dma(0, f"s{sKOFF}", "T0"), nxt)
        if ss == 5:
            nxt = spread([f"s_mov_b32 s{sKOFF}, 16384"] + kv_dma(1, f"s{sKOFF}", "T1"), nxt)
        if ss == 7:
            nxt = spread([f"s_mov_b32 s{sKOFF}, 32768"] + kv_dma(2, f"s{sKOFF}", "T2", "K"), nxt)
        if ss == 8:
            nxt = spread(kv_dma(2, f"s{sKOFF}", "T2", "V") + [f"s_mov_b32 s{sKOFF}, 49152"] + kv_dma(3, f"s{sKOFF}", "T3") + [f"s_mov_b32 s{sKOFF}, 65536"], nxt)
        assert nxt < g0 + 8 * (15 - D) + 6, (ss, nxt - g0)
        if ss + 3 <= 8:
            e = spread(slab_dma(ss + 3), g0 + 8 * (16 - D))
            assert e <= g0 + 128 + 3, (ss, e - g0)
    return head + g.lines()

def gen_qconv():
    p = Asm()
    p("s_nop 7")
    p("v_and_b32 v34, 1, v31\nv_lshrrev_b32 v35, 1, v31\nv_lshl_add_u32 v34, v34, 1, v35")
    p(f"v_xor_b32 v34, v34, v30\nv_lshlrev_b32 v34, 4, v34\nv_lshl_add_u32 v{vKA}, v30, 8, v34")
    for ks in range(1, 4): p(f"v_xor_b32 v{vKA+ks}, {ks<<6}, v{vKA}")
    p("v_lshl_add_u32 v34, v31, 2, v32\nv_and_b32 v35, 7, v34\nv_lshlrev_b32 v35, 5, v35\nv_lshl_add_u32 v35, v33, 3, v35")
    p(f"v_lshl_add_u32 v34, v34, 8, v35\nv_add_u32 v{vVA}, {VR}, v34")
    for dt in range(1, 8): p(f"v_xor_b32 v{vVA+dt}, {dt<<5}, v{vVA}")
    for i in range(4): p(f"v_mov_b32 v{ONES+i}, 0x3f803f80")
    def conv(src, dst):
        for i in range(0, 128, 2):
            p(f"v_pk_mul_f32 v[{src+i}:{src+i+1}], v[{src+i}:{src+i+1}], s[{sC}:{sC+1}]")
        for qb in range(4):
            for ks in range(4):
                t = 96 + 4 * ks + 16 * (qb & 1)
                T0 = src + 16 * (2 * ks) + 4 * qb; T1 = T0 + 16
                p(f"v_cvt_pk_bf16_f32 v{t}, v{T0}, v{T0+1}\nv_cvt_pk_bf16_f32 v{t+1}, v{T0+2}, v{T0+3}")
                p(f"v_cvt_pk_bf16_f32 v{t+2}, v{T1}, v{T1+1}\nv_cvt_pk_bf16_f32 v{t+3}, v{T1+2}, v{T1+3}")
            p("s_nop 0")
            for ks in range(4):
                t = 96 + 4 * ks + 16 * (qb & 1)
                p(f"v_permlane16_swap_b32 v{t}, v{t+2}\nv_permlane16_swap_b32 v{t+1}, v{t+3}")
            for i in range(16):
                p(f"v_accvgpr_write_b32 a{dst + 16*qb + i}, v{96 + 16*(qb&1) + i}")
    conv(128, Q_)
    for i in range(128): p(f"v_accvgpr_read_b32 v{128+i}, a{128+i}")
    conv(128, Q2_)
    p(f"s_mov_b32 s{sHD}, 0\ns_mov_b32 s{sOO}, 0")
    return p

kf = lambda kt, ks: R("a", KF + 16 * kt + 4 * ks)
vf = lambda dt, kk: R("a", VF + 8 * dt + 4 * kk)
qf = lambda qb, ks: R("a", Q_ + 16 * qb + 4 * ks)
def k_reads(slot):
    return [(kt, f"ds_read_b128 {kf(kt, ks)}, v{vKA+ks} offset:{KR + slot*16384 + kt*4096}") for kt in range(4) for ks in range(4)]
def v_reads(slot):
    return [(dt, f"ds_read_b64_tr_b16 a[{VF+8*dt+4*kk+2*h}:{VF+8*dt+4*kk+2*h+1}], v{vVA+dt} offset:{slot*16384 + kk*8192 + h*4096}") for dt in range(8) for kk in range(2) for h in range(2)]
def mf_qk(qb):
    r = []
    for kt in range(4):
        s = R("v", S_ + 16 * (qb & 1) + 4 * kt)
        for ks in range(4):
            r.append(mf16(s, kf(kt, ks), qf(qb, ks), R("v", NEGM + 4 * qb) if ks == 0 else s))
    return r
def mf_pv(qb):
    r = []
    for dt in range(8):
        o = R("v", O_ + 32 * qb + 4 * dt)
        for kk in range(2):
            r.append(mf16(o, vf(dt, kk), R("v", P_ + 8 * (qb & 1) + 4 * kk), o))
    l = R("v", L_ + 4 * qb)
    for kk in range(2):
        r.append(mf16(l, R("v", ONES), R("v", P_ + 8 * (qb & 1) + 4 * kk), l))
    return r
def put_sm(g, g0, n, qb):
    s = S_ + 16 * (qb & 1); pp = P_ + 8 * (qb & 1)
    if n >= 33:
        for i in range(16): g.put(g0 + 2 * i + 1, f"v_exp_f32 v{s+i}, v{s+i}", 2)
        for j in range(8): g.put(g0 + 4 * j + 4, f"v_cvt_pk_bf16_f32 v{pp+j}, v{s+2*j}, v{s+2*j+1}")
    else:
        for i in range(16): g.put(g0 + min(i, n - 1), f"v_exp_f32 v{s+i}, v{s+i}", 2)
        for j in range(8): g.put(g0 + min(2 * j + 2, n - 1), ("s_nop 0\n" if 2 * j + 2 > n - 1 else "") + f"v_cvt_pk_bf16_f32 v{pp+j}, v{s+2*j}, v{s+2*j+1}") if False else None
        for j in range(8):
            gg = min(2 * j + 2, n - 1)
            if 2 * j + 2 > n - 1: g.val[g0 + gg].append("s_nop 0")
            g.put(g0 + gg, f"v_cvt_pk_bf16_f32 v{pp+j}, v{s+2*j}, v{s+2*j+1}")

def gen_body(ph):
    mf = mf_qk(3) + mf_pv(1) + mf_pv(2) + mf_qk(0) + mf_pv(3) + mf_qk(1) + mf_qk(2) + mf_pv(0)
    g = Gaps(mf)
    for i, qb in enumerate([2, 3, 0, 1]): put_sm(g, 34 * i, 34, qb)
    nslot = (ph + 1) % 4
    gg = 0
    for kt, t in k_reads(nslot):
        gg = g.place(t, max(gg, 4 * kt + 3), cap=2) + 1
    gg = 0
    dm = kv_dma(ph, f"s{sKOFF}", "T") + [f"s_add_u32 s{sKOFF}, s{sKOFF}, 16384"]
    gg = 36
    for t in dm:
        gg = g.place(t, gg) + 1
    gg = 0
    for dt, t in v_reads(nslot):
        gg = g.place(t, max(gg, 68 + 2 * dt + 1))
    assert gg < 102 + 12, gg
    return ["s_waitcnt vmcnt(16)", "s_barrier"] + g.lines()

def gen_head_pro():
    p = []
    for _, t in k_reads(0): p.append(t)
    for i in range(4): p.append(f"v_mov_b32 v{P_+i}, 0")
    p.append("s_nop 1")
    z = R("v", P_)
    vr = [t for _, t in v_reads(0)]
    for i in range(8):
        p.append(f"v_mfma_f32_32x32x16_bf16 v[{O_+16*i}:{O_+16*i+15}], {z}, {z}, 0")
        p += vr[4 * i: 4 * i + 4]
    p.append(f"v_mfma_f32_32x32x16_bf16 v[{L_}:{L_+15}], {z}, {z}, 0")
    for qb in range(4):
        s = R("v", S_ + 4 * qb)
        for ks in range(4): p.append(mf16(s, kf(0, ks), qf(qb, ks), "0" if ks == 0 else s))
    p.append("s_nop 7")
    m = lambda qb: vTMP + 5 + qb
    t = lambda qb: vTMP + 9 + qb
    for qb in range(4):
        s = S_ + 4 * qb
        p.append(f"v_max3_f32 v{m(qb)}, v{s}, v{s+1}, v{s+2}")
    for qb in range(4): p.append(f"v_max_f32 v{m(qb)}, v{m(qb)}, v{S_+4*qb+3}")
    for op in ("v_permlane16_swap_b32", "v_permlane32_swap_b32"):
        for qb in range(4): p.append(f"v_mov_b32 v{t(qb)}, v{m(qb)}")
        p.append("s_nop 0")
        for qb in range(4): p.append(f"{op} v{m(qb)}, v{t(qb)}")
        for qb in range(4): p.append(f"v_max_f32 v{m(qb)}, v{m(qb)}, v{t(qb)}")
    for qb in range(4):
        for i in range(4): p.append(f"v_sub_f32 v{NEGM+4*qb+i}, 0, v{m(qb)}")
    p.append("s_nop 1")
    mf = mf_qk(0) + mf_qk(1) + mf_qk(2) + mf_pv(0)
    g = Gaps(mf)
    put_sm(g, 16, 16, 0)
    put_sm(g, 32, 34, 1)
    return p + g.lines()

def gen_tail():
    mf = mf_qk(3) + mf_pv(1) + mf_pv(2) + mf_pv(3)
    g = Gaps(mf)
    put_sm(g, 0, 34, 2)
    put_sm(g, 34, 18, 3)
    gg = 0
    for t in kv_dma(3, f"s{sKOFF}", "T") + [f"s_add_u32 s{sKOFF}, s{sKOFF}, 16384"]:
        gg = g.place(t, gg) + 1
    g.val[51].append("s_nop 1")
    return ["s_waitcnt vmcnt(16)", "s_barrier"] + g.lines()

def gen_epi():
    p = Asm()
    p("s_nop 7")
    rl = lambda qb: 34 + 2 * qb
    for qb in range(4): p(f"v_rcp_f32 v{rl(qb)}, v{L_+4*qb}")
    for qb in range(4):
        o = O_ + 32 * qb
        for i in range(0, 32, 2):
            p(f"v_pk_mul_f32 v[{o+i}:{o+i+1}], v[{o+i}:{o+i+1}], v[{rl(qb)}:{rl(qb)+1}] op_sel_hi:[1,0]")
        for j in range(16):
            p(f"v_cvt_pk_bf16_f32 v{o+j}, v{o+2*j}, v{o+2*j+1}")
        for m_ in range(4):
            p(f"s_add_u32 s{sT}, s{sOO}, {m_*4096}")
            p(f"buffer_store_dwordx4 {R('v', o+4*m_)}, v{vL16}, {srd(SOW)}, s{sT} offen offset:{qb*1024}")
    for i in range(64): p(f"v_accvgpr_mov_b32 a{Q_+i}, a{Q2_+i}")
    p(f"s_add_u32 s{sOO}, s{sOO}, 16384\ns_add_u32 s{sHD}, s{sHD}, 1")
    return p

def stamp(i):
    return [f"s_memtime s[{86}:{87}]", "s_waitcnt lgkmcnt(0)", f"v_writelane_b32 v43, s86, {i}"]

def gen_k1(stamps=False):
    st = (lambda i: stamp(i)) if stamps else (lambda i: [])
    pro = gen_prologue().lines + slab_dma(0) + x_loads(0) + gen_prologue2().lines + slab_dma(1) + x_loads(1)
    for t in wo_dma(): pro += t.split("\n")
    pro += slab_dma(2) + x_loads(2) + gen_prologue3().lines
    if stamps:
        pro = pro[:2] + ["s_memrealtime s[90:91]", "v_mov_b32 v43, 0"] + st(0) + pro[2:]
    qp = gen_qproj()
    front = resolve_vm(pro + qp[:2] + st(1) + qp[2:])
    front, pend = auto_lgkm(front)
    conv = st(2) + gen_qconv().lines + st(3)
    hp, pend = auto_lgkm(gen_head_pro())
    assert not pend or True
    bodies = []
    for ph in range(4):
        b, pe = auto_lgkm(gen_body(ph))
        assert not pe, pe
        bodies.append(b)
    tail, _ = auto_lgkm(gen_tail())
    epi = gen_epi().lines
    a = Asm()
    a.lines += front + conv
    a.label("K1_HEAD")
    a.lines += hp
    a(f"s_mov_b32 s{sIT}, 0\ns_branch K1_B0")
    a(".p2align 6")
    a.label("K1_LOOP")
    a.lines += bodies[3]
    a.label("K1_B0")
    a.lines += bodies[0] + bodies[1] + bodies[2]
    a(f"s_add_u32 s{sIT}, s{sIT}, 1\ns_cmp_lt_u32 s{sIT}, 4\ns_cbranch_scc1 K1_LOOP")
    if stamps:
        a(f"s_lshl_b32 s88, s{sHD}, 1\ns_add_u32 s88, s88, 4\ns_memtime s[86:87]\ns_waitcnt lgkmcnt(0)\ns_mov_b32 m0, s88\ns_nop 3\nv_writelane_b32 v43, s86, m0")
    a.lines += tail + epi
    if stamps:
        a(f"s_add_u32 s88, s88, 1\ns_memtime s[86:87]\ns_waitcnt lgkmcnt(0)\ns_mov_b32 m0, s88\ns_nop 3\nv_writelane_b32 v43, s86, m0")
    a(f"s_cmp_lt_u32 s{sHD}, 2\ns_cbranch_scc1 K1_HEAD")
    if stamps:
        a("s_waitcnt vmcnt(0)")
        a.lines += st(8)
        a("s_memrealtime s[92:93]\ns_waitcnt lgkmcnt(0)\nv_writelane_b32 v43, s90, 9\nv_writelane_b32 v43, s92, 10")
        a(f"s_lshl_b32 s4, s2, 2\ns_add_u32 s4, s4, s{sW}\ns_lshl_b32 s4, s4, 6\ns_add_u32 s4, s4, 0x8000000")
        a("s_mov_b32 s8, s84\ns_mov_b32 s9, s85\ns_mov_b32 s10, 0x10000000\ns_mov_b32 s11, 0x20000\nv_lshlrev_b32 v42, 2, v0\ns_mov_b64 exec, 0xffff")
        a("buffer_store_dword v43, v42, s[8:11], s4 offen")
    a.label("K1_END")
    trace = front + conv + hp + bodies[0] + bodies[1] + bodies[2] + bodies[3] + bodies[0] + bodies[1] + bodies[2] + tail + epi + hp + bodies[0]
    errs = chk.check(trace)
    assert not errs
    return a.text()

if __name__ == "__main__":
    body = gen_k1(stamps=True)
    open("k1.s", "w").write(single_kernel_file(body, 256, 256, 160 * 1024, vgpr=512, accum=256))
```

```python
from g import *
import chk

WOT_OFF = 0x2000000

def mf16(d, a, b, c):
    return f"v_mfma_f32_16x16x32_bf16 {d}, {a}, {b}, {c}"
def R(t, i, n=4):
    return f"{t}[{i}:{i+n-1}]"

def gen_k2(stamp=False, aux_o="", aux_w="", same=False, nomfma=False):
    a = Asm()
    def sec():
        s = Asm(); return s
    ACC = 112
    WF = 0
    OF = 144
    acc = lambda j, nt: R("v", ACC + 4 * (j * 9 + nt))
    wf = lambda buf, nt, k: R("a", WF + 72 * buf + 8 * nt + 4 * k)
    of = lambda buf, j, k: R("a", OF + 32 * buf + 8 * j + 4 * k)
    SO, SW, SOUT = 8, 12, 16
    SOJ = 20
    SWN = 28
    p = sec()
    p("s_cmp_ge_u32 s2, 256\ns_cbranch_scc1 K2_END")
    p("s_load_dwordx2 s[4:5], s[0:1], 96\ns_load_dwordx2 s[6:7], s[0:1], 80")
    p("v_lshrrev_b32 v2, 6, v0\nv_and_b32 v3, 63, v0\ns_nop 0\nv_readfirstlane_b32 s33, v2")
    p("s_and_b32 s34, s2, 7\ns_lshr_b32 s35, s2, 3")
    p("s_lshr_b32 s36, s34, 2")
    p("s_and_b32 s37, s34, 3\ns_lshl_b32 s37, s37, 3\ns_lshr_b32 s38, s35, 2\ns_add_u32 s37, s37, s38")
    p("s_and_b32 s38, s35, 3")
    p("s_lshl_b32 s39, s36, 5\ns_add_u32 s39, s39, s37\ns_lshl_b32 s39, s39, 19")
    p(f"s_lshl_b32 s40, s36, 2\ns_add_u32 s40, s40, s38\ns_mul_i32 s40, s40, {9 << 17}\ns_add_u32 s40, s40, {WOT_OFF}")
    if same:
        p(f"s_mov_b32 s39, 0\ns_mov_b32 s40, {WOT_OFF}")
    for j in range(4):
        p(f"s_add_u32 s{SOJ+j}, s33, {j}\ns_and_b32 s{SOJ+j}, s{SOJ+j}, 3\ns_lshl_b32 s{SOJ+j}, s{SOJ+j}, 10\ns_add_u32 s{SOJ+4+j}, s{SOJ+j}, 4096")
    for n in range(5):
        p(f"s_mov_b32 s{SWN+n}, {n << 12}")
    p("v_lshlrev_b32 v1, 4, v3\nv_lshlrev_b32 v4, 13, v2\nv_add_u32 v11, v1, v4")
    p("v_mul_u32_u24 v4, 18432, v2\nv_add_u32 v12, v1, v4")
    p("s_waitcnt lgkmcnt(0)")
    p(f"s_add_u32 s{SO}, s4, s39\ns_addc_u32 s{SO+1}, s5, 0\ns_mov_b32 s{SO+2}, {4 << 17}\ns_mov_b32 s{SO+3}, 0x20000")
    p(f"s_add_u32 s{SW}, s4, s40\ns_addc_u32 s{SW+1}, s5, 0\ns_mov_b32 s{SW+2}, {9 << 17}\ns_mov_b32 s{SW+3}, 0x20000")
    p(f"s_mov_b32 s{SOUT}, s6\ns_mov_b32 s{SOUT+1}, s7\ns_mov_b32 s{SOUT+2}, {8*256*1152*2}\ns_mov_b32 s{SOUT+3}, 0x20000")
    ldw = lambda buf, nt, k: f"buffer_load_dwordx4 {wf(buf, nt, k)}, v12, s[{SW}:{SW+3}], s{SWN+(k*9+nt)//4} offen offset:{1024 * ((k*9+nt)%4)} {aux_w}"
    ldo = lambda buf, j, k: f"buffer_load_dwordx4 {of(buf, j, k)}, v11, s[{SO}:{SO+3}], s{SOJ+4*k+j} offen {aux_o}"
    adv = "v_add_u32 v11, 0x8000, v11\nv_add_u32 v12, 73728, v12"
    if stamp:
        p("s_memtime s[60:61]\ns_memrealtime s[62:63]")
    for buf in range(2):
        for nt in range(9):
            for k in range(2): p(ldw(buf, nt, k))
        for j in range(4):
            for k in range(2): p(ldo(buf, j, k))
        p(adv)
    for i in range(144):
        p(f"v_mov_b32 v{ACC+i}, 0")
    p("s_mov_b32 s42, 0")
    def body(loads):
        b = sec()
        for buf in range(2):
            b(f"s_waitcnt vmcnt({26 if (loads or buf == 0) else 0})")
            for nt in range(9):
                for j in range(4):
                    for k in range(2):
                        if not nomfma or (nt == 0 and j == 0):
                            b(mf16(acc(j, nt), wf(buf, nt, k), of(buf, j, k), acc(j, nt)))
                        if loads and nt > 0 and j == 0:
                            b(ldw(buf, nt - 1, k))
            if loads:
                for k in range(2): b(ldw(buf, 8, k))
                for j in range(4):
                    for k in range(2): b(ldo(buf, j, k))
                b(adv)
        return b
    bl = body(True); bn = body(False)
    e = sec()
    e("v_lshlrev_b32 v5, 4, v3")
    for j in range(1, 4):
        e(f"s_add_u32 s43, s33, {j}\ns_and_b32 s43, s43, 3\ns_mul_i32 s43, s43, {3*9*1024}\ns_add_u32 s43, s43, {(j-1)*9*1024}")
        e(f"v_add_u32 v{5+j}, s43, v5")
    e(f"s_mul_i32 s43, s33, {3*9*1024}\nv_add_u32 v5, s43, v5")
    e("s_nop 7")
    for j in range(1, 4):
        for nt in range(9):
            e(f"ds_write_b128 v{5+j}, {acc(j, nt)} offset:{nt*1024}")
    e("s_waitcnt lgkmcnt(0)\ns_barrier")
    for j in range(1, 4):
        for nt in range(9):
            e(f"ds_read_b128 {acc(j, nt)}, v5 offset:{((j-1)*9+nt)*1024}")
    e("s_lshl_b32 s43, s37, 6\ns_lshl_b32 s44, s33, 4\ns_add_u32 s43, s43, s44\ns_mul_i32 s43, s43, 2304")
    e("s_mul_i32 s44, s36, 1152\ns_add_u32 s43, s43, s44\ns_mul_i32 s44, s38, 288\ns_add_u32 s43, s43, s44")
    e("v_and_b32 v9, 15, v3\nv_mul_u32_u24 v9, 2304, v9\nv_lshrrev_b32 v10, 4, v3\nv_lshlrev_b32 v10, 3, v10\nv_add_u32 v9, v9, v10")
    for j in range(1, 4):
        e(f"s_waitcnt lgkmcnt({min(15, 9 * (3 - j))})")
        for nt in range(9):
            d = ACC + 4 * nt; s = ACC + 4 * (j * 9 + nt)
            e(f"v_pk_add_f32 v[{d}:{d+1}], v[{d}:{d+1}], v[{s}:{s+1}]")
            e(f"v_pk_add_f32 v[{d+2}:{d+3}], v[{d+2}:{d+3}], v[{s+2}:{s+3}]")
    for nt in range(9):
        d = ACC + 4 * nt
        e(f"v_cvt_pk_bf16_f32 v{d}, v{d}, v{d+1}\nv_cvt_pk_bf16_f32 v{d+1}, v{d+2}, v{d+3}")
        e(f"buffer_store_dwordx2 v[{d}:{d+1}], v9, s[{SOUT}:{SOUT+3}], s43 offen offset:{nt*32}")
    if stamp:
        e("s_waitcnt vmcnt(0)\ns_memtime s[64:65]\ns_memrealtime s[66:67]\ns_waitcnt lgkmcnt(0)")
        e("s_sub_u32 s64, s64, s60\ns_sub_u32 s66, s66, s62\nv_mov_b32 v4, s64\nv_mov_b32 v5, s66")
        e("s_lshl_b32 s43, s2, 2\ns_add_u32 s43, s43, s33\ns_lshl_b32 s43, s43, 3\ns_add_u32 s43, s43, 0x8000000")
        e("s_mov_b32 s8, s4\ns_mov_b32 s9, s5\ns_mov_b32 s10, 0x10000000\ns_mov_b32 s11, 0x20000\nv_mov_b32 v6, 0\ns_mov_b64 exec, 1")
        e("buffer_store_dwordx2 v[4:5], v6, s[8:11], s43 offen")
    a.lines += p.lines
    a(".p2align 6") ; a.label("K2_LOOP")
    a.lines += bl.lines
    a("s_add_u32 s42, s42, 1\ns_cmp_lt_u32 s42, 7\ns_cbranch_scc1 K2_LOOP")
    a.lines += bn.lines + e.lines
    a.label("K2_END")
    errs = chk.check(p.lines + bl.lines + bl.lines + bn.lines + e.lines)
    assert not errs
    return a.text()

if __name__ == "__main__":
    for name, kw in [("k2", {}), ("k2_same", dict(same=True)), ("k2_nomfma", dict(nomfma=True)), ("k2_same_nomfma", dict(same=True, nomfma=True))]:
        body = gen_k2(stamp=True, **kw)
        open(f"{name}.s", "w").write(single_kernel_file(body, 256, 256, 108 * 1024, vgpr=512, accum=256))
```

```python
import sys
from g import *
import k1, k2
HDR = open("concat_heads__mha_block_cached__mha_block_cached__near_ridge.s.ref").read().split("; Override launch")[0]
def build(fname, k1kw={}, k2kw={}):
    b1 = k1.gen_k1(**k1kw); b2 = k2.gen_k2(**k2kw)
    s = HDR
    s += "; @launch kernel=attn_kernel grid=(256,1,1) block=(256,1,1) lds=163840\n"
    s += "; @launch kernel=oproj_kernel grid=(256,1,1) block=(256,1,1) lds=110592\n"
    s += '.amdgcn_target "amdgcn-amd-amdhsa--gfx950"\n.text\n'
    s += kernel_header("attn_kernel") + b1 + "    s_endpgm\n"
    s += kernel_header("oproj_kernel") + b2 + "    s_endpgm\n"
    s += '.section .rodata,"a"\n' + kernel_desc("attn_kernel") + kernel_desc("oproj_kernel")
    open(fname, "w").write(s)
if __name__ == "__main__":
    build(sys.argv[1] if len(sys.argv) > 1 else "concat_heads__mha_block_cached__mha_block_cached__near_ridge.s")
```

```python
from g import *
import chk

WOT_OFF = 0x2000000

def mf16(d, a, b, c):
    return f"v_mfma_f32_16x16x32_bf16 {d}, {a}, {b}, {c}"
def R(t, i, n=4):
    return f"{t}[{i}:{i+n-1}]"

def gen_k2(stamp=False, aux_o="", aux_w="", same=False, nomfma=False, rot=0, lead=4):
    a = Asm()
    def sec():
        s = Asm(); return s
    ACC = 112
    WF = 0
    OF = 144
    acc = lambda j, nt: R("v", ACC + 4 * (j * 9 + nt))
    wf = lambda buf, nt, k: R("a", WF + 72 * buf + 8 * nt + 4 * k)
    of = lambda buf, j, k: R("a", OF + 32 * buf + 8 * j + 4 * k)
    SO, SW, SOUT = 8, 12, 16
    SOJ = 20
    SWN = 28
    p = sec()
    p("s_cmp_ge_u32 s2, 256\ns_cbranch_scc1 K2_END")
    p("s_load_dwordx2 s[4:5], s[0:1], 96\ns_load_dwordx2 s[6:7], s[0:1], 80")
    p("v_lshrrev_b32 v2, 6, v0\nv_and_b32 v3, 63, v0\ns_nop 0\nv_readfirstlane_b32 s33, v2")
    p("s_and_b32 s34, s2, 7\ns_lshr_b32 s35, s2, 3")
    p("s_lshr_b32 s36, s34, 2")
    p("s_and_b32 s37, s34, 3\ns_lshl_b32 s37, s37, 3\ns_lshr_b32 s38, s35, 2\ns_add_u32 s37, s37, s38")
    p("s_and_b32 s38, s35, 3")
    p("s_lshl_b32 s39, s36, 5\ns_add_u32 s39, s39, s37\ns_lshl_b32 s39, s39, 19")
    p(f"s_lshl_b32 s40, s36, 2\ns_add_u32 s40, s40, s38\ns_mul_i32 s40, s40, {9 << 17}\ns_add_u32 s40, s40, {WOT_OFF}")
    if same:
        p(f"s_mov_b32 s39, 0\ns_mov_b32 s40, {WOT_OFF}")
    for j in range(4):
        p(f"s_add_u32 s{SOJ+j}, s33, {j}\ns_and_b32 s{SOJ+j}, s{SOJ+j}, 3\ns_lshl_b32 s{SOJ+j}, s{SOJ+j}, 10\ns_add_u32 s{SOJ+4+j}, s{SOJ+j}, 4096")
    for n in range(5):
        p(f"s_mov_b32 s{SWN+n}, {n << 12}")
    p("v_lshlrev_b32 v1, 4, v3\nv_lshlrev_b32 v4, 13, v2\nv_add_u32 v11, v1, v4")
    p("v_mul_u32_u24 v4, 18432, v2\nv_add_u32 v12, v1, v4")
    p("s_waitcnt lgkmcnt(0)")
    p(f"s_add_u32 s{SO}, s4, s39\ns_addc_u32 s{SO+1}, s5, 0\ns_mov_b32 s{SO+2}, {4 << 17}\ns_mov_b32 s{SO+3}, 0x20000")
    p(f"s_add_u32 s{SW}, s4, s40\ns_addc_u32 s{SW+1}, s5, 0\ns_mov_b32 s{SW+2}, {9 << 17}\ns_mov_b32 s{SW+3}, 0x20000")
    p(f"s_mov_b32 s{SOUT}, s6\ns_mov_b32 s{SOUT+1}, s7\ns_mov_b32 s{SOUT+2}, {8*256*1152*2}\ns_mov_b32 s{SOUT+3}, 0x20000")
    ldw = lambda buf, nt, k: f"buffer_load_dwordx4 {wf(buf, nt, k)}, v12, s[{SW}:{SW+3}], s{SWN+(k*9+nt)//4} offen offset:{1024 * ((k*9+nt)%4)} {aux_w}"
    ldo = lambda buf, j, k: f"buffer_load_dwordx4 {of(buf, j, k)}, v11, s[{SO}:{SO+3}], s{SOJ+4*k+j} offen {aux_o}"
    adv = "v_add_u32 v11, 0x8000, v11\nv_add_u32 v12, 73728, v12"
    if rot:
        p("v_mov_b32 v13, v11\nv_mov_b32 v14, v12\ns_add_u32 s46, s37, s38\ns_and_b32 s46, s46, 3\ns_mov_b32 s45, -1")
        adv = (f"s_add_u32 s45, s45, 1\ns_and_b32 s47, s45, 3\ns_cmp_eq_u32 s47, s46\ns_cselect_b32 s47, {lead}, 0\ns_add_u32 s47, s47, s45\n"
               f"s_and_b32 s47, s47, {rot-1}\ns_andn2_b32 s48, s45, {rot-1}\ns_or_b32 s47, s47, s48\n"
               "s_lshl_b32 s48, s47, 15\ns_mul_i32 s47, s47, 73728\nv_add_u32 v11, s48, v13\nv_add_u32 v12, s47, v14")
        p(adv)
    def ST(x, i):
        if stamp: x(f"s_memtime s[86:87]\ns_memrealtime s[94:95]\ns_waitcnt lgkmcnt(0)\nv_writelane_b32 v43, s86, {i}\nv_writelane_b32 v43, s94, {32+i}")
    if stamp: p("v_mov_b32 v43, 0")
    ST(p, 0)
    for buf in range(2):
        for nt in range(9):
            for k in range(2): p(ldw(buf, nt, k))
        for j in range(4):
            for k in range(2): p(ldo(buf, j, k))
        p(adv)
    for i in range(144):
        p(f"v_mov_b32 v{ACC+i}, 0")
    p("s_mov_b32 s42, 0")
    ST(p, 1)
    if stamp: p("s_waitcnt vmcnt(26)")
    ST(p, 2)
    def body(loads):
        b = sec()
        for buf in range(2):
            b(f"s_waitcnt vmcnt({26 if (loads or buf == 0) else 0})")
            for nt in range(9):
                for j in range(4):
                    for k in range(2):
                        if not nomfma or (nt == 0 and j == 0):
                            b(mf16(acc(j, nt), wf(buf, nt, k), of(buf, j, k), acc(j, nt)))
                        if loads and nt > 0 and j == 0:
                            b(ldw(buf, nt - 1, k))
            if loads:
                for k in range(2): b(ldw(buf, 8, k))
                for j in range(4):
                    for k in range(2): b(ldo(buf, j, k))
                b(adv)
        return b
    bl = body(True); bn = body(False)
    e = sec()
    ST(e, 4)
    e("v_lshlrev_b32 v5, 4, v3")
    for j in range(1, 4):
        e(f"s_add_u32 s43, s33, {j}\ns_and_b32 s43, s43, 3\ns_mul_i32 s43, s43, {3*9*1024}\ns_add_u32 s43, s43, {(j-1)*9*1024}")
        e(f"v_add_u32 v{5+j}, s43, v5")
    e(f"s_mul_i32 s43, s33, {3*9*1024}\nv_add_u32 v5, s43, v5")
    e("s_nop 7")
    for j in range(1, 4):
        for nt in range(9):
            e(f"ds_write_b128 v{5+j}, {acc(j, nt)} offset:{nt*1024}")
    e("s_waitcnt lgkmcnt(0)")
    ST(e, 5)
    e("s_barrier")
    ST(e, 6)
    for j in range(1, 4):
        for nt in range(9):
            e(f"ds_read_b128 {acc(j, nt)}, v5 offset:{((j-1)*9+nt)*1024}")
    e("s_lshl_b32 s43, s37, 6\ns_lshl_b32 s44, s33, 4\ns_add_u32 s43, s43, s44\ns_mul_i32 s43, s43, 2304")
    e("s_mul_i32 s44, s36, 1152\ns_add_u32 s43, s43, s44\ns_mul_i32 s44, s38, 288\ns_add_u32 s43, s43, s44")
    e("v_and_b32 v9, 15, v3\nv_mul_u32_u24 v9, 2304, v9\nv_lshrrev_b32 v10, 4, v3\nv_lshlrev_b32 v10, 3, v10\nv_add_u32 v9, v9, v10")
    for j in range(1, 4):
        e(f"s_waitcnt lgkmcnt({min(15, 9 * (3 - j))})")
        for nt in range(9):
            d = ACC + 4 * nt; s = ACC + 4 * (j * 9 + nt)
            e(f"v_pk_add_f32 v[{d}:{d+1}], v[{d}:{d+1}], v[{s}:{s+1}]")
            e(f"v_pk_add_f32 v[{d+2}:{d+3}], v[{d+2}:{d+3}], v[{s+2}:{s+3}]")
    for nt in range(9):
        d = ACC + 4 * nt
        e(f"v_cvt_pk_bf16_f32 v{d}, v{d}, v{d+1}\nv_cvt_pk_bf16_f32 v{d+1}, v{d+2}, v{d+3}")
        e(f"buffer_store_dwordx2 v[{d}:{d+1}], v9, s[{SOUT}:{SOUT+3}], s43 offen offset:{nt*32}")
    if stamp:
        ST(e, 7)
        e("s_waitcnt vmcnt(0)")
        ST(e, 8)
        e("s_lshl_b32 s43, s2, 2\ns_add_u32 s43, s43, s33\ns_lshl_b32 s43, s43, 8\ns_add_u32 s43, s43, 0x8000000")
        e("s_mov_b32 s8, s4\ns_mov_b32 s9, s5\ns_mov_b32 s10, 0x10000000\ns_mov_b32 s11, 0x20000\nv_lshlrev_b32 v6, 2, v3")
        e("buffer_store_dword v43, v6, s[8:11], s43 offen")
    a.lines += p.lines
    a(".p2align 6") ; a.label("K2_LOOP")
    a.lines += bl.lines
    a("s_add_u32 s42, s42, 1\ns_cmp_lt_u32 s42, 7\ns_cbranch_scc1 K2_LOOP")
    ST(a, 3)
    a.lines += bn.lines + e.lines
    a.label("K2_END")
    errs = chk.check(p.lines + bl.lines + bl.lines + bn.lines + e.lines)
    assert not errs
    return a.text()

if __name__ == "__main__":
    for name, kw in [("k2", {}), ("k2_r16", dict(rot=16)), ("k2_r8", dict(rot=8)), ("k2_sc1", dict(aux_o="sc1", aux_w="sc1")), ("k2_r8sc1", dict(rot=8, aux_o="sc1", aux_w="sc1"))]:
        body = gen_k2(stamp=True, **kw)
        open(f"{name}.s", "w").write(single_kernel_file(body, 256, 256, 108 * 1024, vgpr=512, accum=256))
```

```python
from g import *
import chk, re
from k2 import WOT_OFF, mf16, R

KR, VR, SP = 0, 65536, 131072
SL = [32768, 98304, 131072]
C_SCALE = 0x3e0293ee
THRESH = 0x53800000

sW = 3
SK, SV, SX, SWQ, SWO, SOW, SWT = 8, 12, 16, 20, 24, 28, 32
SPW, SPX = 56, 60
sWOB = 54
sBR, sB, sHP, sW4K, sW8K, sT, sC, sXO, sKOFF, sIT, sHD, sOO, sTH = 36, 37, 38, 39, 40, 41, 42, 44, 48, 49, 50, 51, 52
srd = lambda s: f"s[{s}:{s+3}]"
vX2, vXR = 42, 39
vX, vWQ, vL16, vKD, vVD, vWA, vKA, vVA, vWOR, vWOD, vTMP = 1, 2, 3, 4, 8, 10, 10, 14, 26, 28, 29
ONES, L_, NEGM, P_, S_, O_ = 44, 48, 64, 80, 96, 128
Q_, Q2_, KF, VF = 0, 64, 128, 192

class Gaps:
    def __init__(self, mf):
        self.mf = mf
        self.pre = [[] for _ in mf]
        self.val = [[] for _ in mf]
        self.used = [0] * len(mf)
    def put(self, g, txt, cost=1):
        (self.val if txt.startswith("v_") else self.pre)[g].append(txt)
        self.used[g] += cost
    def place(self, txt, lo, hi=None, cost=1, cap=2):
        hi = len(self.mf) - 1 if hi is None else hi
        for g in range(lo, hi + 1):
            if self.used[g] + cost <= cap:
                self.put(g, txt, cost); return g
        g = min(range(lo, hi + 1), key=lambda x: self.used[x])
        self.put(g, txt, cost)
        return g
    def lines(self):
        out = []
        for m, p, v in zip(self.mf, self.pre, self.val):
            out.append(m); out += p; out += v
        return out

def auto_lgkm(lines, pend=None, age=16):
    out = []
    pend = [] if pend is None else pend
    pos = pend[-1][1] + 1000 if pend else 0
    for l in lines:
        if l.endswith(":") or l.startswith("."):
            out.append(l); continue
        x = chk.I(l)
        if x.kind == "wait" and x.lg is not None:
            pend = pend[len(pend) - x.lg:] if 0 < x.lg < len(pend) else ([] if x.lg == 0 else pend)
        touched = set(x.r + x.w)
        mm = re.search(r'need:(\S+)', l)
        if mm: touched |= set(chk.regs_of(mm.group(1)))
        need = -1
        for i, (rs, _) in enumerate(pend):
            if touched & rs: need = i
        if need >= 0:
            for i, (rs, p) in enumerate(pend):
                if pos - p >= age: need = max(need, i)
            n = len(pend) - 1 - need
            n = min(n, 15)
            out.append(f"s_waitcnt lgkmcnt({n})")
            pend = pend[len(pend) - n:] if n > 0 else []
        out.append(l)
        if x.kind in ("dsr", "dsw"):
            pend.append((set(x.w), pos))
        pos += 1
    return out, pend

def resolve_vm(lines):
    out = []; ops = []; done = -1
    for l in lines:
        if l.startswith("WAITVM"):
            tag = l.split()[1]
            idx = max(i for i, t in enumerate(ops) if t == tag)
            tot = sum(1 for u in lines if u.startswith(("buffer_", "global_")) and ";" in u and u.split(";")[1].split()[0] == tag)
            assert tot == ops.count(tag), (tag, tot, ops.count(tag))
            if idx <= done: continue
            n = len(ops) - 1 - idx
            assert n <= 63
            done = idx
            out.append(f"s_waitcnt vmcnt({n})")
            continue
        mw = re.match(r"s_waitcnt vmcnt\((\d+)\)", l)
        if mw: done = max(done, len(ops) - 1 - int(mw.group(1)))
        if l.startswith(("buffer_", "global_")):
            if len(ops) - 1 - done >= 63:
                out.append("s_waitcnt vmcnt(54)"); done = len(ops) - 1 - 54
            ops.append(l.split(";")[1].split()[0] if ";" in l else None)
        out.append(l)
    return out

def koff_set(tile):
    return [f"s_mov_b32 s{sKOFF}, {tile * 16384}", f"s_add_u32 s{sKOFF}, s{sROT}, {tile * 16384}", f"s_and_b32 s{sKOFF}, s{sKOFF}, 0x3ffff"]
def koff_next():
    return [f"s_add_u32 s{sKOFF}, s{sKOFF}, 16384"]
def kv_dma(tile_slot, soff, tag, which="KV"):
    r = []
    if "K" in which:
        r.append(f"s_add_u32 m0, s{sW4K}, {KR + tile_slot * 16384}")
        for n in range(4):
            r.append(f"buffer_load_dwordx4 v{vKD+n}, {srd(SK)}, {soff} offen offset:{n*1024} nt lds ;{tag}")
    if "V" in which:
        r.append(f"s_add_u32 m0, s{sW4K}, {VR + tile_slot * 16384}")
        for n in range(4):
            r.append(f"buffer_load_dwordx4 v{vVD+(n&1)}, {srd(SV)}, {soff} offen offset:{n*1024} nt lds ;{tag}")
    return r

def gen_prologue():
    p = Asm()
    p("s_cmp_ge_u32 s2, 256\ns_cbranch_scc1 K1_END")
    p("s_load_dwordx16 s[64:79], s[0:1], 0\ns_load_dwordx8 s[80:87], s[0:1], 64\ns_load_dwordx2 s[88:89], s[0:1], 96")
    p(f"v_lshrrev_b32 v29, 6, v0\nv_and_b32 v0, 63, v0\ns_nop 0\nv_readfirstlane_b32 s{sW}, v29")
    p("s_and_b32 s4, s2, 7\ns_lshr_b32 s5, s2, 3")
    p(f"s_lshr_b32 s{sBR}, s4, 2")
    p(f"s_and_b32 s6, s4, 1\ns_lshl_b32 s6, s6, 2\ns_and_b32 s7, s5, 3\ns_add_u32 s{sB}, s6, s7")
    p(f"s_and_b32 s6, s4, 2\ns_lshl_b32 s6, s6, 2\ns_lshr_b32 s7, s5, 2\ns_add_u32 s{sHP}, s6, s7")
    p(f"s_lshl_b32 s{sW4K}, s{sW}, 12\ns_lshl_b32 s{sW8K}, s{sW}, 13")
    p(f"s_mov_b32 s{sC}, {C_SCALE}\ns_mov_b32 s{sC+1}, {C_SCALE}\ns_mov_b32 s{sTH}, {THRESH}")
    p("v_and_b32 v30, 15, v0\nv_lshrrev_b32 v31, 4, v0\nv_bfe_u32 v32, v0, 2, 2\nv_and_b32 v33, 3, v0")
    p(f"v_lshlrev_b32 v{vL16}, 4, v0")
    p("v_and_b32 v34, 1, v29\nv_lshl_add_u32 v34, v34, 2, v31\nv_lshlrev_b32 v34, 1, v34\nv_xor_b32 v34, v34, v30\nv_lshlrev_b32 v34, 4, v34")
    p(f"v_lshl_add_u32 v35, v29, 3, v31\nv_lshl_add_u32 v{vWQ}, v35, 13, v34")
    p("v_lshrrev_b32 v34, 3, v0\nv_lshl_add_u32 v35, v29, 6, v34\nv_mul_u32_u24 v35, 1152, v35")
    p(f"v_and_b32 v36, 7, v0\nv_xor_b32 v36, v36, v31\nv_lshlrev_b32 v36, 4, v36\nv_add_u32 v{vX}, v35, v36\nv_xor_b32 v36, 64, v36\nv_add_u32 v{vX2}, v35, v36")
    p(f"s_lshl_b32 s6, s5, 2\ns_add_u32 s6, s6, s{sW}")
    p(f"s_lshl_b32 s7, s6, 13\ns_and_b32 s53, s{sHP}, 8\ns_lshl_b32 s53, s53, 9\ns_add_u32 s7, s7, s53")
    p("v_and_b32 v37, 31, v0\nv_lshlrev_b32 v37, 7, v37\nv_add_u32 v37, s7, v37")
    p(f"s_and_b32 s53, s{sB}, 4\ns_lshl_b32 s53, s53, 8\ns_lshl_b32 s7, s6, 3\ns_add_u32 s7, s7, s53\ns_mul_i32 s7, s7, 1152")
    p("v_and_b32 v38, 7, v0\nv_mul_u32_u24 v38, 1152, v38\nv_bfe_u32 v36, v0, 3, 1\nv_lshl_add_u32 v38, v36, 7, v38\nv_add_u32 v38, s7, v38")
    p("s_waitcnt lgkmcnt(0)")
    p(f"s_cmp_eq_u32 s{sBR}, 0")
    for i in range(10): p(f"s_cselect_b32 s{64+i}, s{64+i}, s{74+i}")
    p(f"s_lshl_b32 s4, s{sHP}, 9")
    p(f"s_add_u32 s{SWQ}, s70, s4\ns_addc_u32 s{SWQ+1}, s71, 0\ns_sub_u32 s{SWQ+2}, {576*8192}, s4\ns_mov_b32 s{SWQ+3}, 0x20000")
    p(f"s_mul_i32 s4, s{sB}, 294912")
    p(f"s_add_u32 s{SX}, s64, s4\ns_addc_u32 s{SX+1}, s65, 0\ns_mov_b32 s{SX+2}, 294912\ns_mov_b32 s{SX+3}, 0x20000")
    p(f"s_mov_b32 s{SPW}, s70\ns_mov_b32 s{SPW+1}, s71\ns_mov_b32 s{SPW+2}, {576*8192}\ns_mov_b32 s{SPW+3}, 0x20000")
    p(f"s_mov_b32 s{SPX}, s64\ns_mov_b32 s{SPX+1}, s65\ns_mov_b32 s{SPX+2}, {8*294912}\ns_mov_b32 s{SPX+3}, 0x20000")
    return p

def gen_prologue2(O):
    p = Asm()
    p(f"s_lshr_b32 s4, s{sW}, 1\ns_lshl_b32 s4, s4, 16\ns_and_b32 s5, s{sW}, 1\ns_mul_i32 s5, s5, 9216\ns_add_u32 s{sWOB}, s4, s5")
    p(f"s_lshl_b32 s4, s{sB}, 4\ns_add_u32 s4, s4, s{sHP}")
    p("s_lshl_b32 s5, s4, 19")
    p(f"s_add_u32 s{SK}, s66, s5\ns_addc_u32 s{SK+1}, s67, 0\ns_mov_b32 s{SK+2}, 0x80000\ns_mov_b32 s{SK+3}, 0x20000")
    p(f"s_add_u32 s{SV}, s68, s5\ns_addc_u32 s{SV+1}, s69, 0\ns_mov_b32 s{SV+2}, 0x80000\ns_mov_b32 s{SV+3}, 0x20000")
    p("s_mul_i32 s5, s4, 36864")
    p(f"s_add_u32 s{SWO}, s72, s5\ns_addc_u32 s{SWO+1}, s73, 0\ns_mov_b32 s{SWO+2}, 36864\ns_mov_b32 s{SWO+3}, 0x20000")
    p("s_and_b32 s6, s4, 4\ns_lshl_b32 s6, s6, 4\ns_lshr_b32 s7, s4, 3\ns_lshl_b32 s7, s7, 2\ns_add_u32 s6, s6, s7\ns_and_b32 s7, s4, 3\ns_add_u32 s6, s6, s7")
    p(f"s_lshl_b32 s5, s{sBR}, 2\ns_add_u32 s5, s5, s{sW}\ns_lshl_b32 s5, s5, 7\ns_add_u32 s5, s5, s6\ns_mul_i32 s5, s5, 9216\ns_add_u32 s5, s5, {WOT_OFF}")
    p(f"s_add_u32 s{SWT}, s88, s5\ns_addc_u32 s{SWT+1}, s89, 0\ns_mov_b32 s{SWT+2}, 9216\ns_mov_b32 s{SWT+3}, 0x20000")
    p(f"s_lshl_b32 s5, s{sBR}, 5\ns_lshl_b32 s6, s{sB}, 2\ns_add_u32 s5, s5, s6\ns_add_u32 s5, s5, s{sW}\ns_lshl_b32 s5, s5, 7")
    p(f"s_lshl_b32 s6, s{sHP}, 2\ns_add_u32 s5, s5, s6\ns_lshl_b32 s5, s5, 12")
    p(f"s_add_u32 s{SOW}, s88, s5\ns_addc_u32 s{SOW+1}, s89, 0\ns_mov_b32 s{SOW+2}, {64*4096 + 16384}\ns_mov_b32 s{SOW+3}, 0x20000")
    p(f"v_mul_u32_u24 v34, 9216, v29\nv_add_u32 v{vWOD}, v34, v{vL16}")
    return p

def gen_prologue3():
    p = Asm()
    p("v_lshlrev_b32 v35, 12, v31\nv_lshl_add_u32 v35, v32, 8, v35\nv_lshl_add_u32 v35, v33, 3, v35")
    p("v_and_b32 v34, 1, v31\nv_lshl_add_u32 v36, v34, 2, v32\nv_lshl_add_u32 v35, v36, 5, v35")
    for d3 in range(8):
        p(f"v_xor_b32 v36, {d3*32}, v35\nv_add_u32 v{vWA+d3}, 32768, v36\nv_add_u32 v{vWA+8+d3}, 98304, v36")
    p(f"v_lshrrev_b32 v34, 1, v30\nv_xor_b32 v34, v34, v31\nv_lshlrev_b32 v34, 4, v34\nv_lshl_add_u32 v34, v30, 7, v34\nv_lshl_add_u32 v34, v29, 13, v34")
    p(f"v_add_u32 v{vXR}, {SP}, v34\nv_xor_b32 v{vXR+1}, 64, v{vXR}")
    p("v_lshl_add_u32 v34, v29, 4, v31\nv_lshlrev_b32 v34, 8, v34")
    p(f"v_xor_b32 v35, v30, v31\nv_lshl_add_u32 v{vKD}, v35, 4, v34")
    for n in range(1, 4): p(f"v_xor_b32 v{vKD+n}, {n<<6}, v{vKD}")
    p(f"v_lshlrev_b32 v35, 1, v31\nv_xor_b32 v35, v30, v35\nv_lshl_add_u32 v{vVD}, v35, 4, v34\nv_xor_b32 v{vVD+1}, 0x80, v{vVD}")
    p("v_lshl_add_u32 v34, v31, 2, v32\nv_mul_u32_u24 v34, 1152, v34\nv_mul_u32_u24 v35, 288, v29\nv_add_u32 v34, v34, v35")
    p(f"v_lshl_add_u32 v{vWOR}, v33, 3, v34\nv_add_u32 v{vWOR+1}, 0x10000, v{vWOR}")
    return p

WAREA = [49152, 114688, 32768, 98304]
def slab_dma(H):
    ss, hh = H >> 1, H & 1
    r = [f"s_add_u32 m0, s{sW4K}, {WAREA[H % 4]}"]
    for i in range(4):
        kc, h = i >> 1, i & 1
        r.append(f"s_mov_b32 s{sT}, {(ss * 64 + 32 * kc + 4 * h) * 8192 + hh * 256 - i * 1024}")
        r.append(f"buffer_load_dwordx4 v{vWQ}, {srd(SWQ)}, s{sT} offen offset:{i*1024} lds ;W{H}")
    return r

def pf(pr):
    return [f"s_mov_b32 s{sT}, {pr * 128 * 8192}",
            f"buffer_load_dword v41, v37, {srd(SPW)}, s{sT} offen ;PF",
            f"buffer_load_dword v41, v38, {srd(SPX)}, 0 offen offset:{pr * 256} ;PF"]

xf = lambda ss, qb, kc: R("a", 32 * (ss % 2) + 8 * qb + 4 * kc)
def x_dma(ss, qb):
    r = [f"s_add_u32 m0, s{sW8K}, {SP + qb * 2048}"]
    need = f" need:a[{32*((ss-1)%2)+8*qb}:{32*((ss-1)%2)+8*qb+7}]" if ss > 0 else ""
    for e in range(2):
        r.append(f"s_mov_b32 s{sT}, {(2 * qb + e) * 9216 + ss * 128 - e * 1024}")
        r.append(f"buffer_load_dwordx4 v{vX2 if e else vX}, {srd(SX)}, s{sT} offen offset:{e*1024} lds ;X{ss}_{qb}{need}")
    return r
def x_rd(ss, qb):
    return [f"ds_read_b128 {xf(ss, qb, kc)}, v{vXR+kc} offset:{qb*2048}" for kc in range(2)]

def wo_dma():
    r = []
    r.append(f"s_lshr_b32 s4, s{sW}, 1\ns_lshl_b32 s4, s4, 16\ns_and_b32 s5, s{sW}, 1\ns_mul_i32 s5, s5, 9216\ns_add_u32 s4, s4, s5")
    for i in range(9):
        if i % 4 == 0:
            r.append(f"s_add_u32 m0, s4, {(i >> 2) * 4096}")
            r.append(f"s_mov_b32 s{sT}, {(i >> 2) * 4096}")
        r.append(f"buffer_load_dwordx4 v{vWOD}, {srd(SWO)}, s{sT} offen offset:{(i&3)*1024} nt lds ;WO")
    return r

def qacc(dt, qb):
    return R("v", 128 + 16 * dt + 4 * qb) if dt < 8 else R("a", 128 + 16 * (dt - 8) + 4 * qb)

def gen_qproj(O):
    D = 3
    NR = 6
    wfr = lambda G, kc: 80 + 8 * (G % NR) + 4 * kc
    def rd(G):
        H, d3 = G // 8, G % 8
        ar = WAREA[H % 4]
        base = vWA + (0 if ar < 65536 else 8) + d3
        extra = ar - (32768 if ar < 65536 else 98304)
        return [f"ds_read_b64_tr_b16 v[{wfr(G,kc)+2*h}:{wfr(G,kc)+2*h+1}], v{base} offset:{extra + 2048*kc + 1024*h}" for kc in range(2) for h in range(2)]
    mf = []
    for G in range(144):
        ss, dt = G // 16, G % 16
        for qb in range(4):
            for kc in range(2):
                c = "0" if (ss == 0 and kc == 0) else qacc(dt, qb)
                mf.append(mf16(qacc(dt, qb), R("v", wfr(G, kc)), xf(ss, qb, kc), c))
    g = Gaps(mf)
    head = ["WAITVM W0", "s_barrier"]
    for G in range(D): head += rd(G)
    for qb in range(4): head += x_rd(0, qb)
    BAR = 8 * (7 - D) + 7
    for G in range(144):
        H, d3 = G // 8, G % 8
        g0 = 8 * G
        if G + D < 144:
            for i, t in enumerate(rd(G + D)): g.put(g0 + i, t)
        if d3 == 7 - D:
            if H < 17: g.put(g0 + 6, f"WAITVM W{H+1}")
            g.put(g0 + 7, "s_waitcnt lgkmcnt(0)"); g.put(g0 + 7, "s_barrier")
    ev = []
    for qb in range(4): ev.append((2 + 6 * qb, x_dma(1, qb), 1))
    for H in range(4, 18):
        sd = slab_dma(H)
        for i in range(4): ev.append((64 * (H - 4) + BAR + 1 + O["st"] * i, [sd[0]] + sd[1 + 2 * i: 3 + 2 * i], 1))
    XP = O["xp"]
    for ss in range(1, 9):
        for qb in range(4):
            gg = 128 * (ss - 1) + XP + O["xs"] * qb
            g.place(f"WAITVM X{ss}_{qb}", gg - 1)
            gg = max(gg, max(i for i in range(len(g.pre)) if f"WAITVM X{ss}_{qb}" in g.pre[i]))
            for t in x_rd(ss, qb): gg = g.place(t, gg)
            if ss < 8: ev.append((gg + O['xd'], x_dma(ss + 1, qb), 1))
    win = lambda H: 64 * H + BAR + 1
    def thin(groups, g_lo, g_hi):
        n = len(groups)
        for i, gr in enumerate(groups):
            ev.append((g_lo + (g_hi - g_lo) * i // n, gr, 1))
    wog = []
    for i in range(9):
        wog.append([f"s_add_u32 m0, s{sWOB}, {i * 1024}", f"s_mov_b32 s{sT}, {i * 1024}",
                    f"buffer_load_dwordx4 v{vWOD}, {srd(SWO)}, s{sT} offen nt lds ;WO"])
    thin(wog, O["wo0"], O["wo1"])
    for k_, pr in (("pf2", 2), ("pf3", 3), ("pf4", 4)):
        if O[k_] is not None: ev.append((win(O[k_]) - 1, pf(pr), 1))
    def kv_groups(slot, tile, which):
        r = []
        for ten, base, vo, sr in (("K", KR, lambda n: vKD + n, SK), ("V", VR, lambda n: vVD + (n & 1), SV)):
            if ten not in which: continue
            for n in range(4):
                r.append([f"s_add_u32 m0, s{sW4K}, {base + slot * 16384}", f"s_mov_b32 s{sT}, {tile * 16384}",
                          f"buffer_load_dwordx4 v{vo(n)}, {srd(sr)}, s{sT} offen offset:{n*1024} nt lds ;T{tile}"])
        return r
    wr = O["wr"]
    thin(kv_groups(0, 0, "KV") + kv_groups(1, 1, "KV"), win(wr + 1), win(O["t1e"]))
    thin(kv_groups(2, 2, "K"), win(14), win(14) + 40)
    thin(kv_groups(2, 2, "V"), win(15), win(15) + 40)
    thin(kv_groups(3, 3, "K"), win(16), win(16) + 40)
    ev.append((win(17), kv_dma(3, f"s{sKOFF}", "T3", "V") + [f"s_mov_b32 s{sKOFF}, 65536"], 1))
    ev.append((win(16) + 50, [f"s_mov_b32 s{sKOFF}, 49152"], 1))
    g.pre[64 * wr + BAR - 1].insert(0, "WAITVM WO")
    g.pre[64 * 17 + BAR - 1].insert(0, "WAITVM T0")
    gg = win(wr)
    for nt in range(9):
        for h in range(2):
            gg = g.place(f"ds_read_b64_tr_b16 v[{44+4*nt+2*h}:{45+4*nt+2*h}], v{vWOR+h} offset:{32*nt}", gg)
    assert gg < win(wr + 1) - 3
    sts = []
    for nt in range(9):
        sts.append([f"s_mov_b32 s{sT}, {(nt>>2)*4096}",
                    f"buffer_store_dwordx4 {R('v', 44+4*nt)}, v{vL16}, {srd(SWT)}, s{sT} offen offset:{(nt&3)*1024} sc1 ;WT"])
    thin(sts, max(gg + 10, O["wt0"]), O["wt1"])
    ev.sort(key=lambda x: x[0])
    cur = 0
    for lo, items, stride in ev:
        gg = max(cur, lo + (1 if (lo + 1) % 64 == BAR + 1 else 0))
        for u in items:
            gg = g.place(u, gg)
            if u.startswith("s_add_u32 m0"): gg += 1
            if u.startswith("buffer"): gg += stride
        cur = gg
    if O.get("ssst"):
        for ss in range(9):
            g.pre[128 * ss + 127] += stamp(16 + ss)[:3]
            g.val[128 * ss + 127] += stamp(16 + ss)[3:]
    if O.get("nox"):
        for gg in range(len(g.pre)): g.pre[gg] = [t for t in g.pre[gg] if ";X" not in t and not t.startswith("WAITVM X")]
    if O.get("now"):
        for gg in range(len(g.pre)): g.pre[gg] = [t for t in g.pre[gg] if not re.search(r";W\d", t) and not re.match(r"WAITVM W\d", t)]
    if O.get("nopf"):
        for gg in range(len(g.pre)): g.pre[gg] = [t for t in g.pre[gg] if not re.search(r";PF", t)]
    if O.get("noslow"):
        for gg in range(len(g.pre)): g.pre[gg] = [t for t in g.pre[gg] if not re.search(r";(WO|WT|T\d|PF)", t) and not t.startswith(("WAITVM WO", "WAITVM T"))]
    return head + g.lines()

def gen_qconv():
    p = Asm()
    p("s_nop 7")
    p("v_and_b32 v34, 1, v31\nv_lshrrev_b32 v35, 1, v31\nv_lshl_add_u32 v34, v34, 1, v35")
    p(f"v_xor_b32 v34, v34, v30\nv_lshlrev_b32 v34, 4, v34\nv_lshl_add_u32 v{vKA}, v30, 8, v34")
    for ks in range(1, 4): p(f"v_xor_b32 v{vKA+ks}, {ks<<6}, v{vKA}")
    p("v_lshl_add_u32 v34, v31, 2, v32\nv_and_b32 v35, 7, v34\nv_lshlrev_b32 v35, 5, v35\nv_lshl_add_u32 v35, v33, 3, v35")
    p(f"v_lshl_add_u32 v34, v34, 8, v35\nv_add_u32 v{vVA}, {VR}, v34")
    for dt in range(1, 8): p(f"v_xor_b32 v{vVA+dt}, {dt<<5}, v{vVA}")
    for i in range(4): p(f"v_mov_b32 v{ONES+i}, 0x3f803f80")
    def conv(src, dst):
        for i in range(0, 128, 2):
            p(f"v_pk_mul_f32 v[{src+i}:{src+i+1}], v[{src+i}:{src+i+1}], s[{sC}:{sC+1}]")
        for qb in range(4):
            for ks in range(4):
                t = 96 + 4 * ks + 16 * (qb & 1)
                T0 = src + 16 * (2 * ks) + 4 * qb; T1 = T0 + 16
                p(f"v_cvt_pk_bf16_f32 v{t}, v{T0}, v{T0+1}\nv_cvt_pk_bf16_f32 v{t+1}, v{T0+2}, v{T0+3}")
                p(f"v_cvt_pk_bf16_f32 v{t+2}, v{T1}, v{T1+1}\nv_cvt_pk_bf16_f32 v{t+3}, v{T1+2}, v{T1+3}")
            p("s_nop 0")
            for ks in range(4):
                t = 96 + 4 * ks + 16 * (qb & 1)
                p(f"v_permlane16_swap_b32 v{t}, v{t+2}\nv_permlane16_swap_b32 v{t+1}, v{t+3}")
            for i in range(16):
                p(f"v_accvgpr_write_b32 a{dst + 16*qb + i}, v{96 + 16*(qb&1) + i}")
    conv(128, Q_)
    for i in range(128): p(f"v_accvgpr_read_b32 v{128+i}, a{128+i}")
    conv(128, Q2_)
    return p

kf = lambda kt, ks: R("a", KF + 16 * kt + 4 * ks)
vf = lambda dt, kk: R("a", VF + 8 * dt + 4 * kk)
qf = lambda qb, ks: R("a", Q_ + 16 * qb + 4 * ks)
def k_reads(slot):
    return [(kt, f"ds_read_b128 {kf(kt, ks)}, v{vKA+ks} offset:{KR + slot*16384 + kt*4096}") for kt in range(4) for ks in range(4)]
def v_reads(slot):
    return [(dt, f"ds_read_b64_tr_b16 a[{VF+8*dt+4*kk+2*h}:{VF+8*dt+4*kk+2*h+1}], v{vVA+dt} offset:{slot*16384 + kk*8192 + h*4096}") for dt in range(8) for kk in range(2) for h in range(2)]
def mf_qk(qb):
    r = []
    for kt in range(4):
        s = R("v", S_ + 16 * (qb & 1) + 4 * kt)
        for ks in range(4):
            r.append(mf16(s, kf(kt, ks), qf(qb, ks), R("v", NEGM + 4 * qb) if ks == 0 else s))
    return r
def mf_pv(qb):
    r = []
    for dt in range(8):
        o = R("v", O_ + 32 * qb + 4 * dt)
        for kk in range(2):
            r.append(mf16(o, vf(dt, kk), R("v", P_ + 8 * (qb & 1) + 4 * kk), o))
    l = R("v", L_ + 4 * qb)
    for kk in range(2):
        r.append(mf16(l, R("v", ONES), R("v", P_ + 8 * (qb & 1) + 4 * kk), l))
    return r
def put_sm(g, g0, n, qb):
    s = S_ + 16 * (qb & 1); pp = P_ + 8 * (qb & 1)
    if n >= 33:
        for i in range(16): g.put(g0 + 2 * i + 1, f"v_exp_f32 v{s+i}, v{s+i}", 2)
        for j in range(8): g.put(g0 + 4 * j + 4, f"v_cvt_pk_bf16_f32 v{pp+j}, v{s+2*j}, v{s+2*j+1}")
    else:
        for i in range(16): g.put(g0 + min(i, n - 1), f"v_exp_f32 v{s+i}, v{s+i}", 2)
        for j in range(8): g.put(g0 + min(2 * j + 2, n - 1), ("s_nop 0\n" if 2 * j + 2 > n - 1 else "") + f"v_cvt_pk_bf16_f32 v{pp+j}, v{s+2*j}, v{s+2*j+1}") if False else None
        for j in range(8):
            gg = min(2 * j + 2, n - 1)
            if 2 * j + 2 > n - 1: g.val[g0 + gg].append("s_nop 0")
            g.put(g0 + gg, f"v_cvt_pk_bf16_f32 v{pp+j}, v{s+2*j}, v{s+2*j+1}")

def gen_body(ph, vm=None, wait=16):
    mf = mf_qk(3) + mf_pv(1) + mf_pv(2) + mf_qk(0) + mf_pv(3) + mf_qk(1) + mf_qk(2) + mf_pv(0)
    g = Gaps(mf)
    for i, qb in enumerate([2, 3, 0, 1]): put_sm(g, 34 * i, 34, qb)
    nslot = (ph + 1) % 4
    gg = 0
    for kt, t in k_reads(nslot):
        gg = g.place(t, max(gg, 4 * kt + 3), cap=2) + 1
    gg = 0
    dm = kv_dma(ph, f"s{sKOFF}", "T") + koff_next() if vm is None else vm
    gg = 36
    for t in dm:
        gg = g.place(t, gg) + 1
    gg = 0
    for dt, t in v_reads(nslot):
        gg = g.place(t, max(gg, 68 + 2 * dt + 1))
    assert gg < 102 + 12, gg
    return [f"s_waitcnt vmcnt({wait})", "s_barrier"] + g.lines()

def gen_head_pro():
    p = []
    for _, t in k_reads(0): p.append(t)
    for i in range(4): p.append(f"v_mov_b32 v{P_+i}, 0")
    p.append("s_nop 1")
    z = R("v", P_)
    vr = [t for _, t in v_reads(0)]
    for i in range(8):
        p.append(f"v_mfma_f32_32x32x16_bf16 v[{O_+16*i}:{O_+16*i+15}], {z}, {z}, 0")
        p += vr[4 * i: 4 * i + 4]
    p.append(f"v_mfma_f32_32x32x16_bf16 v[{L_}:{L_+15}], {z}, {z}, 0")
    for qb in range(4):
        s = R("v", S_ + 4 * qb)
        for ks in range(4): p.append(mf16(s, kf(0, ks), qf(qb, ks), "0" if ks == 0 else s))
    p.append("s_nop 7")
    m = lambda qb: vTMP + 5 + qb
    t = lambda qb: vTMP + 9 + qb
    for qb in range(4):
        s = S_ + 4 * qb
        p.append(f"v_max3_f32 v{m(qb)}, v{s}, v{s+1}, v{s+2}")
    for qb in range(4): p.append(f"v_max_f32 v{m(qb)}, v{m(qb)}, v{S_+4*qb+3}")
    for op in ("v_permlane16_swap_b32", "v_permlane32_swap_b32"):
        for qb in range(4): p.append(f"v_mov_b32 v{t(qb)}, v{m(qb)}")
        p.append("s_nop 0")
        for qb in range(4): p.append(f"{op} v{m(qb)}, v{t(qb)}")
        for qb in range(4): p.append(f"v_max_f32 v{m(qb)}, v{m(qb)}, v{t(qb)}")
    for qb in range(4):
        for i in range(4): p.append(f"v_sub_f32 v{NEGM+4*qb+i}, 0, v{m(qb)}")
    p.append("s_nop 1")
    mf = mf_qk(0) + mf_qk(1) + mf_qk(2) + mf_pv(0)
    g = Gaps(mf)
    put_sm(g, 16, 16, 0)
    put_sm(g, 32, 34, 1)
    return p + g.lines()


SO2, SW2, SOUT, SDBG, SFL = 16, 20, 24, 56, 60
FLAG_OFF = 0x2900000
SOJ, SWN = 74, 64
sQT, sNG = 90, 91
vO2, vW2, vFL, vAO, vAD = 22, 23, 24, 25, 26
ACC = 112
acc = lambda j, nt: R("v", ACC + 4 * (j * 9 + nt))
WB = [64, 168]; OB = [136, 0]
wf = lambda buf, nt, k: R("a", WB[buf] + 8 * nt + 4 * k)
of = lambda buf, j, k: R("a", OB[buf] + 8 * j + 4 * k)
ldw = lambda s_, nt, k: f"buffer_load_dwordx4 {wf(s_ & 1, nt, k)}, v{vW2}, {srd(SW2)}, s{SWN+(k*9+nt)//4} offen offset:{1024 * ((k*9+nt)%4)} sc1 ;PW{s_}"
ldo = lambda s_, j, k: f"buffer_load_dwordx4 {of(s_ & 1, j, k)}, v{vO2}, {srd(SO2)}, s{SOJ+4*k+j} offen sc1 ;PO{s_}"
advw = f"v_add_u32 v{vW2}, 73728, v{vW2}"
advo = f"v_add_u32 v{vO2}, 0x8000, v{vO2}"
def poll(tag, which):
    if which == "W": return f"buffer_load_dword v{vFL}, v{vAD+1}, {srd(SDBG)}, s83 offen sc1 ;{tag}"
    return f"buffer_load_dword v{vFL}, v{vAD+1}, {srd(SFL)}, s82 offen sc1 ;{tag}"
def signal(val, which="O"):
    return [f"v_mov_b32 v{vAD}, {val}", "s_nop 0", f"buffer_atomic_add v{vAD}, v{vAO}, {srd(SDBG if which == 'W' else SFL)}, 0 offen sc1 ;SG"]

def gen_op_setup():
    p = Asm()
    p("s_and_b32 s4, s2, 7\ns_lshr_b32 s5, s2, 3")
    p("s_and_b32 s6, s4, 1\ns_lshl_b32 s6, s6, 4\ns_and_b32 s7, s4, 2\ns_lshl_b32 s7, s7, 2\ns_add_u32 s6, s6, s7\ns_lshr_b32 s7, s5, 2")
    p(f"s_add_u32 s{sQT}, s6, s7\ns_and_b32 s{sNG}, s5, 3")
    p(f"s_lshl_b32 s4, s{sBR}, 5\ns_add_u32 s4, s4, s{sQT}\ns_lshl_b32 s4, s4, 19")
    p(f"s_add_u32 s{SO2}, s88, s4\ns_addc_u32 s{SO2+1}, s89, 0\ns_mov_b32 s{SO2+2}, {4 << 17}\ns_mov_b32 s{SO2+3}, 0x20000")
    p(f"s_lshl_b32 s4, s{sBR}, 2\ns_add_u32 s4, s4, s{sNG}\ns_mul_i32 s4, s4, {9 << 17}\ns_add_u32 s4, s4, {WOT_OFF}")
    p(f"s_add_u32 s{SW2}, s88, s4\ns_addc_u32 s{SW2+1}, s89, 0\ns_mov_b32 s{SW2+2}, {9 << 17}\ns_mov_b32 s{SW2+3}, 0x20000")
    p(f"s_mov_b32 s{SOUT}, s84\ns_mov_b32 s{SOUT+1}, s85\ns_mov_b32 s{SOUT+2}, {8*256*1152*2}\ns_mov_b32 s{SOUT+3}, 0x20000")
    p(f"s_mov_b32 s{SDBG}, s86\ns_mov_b32 s{SDBG+1}, s87\ns_mov_b32 s{SDBG+2}, 256\ns_mov_b32 s{SDBG+3}, 0x20000")
    for j in range(4):
        p(f"s_add_u32 s{SOJ+j}, s{sW}, {j}\ns_and_b32 s{SOJ+j}, s{SOJ+j}, 3\ns_lshl_b32 s{SOJ+j}, s{SOJ+j}, 10\ns_add_u32 s{SOJ+4+j}, s{SOJ+j}, 4096")
    for n in range(5): p(f"s_mov_b32 s{SWN+n}, {n << 12}")
    p(f"v_add_u32 v{vO2}, s{sW8K}, v{vL16}\ns_mul_i32 s4, s{sW}, 18432\nv_add_u32 v{vW2}, s4, v{vL16}")
    p(f"v_mov_b32 v{vAD+1}, 0")
    p(f"s_add_u32 s{SFL}, s88, {FLAG_OFF}\ns_addc_u32 s{SFL+1}, s89, 0\ns_mov_b32 s{SFL+2}, 16384\ns_mov_b32 s{SFL+3}, 0x20000")
    p(f"s_lshl_b32 s4, s{sBR}, 5\ns_add_u32 s82, s4, s{sQT}\ns_lshl_b32 s82, s82, 8\ns_lshl_b32 s83, s{sBR}, 7")
    p(f"s_lshl_b32 s5, s{sB}, 2\ns_add_u32 s4, s4, s5\ns_add_u32 s4, s4, s{sW}\ns_lshl_b32 s69, s4, 8")
    p(f"s_lshl_b32 s5, s{sHP}, 14\ns_add_u32 s5, s5, s69\nv_lshlrev_b32 v{vAO}, 14, v0\nv_add_u32 v{vAD}, s5, v{vAO}")
    p(f"buffer_store_dword v{vAD+1}, v{vAD}, {srd(SFL)}, 0 offen sc1 ;ZF")
    p(f"s_lshl_b32 s4, s{sW}, 8\ns_add_u32 s4, s4, s83\nv_add_u32 v{vAO}, s4, v{vAO}")
    return p

def flag_check(name, shift, want):
    return [f"s_mov_b32 s55, 0x20000", f"{name}_RE:",
            f"v_readfirstlane_b32 s53, v{vFL}", "s_nop 0", f"s_bfe_u32 s53, s53, {shift | (8 << 16)}", f"s_cmp_ge_u32 s53, {want}",
            f"s_cbranch_scc0 {name}_SPIN", f"{name}_OK:"]
def flag_spin(name, which):
    return [f"{name}_SPIN:", "s_sub_u32 s55, s55, 1", f"s_cbranch_scc1 {name}_OK", "s_sleep 8", poll("FS", which), "s_waitcnt vmcnt(0)", f"s_branch {name}_RE"]

def gen_oproj():
    out = []
    for s_ in range(16):
        out.append(f"WAITVM PO{s_}")
        if s_ == 2: out += ["WAITVM OS"] + signal(0x100)
        if s_ == 6: out += ["WAITVM F3"] + flag_check("FC3", 8, 16) + ["s_barrier"]
        mf = []
        for nt in range(9):
            for j in range(4):
                for k in range(2):
                    mf.append(mf16(acc(j, nt), wf(s_ & 1, nt, k), of(s_ & 1, j, k), "0" if (s_ == 0 and k == 0) else acc(j, nt)))
        g = Gaps(mf)
        if s_ == 4: g.put(1, poll("F3", "O"))
        tl = []
        if s_ + 2 < 16:
            for nt in range(8):
                for k in range(2): g.put(8 * (nt + 1) + 3 * k, ldw(s_ + 2, nt, k))
            tl = [ldw(s_ + 2, 8, 0), ldw(s_ + 2, 8, 1)] + [ldo(s_ + 2, j, k) for j in range(4) for k in range(2)] + [advw, advo]
        out += g.lines() + tl
    return out

def gen_ored():
    e = Asm()
    for j in range(1, 4):
        e(f"s_add_u32 s4, s{sW}, {j}\ns_and_b32 s4, s4, 3\ns_mul_i32 s4, s4, {3*9*1024}\ns_add_u32 s4, s4, {(j-1)*9*1024}")
        e(f"v_add_u32 v{5+j}, s4, v{vL16}")
    e(f"s_mul_i32 s4, s{sW}, {3*9*1024}\nv_add_u32 v5, s4, v{vL16}")
    e("s_nop 4")
    for j in range(1, 4):
        for nt in range(9):
            e(f"ds_write_b128 v{5+j}, {acc(j, nt)} offset:{nt*1024}")
    e(f"s_add_u32 s4, s{sW8K}, {112*1024}")
    e(f"v_mul_u32_u24 v9, 304, v30\nv_lshl_add_u32 v9, v31, 3, v9\nv_add_u32 v9, s4, v9")
    for i in range(5):
        e(f"v_add_u32 v34, {64*i}, v0\nv_mul_u32_u24 v35, 3641, v34\nv_lshrrev_b32 v35, 16, v35\nv_mul_u32_u24 v36, 18, v35\nv_sub_u32 v36, v34, v36\nv_lshlrev_b32 v36, 4, v36")
        e(f"v_mul_u32_u24 v34, 304, v35\nv_add3_u32 v{10+i}, v34, v36, s4\nv_mul_u32_u24 v34, 2304, v35\nv_add_u32 v{15+i}, v34, v36")
    e("v_cmp_gt_u32 vcc, 32, v0\nv_mov_b32 v34, 0x7fff0000\ns_nop 0\nv_cndmask_b32 v19, v34, v19, vcc")
    e(f"s_lshl_b32 s4, s{sQT}, 6\ns_lshl_b32 s5, s{sW}, 4\ns_add_u32 s4, s4, s5\ns_mul_i32 s4, s4, 2304")
    e(f"s_mul_i32 s5, s{sBR}, 1152\ns_add_u32 s4, s4, s5\ns_mul_i32 s5, s{sNG}, 288\ns_add_u32 s4, s4, s5")
    e("s_waitcnt lgkmcnt(0)\ns_barrier")
    for nt in range(9):
        for j in range(1, 4):
            e(f"ds_read_b128 {acc(j, nt)}, v5 offset:{((j-1)*9+nt)*1024}")
    for nt in range(9):
        d = ACC + 4 * nt
        for j in range(1, 4):
            s_ = ACC + 4 * (j * 9 + nt)
            e(f"v_pk_add_f32 v[{d}:{d+1}], v[{d}:{d+1}], v[{s_}:{s_+1}]")
            e(f"v_pk_add_f32 v[{d+2}:{d+3}], v[{d+2}:{d+3}], v[{s_+2}:{s_+3}]")
        e(f"v_cvt_pk_bf16_f32 v{d}, v{d}, v{d+1}\nv_cvt_pk_bf16_f32 v{d+1}, v{d+2}, v{d+3}")
        e(f"ds_write_b64 v9, v[{d}:{d+1}] offset:{nt*32}")
    e("s_waitcnt lgkmcnt(0)")
    for i in range(5): e(f"ds_read_b128 {R('v', 48+4*i)}, v{10+i}")
    for i in range(5): e(f"buffer_store_dwordx4 {R('v', 48+4*i)}, v{15+i}, {srd(SOUT)}, s4 offen")
    return e.lines

def gen_tail(last=False):
    mf = mf_qk(3) + mf_pv(1) + mf_pv(2) + mf_pv(3)
    g = Gaps(mf)
    put_sm(g, 0, 34, 2)
    put_sm(g, 34, 18, 3)
    gg = 0
    g.val[51].append("s_nop 1")
    if last:
        g.put(0, poll("F2", "O"))
        gg = 2
        for nt in range(9):
            for k in range(2): gg = g.place(ldw(0, nt, k), max(gg, 16 if nt == 8 else 0), cap=3 if gg >= 34 else 2) + 1
        return g.lines() + [advw]
    for t in kv_dma(3, f"s{sKOFF}", "T") + koff_next():
        gg = g.place(t, gg) + 1
    return ["s_waitcnt vmcnt(16)", "s_barrier"] + g.lines()

def o_stores(src, base_reg, off, tag):
    r = []
    for qb in range(4):
        for m_ in range(4):
            r.append(f"s_mov_b32 s{sT}, {off + m_*4096}")
            r.append(f"buffer_store_dwordx4 {R(src, base_reg(qb, m_))}, v{vL16}, {srd(SOW)}, s{sT} offen offset:{qb*1024} sc1 ;{tag}")
    return r

def gen_epi(O, last):
    p = Asm()
    p("s_nop 7")
    rl = lambda qb: 34 + 2 * qb
    for qb in range(4): p(f"v_rcp_f32 v{rl(qb)}, v{L_+4*qb}")
    if not last:
        p.lines += signal(1, "W")
        p(f"v_lshlrev_b32 v{vAO}, 14, v0\nv_add_u32 v{vAO}, s69, v{vAO}")
        for i in range(64): p(f"v_accvgpr_mov_b32 a{Q_+i}, a{Q2_+i}")
    else:
        p.lines += ["WAITVM F2"] + flag_check("FC2", 0, 16) + ["s_barrier"]
        p.lines += [ldo(0, j, k) for j in range(4) for k in range(2)] + [advo]
    ld1 = [ldw(1, nt, k) for nt in range(9) for k in range(2)] + [ldo(1, j, k) for j in range(4) for k in range(2)]
    st = o_stores("v", lambda qb, m_: O_ + 32 * qb + 4 * m_, 64 * 4096, "OS")
    for qb in range(4):
        o = O_ + 32 * qb
        for i in range(0, 32, 2):
            p(f"v_pk_mul_f32 v[{o+i}:{o+i+1}], v[{o+i}:{o+i+1}], v[{rl(qb)}:{rl(qb)+1}] op_sel_hi:[1,0]")
            if last and i % 4 == 0 and ld1: p(ld1.pop(0))
        for j in range(16):
            p(f"v_cvt_pk_bf16_f32 v{o+j}, v{o+2*j}, v{o+2*j+1}")
        if not last:
            for j in range(16): p(f"v_accvgpr_write_b32 a{Q2_+16*qb+j}, v{o+j}")
    if last:
        assert not ld1
        p.lines += [advw, advo, "WAITVM PW0"] + st
    return p

def stamp(i):
    return [f"s_memtime s[96:97]", "s_memrealtime s[98:99]", "s_waitcnt lgkmcnt(0)", f"v_writelane_b32 v43, s96, {i}", f"v_writelane_b32 v43, s98, {32+i}"]

def gen_kf(stamps=False, **opt):
    st = (lambda i: stamp(i)) if stamps else (lambda i: [])
    O = dict(xd=6, cpf=1, st=8, xp=64, xs=14, wo0=30, wo1=230, wr=5, pf2=None, pf3=None, pf4=None, t1e=14, wt0=0, wt1=1100)
    O.update(opt)
    pro = gen_prologue().lines + pf(0)
    for qb in range(4): pro += x_dma(0, qb)
    pro += slab_dma(0) + slab_dma(1)
    if O["cpf"]:
        pro += ["s_getpc_b64 s[92:93]", "K1_PC:", "s_mov_b32 s94, K1_END-K1_PC", "s_mov_b32 s95, 0x20000",
                "s_lshr_b32 s4, s2, 3", "s_and_b32 s4, s4, 3", "s_lshl_b32 s4, s4, 15", f"s_add_u32 s4, s4, s{sW8K}", "v_lshlrev_b32 v36, 7, v0",
                "buffer_load_dword v41, v36, s[92:95], s4 offen ;PF"]
    pro += pf(1) + gen_prologue2(O).lines + gen_prologue3().lines + slab_dma(2) + slab_dma(3)
    if stamps:
        pro = pro[:2] + ["v_mov_b32 v43, 0"] + st(0) + pro[2:]
    qp = gen_qproj(O)
    front = resolve_vm(pro + qp[:2] + st(1) + qp[2:])
    tags = [l.split(";")[1].split()[0] for l in front if l.startswith("buffer_")]
    for t, need in (("T1", 16), ("T2", 8), ("T3", 0)):
        last = max(i for i, u in enumerate(tags) if u == t)
        assert len(tags) - 1 - last >= need, (t, len(tags) - 1 - last)
    front, pend = auto_lgkm(front)
    conv = st(2) + gen_qconv().lines + gen_op_setup().lines + st(3)
    hp, pend = auto_lgkm(gen_head_pro())
    bodies = []
    for ph in range(4):
        b, pe = auto_lgkm(gen_body(ph))
        assert not pe, pe
        bodies.append(b)
    tail, _ = auto_lgkm(gen_tail())
    epi0 = gen_epi(O, False).lines
    dst = o_stores("a", lambda qb, m_: Q2_ + 16 * qb + 4 * m_, 0, "O0")
    nd = O.get("nd", 20)
    b12 = gen_body(0, dst[:nd], 16)
    b13 = gen_body(1, dst[nd:] + [poll("F1", "W")], 8 + nd // 2)
    b14 = gen_body(2, [], 0)
    b14 = b14[:1] + flag_check("FC1", 0, 128) + b14[1:2] + signal(1) + b14[2:]
    back = b12 + b13 + b14 + st(6) + gen_tail(True) + gen_epi(O, True).lines + st(7) + gen_oproj() + st(8) + gen_ored() + st(9)
    back = resolve_vm(back)
    back, _ = auto_lgkm(back)
    a = Asm()
    a.lines += front + conv
    a.label("K1_HEAD")
    a.lines += hp
    a(f"s_mov_b32 s{sIT}, 0\ns_branch K1_B0")
    a(".p2align 6")
    a.label("K1_LOOP")
    a.lines += bodies[3]
    a(f"s_cmp_eq_u32 s{sKOFF}, 0x80000\ns_cbranch_scc1 K1_LAST")
    a.label("K1_B0")
    a.lines += bodies[0] + bodies[1] + bodies[2]
    a(f"s_add_u32 s{sIT}, s{sIT}, 1\ns_cmp_lt_u32 s{sIT}, 4\ns_cbranch_scc1 K1_LOOP")
    a.lines += st(4) + tail + epi0 + st(5)
    a("s_branch K1_HEAD")
    for n, w_ in (("FC1", "W"), ("FC2", "O"), ("FC3", "O")): a.lines += flag_spin(n, w_)
    a.label("K1_LAST")
    a.lines += back
    if stamps:
        a("s_waitcnt vmcnt(0)")
        a.lines += st(10)
        a(f"s_lshl_b32 s4, s2, 2\ns_add_u32 s4, s4, s{sW}\ns_lshl_b32 s4, s4, 8\ns_add_u32 s4, s4, 0x8000000")
        a("s_mov_b32 s8, s88\ns_mov_b32 s9, s89\ns_mov_b32 s10, 0x10000000\ns_mov_b32 s11, 0x20000\nv_lshlrev_b32 v41, 2, v0")
        a("buffer_store_dword v43, v41, s[8:11], s4 offen")
    a.label("K1_END")
    trace = front + conv + hp + bodies[0] + bodies[1] + bodies[2] + bodies[3] + bodies[0] + bodies[1] + bodies[2] + tail + epi0 + hp + bodies[0] + bodies[1] + bodies[2] + bodies[3] + back
    errs = chk.check(trace, maxerr=8)
    assert not errs or O.get('diag')
    return a.text()

if __name__ == "__main__":
    import sys
    for name, kw in eval(sys.argv[1] if len(sys.argv) > 1 else "[('kf', {})]"):
        kw.setdefault("stamps", True)
        body = gen_kf(**kw)
        open(name + ".s", "w").write(single_kernel_file(body, 256, 256, 160 * 1024, vgpr=512, accum=256))
```

```python
import sys
from g import *
import kf
HDR = open("concat_heads__mha_block_cached__mha_block_cached__near_ridge.s.ref").read().split("; Override launch")[0]
def build(fname, **kw):
    body = kf.gen_kf(stamps=False, **kw)
    open(fname, "w").write(HDR + single_kernel_file(body, 256, 256, 160 * 1024, vgpr=512, accum=256))
if __name__ == "__main__":
    if len(sys.argv) > 1:
        for name, kw in eval(sys.argv[1]): build(name, **kw)
    else:
        build("concat_heads__mha_block_cached__mha_block_cached__near_ridge.s")
```

```python
from g import *
import chk, re
from k2 import WOT_OFF, mf16, R

KR, VR, SP = 0, 65536, 131072
SL = [32768, 98304, 131072]
C_SCALE = 0x3e0293ee
THRESH = 0x53800000

sW = 3
SK, SV, SX, SWQ, SWO, SOW, SWT = 8, 12, 16, 20, 24, 28, 32
SPW, SPX = 56, 60
sWOB = 54
sBR, sB, sHP, sW4K, sW8K, sT, sC, sXO, sKOFF, sIT, sHD, sOO, sTH = 36, 37, 38, 39, 40, 41, 42, 44, 48, 49, 50, 51, 52
srd = lambda s: f"s[{s}:{s+3}]"
vX2, vXR = 42, 39
vX, vWQ, vL16, vKD, vVD, vWA, vKA, vVA, vTMP = 1, 2, 3, 4, 8, 48, 10, 14, 29
ONES, L_, NEGM, P_, S_, O_ = 44, 48, 64, 80, 96, 128
Q_, Q2_, KF, VF = 0, 64, 128, 192

VMLOOK = 6
class Gaps:
    def __init__(self, mf):
        self.mf = mf
        self.pre = [[] for _ in mf]
        self.val = [[] for _ in mf]
        self.used = [0] * len(mf)
    def put(self, g, txt, cost=1):
        (self.val if txt.startswith("v_") else self.pre)[g].append(txt)
        self.used[g] += cost
    def place(self, txt, lo, hi=None, cost=1, cap=2):
        hi = len(self.mf) - 1 if hi is None else hi
        vm = txt.startswith("buffer"); va = txt.startswith("v_")
        for look in ((VMLOOK, 1 << 30) if not va else (1 << 30,)):
            for g in range(lo, min(hi, lo + look) + 1):
                if self.used[g] + cost > cap: continue
                if look == VMLOOK:
                    if vm and self.pre[g]: continue
                    if not vm and any(u.startswith("buffer") for u in self.pre[g]): continue
                self.put(g, txt, cost); return g
        g = min(range(lo, hi + 1), key=lambda x: self.used[x])
        self.put(g, txt, cost)
        return g
    def lines(self):
        out = []
        for m, p, v in zip(self.mf, self.pre, self.val):
            out.append(m); out += p; out += v
        return out

def auto_lgkm(lines, pend=None, age=16):
    out = []
    pend = [] if pend is None else pend
    pos = pend[-1][1] + 1000 if pend else 0
    for l in lines:
        if l.endswith(":") or l.startswith("."):
            out.append(l); continue
        x = chk.I(l)
        if x.kind == "wait" and x.lg is not None:
            pend = pend[len(pend) - x.lg:] if 0 < x.lg < len(pend) else ([] if x.lg == 0 else pend)
        touched = set(x.r + x.w)
        mm = re.search(r'need:(\S+)', l)
        if mm: touched |= set(chk.regs_of(mm.group(1)))
        need = -1
        for i, (rs, _) in enumerate(pend):
            if touched & rs: need = i
        if need >= 0:
            for i, (rs, p) in enumerate(pend):
                if pos - p >= age: need = max(need, i)
            n = len(pend) - 1 - need
            n = min(n, 15)
            out.append(f"s_waitcnt lgkmcnt({n})")
            pend = pend[len(pend) - n:] if n > 0 else []
        out.append(l)
        if x.kind in ("dsr", "dsw"):
            pend.append((set(x.w), pos))
        pos += 1
    return out, pend

def resolve_vm(lines):
    out = []; ops = []; done = -1
    for l in lines:
        if l.startswith("WAITVM"):
            tag = l.split()[1]
            idx = max(i for i, t in enumerate(ops) if t == tag)
            tot = sum(1 for u in lines if u.startswith(("buffer_", "global_")) and ";" in u and u.split(";")[1].split()[0] == tag)
            assert tot == ops.count(tag), (tag, tot, ops.count(tag))
            if idx <= done: continue
            n = len(ops) - 1 - idx
            assert n <= 63
            done = idx
            out.append(f"s_waitcnt vmcnt({n})")
            continue
        mw = re.match(r"s_waitcnt vmcnt\((\d+)\)", l)
        if mw: done = max(done, len(ops) - 1 - int(mw.group(1)))
        if l.startswith(("buffer_", "global_")):
            if len(ops) - 1 - done >= 63:
                out.append("s_waitcnt vmcnt(54)"); done = len(ops) - 1 - 54
            ops.append(l.split(";")[1].split()[0] if ";" in l else None)
        out.append(l)
    return out

def koff_set(tile):
    return [f"s_mov_b32 s{sKOFF}, {tile * 16384}", f"s_add_u32 s{sKOFF}, s{sROT}, {tile * 16384}", f"s_and_b32 s{sKOFF}, s{sKOFF}, 0x3ffff"]
def koff_next():
    return [f"s_add_u32 s{sKOFF}, s{sKOFF}, 16384"]
def kv_dma(tile_slot, soff, tag, which="KV"):
    r = []
    if "K" in which:
        r.append(f"s_add_u32 m0, s{sW4K}, {KR + tile_slot * 16384}")
        for n in range(4):
            r.append(f"buffer_load_dwordx4 v{vKD+n}, {srd(SK)}, {soff} offen offset:{n*1024} nt lds ;{tag}")
    if "V" in which:
        r.append(f"s_add_u32 m0, s{sW4K}, {VR + tile_slot * 16384}")
        for n in range(4):
            r.append(f"buffer_load_dwordx4 v{vVD+(n&1)}, {srd(SV)}, {soff} offen offset:{n*1024} nt lds ;{tag}")
    return r

def gen_prologue():
    p = Asm()
    p("s_cmp_lt_u32 s2, 256\ns_cbranch_scc1 K1_GO\ns_endpgm\nK1_GO:")
    p("s_load_dwordx16 s[64:79], s[0:1], 0\ns_load_dwordx8 s[80:87], s[0:1], 64\ns_load_dwordx2 s[88:89], s[0:1], 96")
    p("s_getpc_b64 s[92:93]\nK1_PC:\ns_mov_b32 s94, K1_COLD-K1_PC\ns_mov_b32 s95, 0x20000\ns_lshr_b32 s90, s2, 3\ns_lshl_b32 s90, s90, 12")
    p("v_lshrrev_b32 v29, 6, v0\nv_and_b32 v41, 7, v0\nv_lshl_add_u32 v41, v29, 3, v41\nv_lshlrev_b32 v41, 7, v41")
    p("buffer_load_dword v22, v41, s[92:95], s90 offen ;PF")
    p(f"v_and_b32 v0, 63, v0\nv_readfirstlane_b32 s{sW}, v29")
    p("s_and_b32 s4, s2, 7\ns_lshr_b32 s5, s2, 3")
    p(f"s_lshr_b32 s{sBR}, s4, 2")
    p(f"s_and_b32 s6, s4, 1\ns_lshl_b32 s6, s6, 2\ns_and_b32 s7, s5, 3\ns_add_u32 s{sB}, s6, s7")
    p(f"s_and_b32 s6, s4, 2\ns_lshl_b32 s6, s6, 2\ns_lshr_b32 s7, s5, 2\ns_add_u32 s{sHP}, s6, s7")
    p(f"s_lshl_b32 s{sW4K}, s{sW}, 12\ns_lshl_b32 s{sW8K}, s{sW}, 13")
    p(f"s_mov_b32 s{sC}, {C_SCALE}\ns_mov_b32 s{sC+1}, {C_SCALE}\ns_mov_b32 s{sTH}, {THRESH}")
    p(f"s_lshr_b32 s6, s{sHP}, 2")
    for qb in range(4): p(f"s_xor_b32 s{sXO+qb}, s6, {qb}\ns_mul_i32 s{sXO+qb}, s{sXO+qb}, 18432")
    p("v_and_b32 v30, 15, v0\nv_lshrrev_b32 v31, 4, v0\nv_bfe_u32 v32, v0, 2, 2\nv_and_b32 v33, 3, v0")
    p(f"v_lshlrev_b32 v{vL16}, 4, v0")
    p("v_and_b32 v34, 1, v29\nv_lshl_add_u32 v34, v34, 2, v31\nv_lshlrev_b32 v34, 1, v34\nv_xor_b32 v34, v34, v30\nv_lshlrev_b32 v34, 4, v34")
    p(f"v_lshl_add_u32 v35, v29, 3, v31\nv_lshl_add_u32 v{vWQ}, v35, 13, v34")
    p("v_lshrrev_b32 v34, 3, v0\nv_lshl_add_u32 v35, v29, 6, v34\nv_mul_u32_u24 v35, 1152, v35")
    p(f"v_and_b32 v36, 7, v0\nv_xor_b32 v36, v36, v31\nv_lshlrev_b32 v36, 4, v36\nv_add_u32 v{vX}, v35, v36\nv_xor_b32 v36, 64, v36\nv_add_u32 v{vX2}, v35, v36")
    p(f"s_lshl_b32 s6, s5, 2\ns_add_u32 s6, s6, s{sW}")
    p(f"s_lshl_b32 s7, s6, 13\ns_and_b32 s53, s{sHP}, 8\ns_lshl_b32 s53, s53, 9\ns_add_u32 s7, s7, s53")
    p("v_and_b32 v37, 31, v0\nv_lshlrev_b32 v37, 7, v37\nv_add_u32 v37, s7, v37")
    p(f"s_and_b32 s53, s{sB}, 4\ns_lshl_b32 s53, s53, 8\ns_lshl_b32 s7, s6, 3\ns_add_u32 s7, s7, s53\ns_mul_i32 s7, s7, 1152")
    p("v_and_b32 v38, 7, v0\nv_mul_u32_u24 v38, 1152, v38\nv_bfe_u32 v36, v0, 3, 1\nv_lshl_add_u32 v38, v36, 7, v38\nv_add_u32 v38, s7, v38")
    p("s_waitcnt lgkmcnt(0)")
    p(f"s_cmp_eq_u32 s{sBR}, 0")
    for i in range(10): p(f"s_cselect_b32 s{64+i}, s{64+i}, s{74+i}")
    p(f"s_lshl_b32 s4, s{sHP}, 9")
    p(f"s_add_u32 s{SWQ}, s70, s4\ns_addc_u32 s{SWQ+1}, s71, 0\ns_sub_u32 s{SWQ+2}, {576*8192}, s4\ns_mov_b32 s{SWQ+3}, 0x20000")
    p(f"s_mul_i32 s4, s{sB}, 294912")
    p(f"s_add_u32 s{SX}, s64, s4\ns_addc_u32 s{SX+1}, s65, 0\ns_mov_b32 s{SX+2}, 294912\ns_mov_b32 s{SX+3}, 0x20000")
    p(f"s_mov_b32 s{SPW}, s70\ns_mov_b32 s{SPW+1}, s71\ns_mov_b32 s{SPW+2}, {576*8192}\ns_mov_b32 s{SPW+3}, 0x20000")
    p(f"s_mov_b32 s{SPX}, s64\ns_mov_b32 s{SPX+1}, s65\ns_mov_b32 s{SPX+2}, {8*294912}\ns_mov_b32 s{SPX+3}, 0x20000")
    return p

def gen_prologue2(O):
    p = Asm()
    p(f"s_lshl_b32 s4, s{sB}, 4\ns_add_u32 s4, s4, s{sHP}")
    p("s_lshl_b32 s5, s4, 19")
    p(f"s_add_u32 s{SK}, s66, s5\ns_addc_u32 s{SK+1}, s67, 0\ns_mov_b32 s{SK+2}, 0x80000\ns_mov_b32 s{SK+3}, 0x20000")
    p(f"s_add_u32 s{SV}, s68, s5\ns_addc_u32 s{SV+1}, s69, 0\ns_mov_b32 s{SV+2}, 0x80000\ns_mov_b32 s{SV+3}, 0x20000")
    p(f"s_lshr_b32 s5, s{sHP}, 3\ns_mul_i32 s5, s5, {2048*1152}\ns_add_u32 s{SWO}, s72, s5\ns_addc_u32 s{SWO+1}, s73, 0\ns_mov_b32 s{SWO+2}, {2048*1152}\ns_mov_b32 s{SWO+3}, 0x20000")
    p(f"s_lshr_b32 s5, s2, 3\ns_lshl_b32 s5, s5, 2\ns_add_u32 s5, s5, s{sW}\ns_and_b32 s6, s2, 1\ns_lshl_b32 s6, s6, 7\ns_add_u32 s5, s5, s6\ns_mul_i32 s5, s5, {72*128}")
    p("s_mov_b32 s54, s5")
    p(f"s_lshl_b32 s5, s{sBR}, 5\ns_lshl_b32 s6, s{sB}, 2\ns_add_u32 s5, s5, s6\ns_add_u32 s5, s5, s{sW}\ns_lshl_b32 s5, s5, 7")
    p(f"s_and_b32 s6, s{sHP}, 12\ns_lshl_b32 s6, s6, 3\ns_add_u32 s5, s5, s6\ns_lshl_b32 s5, s5, 12")
    p(f"s_add_u32 s{SOW}, s88, s5\ns_addc_u32 s{SOW+1}, s89, 0\ns_mov_b32 s{SOW+2}, {32*4096}\ns_mov_b32 s{SOW+3}, 0x20000")
    return p

def gen_prologue3():
    p = Asm()
    p("v_lshlrev_b32 v35, 12, v31\nv_lshl_add_u32 v35, v32, 8, v35\nv_lshl_add_u32 v35, v33, 3, v35")
    p("v_and_b32 v34, 1, v31\nv_lshl_add_u32 v36, v34, 2, v32\nv_lshl_add_u32 v35, v36, 5, v35")
    for d3 in range(8):
        p(f"v_xor_b32 v36, {d3*32}, v35\nv_add_u32 v{vWA+d3}, 32768, v36\nv_add_u32 v{vWA+8+d3}, 98304, v36")
    p(f"v_lshrrev_b32 v34, 1, v30\nv_xor_b32 v34, v34, v31\nv_lshlrev_b32 v34, 4, v34\nv_lshl_add_u32 v34, v30, 7, v34\nv_lshl_add_u32 v34, v29, 13, v34")
    p(f"v_add_u32 v{vXR}, {SP}, v34\nv_xor_b32 v{vXR+1}, 64, v{vXR}")
    p("v_lshl_add_u32 v34, v29, 4, v31\nv_lshlrev_b32 v34, 8, v34")
    p(f"v_xor_b32 v35, v30, v31\nv_lshl_add_u32 v{vKD}, v35, 4, v34")
    for n in range(1, 4): p(f"v_xor_b32 v{vKD+n}, {n<<6}, v{vKD}")
    p(f"v_lshlrev_b32 v35, 1, v31\nv_xor_b32 v35, v30, v35\nv_lshl_add_u32 v{vVD}, v35, 4, v34\nv_xor_b32 v{vVD+1}, 0x80, v{vVD}")
    return p

WAREA = [49152, 114688, 32768, 98304]
def slab_dma(H):
    ss, hh = H >> 1, H & 1
    r = [f"s_add_u32 m0, s{sW4K}, {WAREA[H % 4]}"]
    for i in range(4):
        kc, h = i >> 1, i & 1
        r.append(f"s_mov_b32 s{sT}, {(ss * 64 + 32 * kc + 4 * h) * 8192 + hh * 256 - i * 1024}")
        r.append(f"buffer_load_dwordx4 v{vWQ}, {srd(SWQ)}, s{sT} offen offset:{i*1024} {WAUX} lds ;W{H}")
    return r

def pf(pr):
    return [f"s_mov_b32 s{sT}, {pr * 128 * 8192}",
            f"buffer_load_dword v22, v37, {srd(SPW)}, s{sT} offen ;PF",
            f"buffer_load_dword v22, v38, {srd(SPX)}, 0 offen offset:{pr * 256} ;PF"]

xf = lambda ss, qb, kc: R("a", 64 + 32 * (ss % 2) + 8 * qb + 4 * kc)
def x_dma(ss, qb):
    r = [f"s_add_u32 m0, s{sW8K}, {SP + qb * 2048}"]
    need = f" need:a[{64+32*((ss-1)%2)+8*qb}:{64+32*((ss-1)%2)+8*qb+7}]" if ss > 0 else ""
    for e in range(2):
        r.append(f"s_add_u32 s{sT}, s{sXO+qb}, {e * 9216 + ss * 128 - e * 1024}")
        r.append(f"buffer_load_dwordx4 v{vX2 if e else vX}, {srd(SX)}, s{sT} offen offset:{e*1024} {XAUX} lds ;X{ss}_{qb}{need}")
    return r
def x_rd(ss, qb):
    return [f"ds_read_b128 {xf(ss, qb, kc)}, v{vXR+kc} offset:{qb*2048}" for kc in range(2)]

def wo_dma():
    r = []
    r.append(f"s_lshr_b32 s4, s{sW}, 1\ns_lshl_b32 s4, s4, 16\ns_and_b32 s5, s{sW}, 1\ns_mul_i32 s5, s5, 9216\ns_add_u32 s4, s4, s5")
    for i in range(9):
        if i % 4 == 0:
            r.append(f"s_add_u32 m0, s4, {(i >> 2) * 4096}")
            r.append(f"s_mov_b32 s{sT}, {(i >> 2) * 4096}")
        r.append(f"buffer_load_dwordx4 v{vWOD}, {srd(SWO)}, s{sT} offen offset:{(i&3)*1024} nt lds ;WO")
    return r

def early_item(it):
    k, n = it[0], int(it[1])
    if k == "W": return slab_dma(n)
    if k == "P": return pf(n)
    return sum((x_dma(n, qb) for qb in range(4)), [])

def qacc(dt, qb):
    return R("a", 128 + 16 * dt + 4 * qb) if dt < 8 else R("v", O_ + 32 * qb + 4 * (dt - 8))

def gen_qproj(O):
    D = 3
    NR = 6
    wfr = lambda G, kc: 80 + 8 * (G % NR) + 4 * kc
    def rd(G):
        H, d3 = G // 8, G % 8
        ar = WAREA[H % 4]
        base = vWA + (0 if ar < 65536 else 8) + d3
        extra = ar - (32768 if ar < 65536 else 98304)
        return [f"ds_read_b64_tr_b16 v[{wfr(G,kc)+2*h}:{wfr(G,kc)+2*h+1}], v{base} offset:{extra + 2048*kc + 1024*h}" for kc in range(2) for h in range(2)]
    mf = []
    for G in range(144):
        ss, dt = G // 16, G % 16
        for qb in range(4):
            for kc in range(2):
                c = "0" if (ss == 0 and kc == 0) else qacc(dt, qb)
                mf.append(mf16(qacc(dt, qb), R("v", wfr(G, kc)), xf(ss, qb, kc), c))
    g = Gaps(mf)
    head = ["WAITVM X0_3", "WAITVM W0", "s_barrier"]
    for G in range(D): head += rd(G)
    for qb in range(4): head += x_rd(0, qb)
    BAR = 8 * (7 - D) + 7
    for G in range(144):
        H, d3 = G // 8, G % 8
        g0 = 8 * G
        if G + D < 144:
            for i, t in enumerate(rd(G + D)): g.put(g0 + i, t)
        if d3 == 7 - D:
            if H < 17: g.put(g0 + 6, f"WAITVM W{H+1}")
            g.put(g0 + 7, "s_waitcnt lgkmcnt(0)"); g.put(g0 + 7, "s_barrier")
    ev = []
    for i, it in enumerate(O["ear"]): ev.append((i, early_item(it), 1))
    for pr, gp in O["gpf"].items(): ev.append((gp, pf(pr), 1))
    ev.append((O["gcpf"], ["buffer_load_dword v22, v41, s[92:95], s90 offen ;PF"], 1))
    for H in range(4, 18):
        sd = slab_dma(H)
        for i in range(4): ev.append((64 * (H - 4) + BAR + 1 + O["st"] * i, [sd[0]] + sd[1 + 2 * i: 3 + 2 * i], 1))
    XP = O["xp"]
    for ss in range(1, 9):
        for qb in range(4):
            gg = 128 * (ss - 1) + XP + O["xs"] * qb
            g.place(f"WAITVM X{ss}_{qb}", gg - 1)
            gg = max(gg, max(i for i in range(len(g.pre)) if f"WAITVM X{ss}_{qb}" in g.pre[i]))
            for t in x_rd(ss, qb): gg = g.place(t, gg)
            if ss < 8: ev.append((gg + O['xd'], x_dma(ss + 1, qb), 1))
    win = lambda H: 64 * H + BAR + 1
    def thin(groups, g_lo, g_hi):
        n = len(groups)
        for i, gr in enumerate(groups):
            ev.append((g_lo + (g_hi - g_lo) * i // n, gr, 1))
    def kv_groups(slot, tile, which):
        r = []
        for ten, base, vo, sr in (("K", KR, lambda n: vKD + n, SK), ("V", VR, lambda n: vVD + (n & 1), SV)):
            if ten not in which: continue
            for n in range(4):
                r.append([f"s_add_u32 m0, s{sW4K}, {base + slot * 16384}", f"s_mov_b32 s{sT}, {tile * 16384}",
                          f"buffer_load_dwordx4 v{vo(n)}, {srd(sr)}, s{sT} offen offset:{n*1024} nt lds ;T{tile}"])
        return r
    thin(kv_groups(0, 0, "KV"), *O["t0"]); thin(kv_groups(1, 1, "KV"), *O["t1"])
    t2 = max(O["t1"][1], win(14))
    thin(kv_groups(2, 2, "K"), t2, t2 + 30)
    t2 = max(t2 + 30, win(15))
    thin(kv_groups(2, 2, "V"), t2, t2 + 30)
    t2 = max(t2 + 30, win(16))
    thin(kv_groups(3, 3, "K"), t2, min(t2 + 30, win(17) - 4))
    ev.append((win(17), kv_dma(3, f"s{sKOFF}", "T3", "V"), 1))
    for gp, gr in zip(O["wpf"], wopf()):
        if gp < 1152: ev.append((gp, gr, 1))
    ev.append((O["gzf"], ZF(), 1))
    ev.append((win(16) + 50, [f"s_mov_b32 s{sKOFF}, 49152"], 1))
    g.pre[64 * 17 + BAR - 1].insert(0, "WAITVM T0")
    ev.sort(key=lambda x: x[0])
    cur = 0
    for lo, items, stride in ev:
        gg = max(cur, lo + (1 if (lo + 1) % 64 == BAR + 1 else 0))
        for u in items:
            gg = g.place(u, gg)
            if u.startswith("s_add_u32 m0"): gg += 1
            if u.startswith("buffer"): gg += stride
        cur = gg
    rest = []
    gg = 0
    for ks in range(4):
        gg = max(gg, 1024 + 16 * (ks + 1) + 5)
        for t in conv_h0(ks):
            while gg < len(mf) and g.used[gg] >= O["ccap"]: gg += 1
            if gg < len(mf): g.put(gg, t)
            else: rest.append(t)
    if O.get("ssst"):
        for ss in range(9):
            g.pre[128 * ss + 127] += stamp(22 + ss)[:3]
            g.val[128 * ss + 127] += stamp(22 + ss)[3:]
    if O.get("nox"):
        for gg in range(len(g.pre)): g.pre[gg] = [t for t in g.pre[gg] if ";X" not in t and not t.startswith("WAITVM X")]
    if O.get("now"):
        for gg in range(len(g.pre)): g.pre[gg] = [t for t in g.pre[gg] if not re.search(r";W\d", t) and not re.match(r"WAITVM W\d", t)]
    if O.get("nopf"):
        for gg in range(len(g.pre)): g.pre[gg] = [t for t in g.pre[gg] if not re.search(r";PF", t)]
    if O.get("noslow"):
        for gg in range(len(g.pre)): g.pre[gg] = [t for t in g.pre[gg] if not re.search(r";(WO|WT|T\d|PF)", t) and not t.startswith(("WAITVM WO", "WAITVM T"))]
    return head + g.lines() + ["STAMP"] + rest

def gen_addr2():
    p = Asm()
    p("v_and_b32 v34, 1, v31\nv_lshrrev_b32 v35, 1, v31\nv_lshl_add_u32 v34, v34, 1, v35")
    p(f"v_xor_b32 v34, v34, v30\nv_lshlrev_b32 v34, 4, v34\nv_lshl_add_u32 v{vKA}, v30, 8, v34")
    for ks in range(1, 4): p(f"v_xor_b32 v{vKA+ks}, {ks<<6}, v{vKA}")
    p("v_lshl_add_u32 v34, v31, 2, v32\nv_and_b32 v35, 7, v34\nv_lshlrev_b32 v35, 5, v35\nv_lshl_add_u32 v35, v33, 3, v35")
    p(f"v_lshl_add_u32 v34, v34, 8, v35\nv_add_u32 v{vVA}, {VR}, v34")
    for dt in range(1, 8): p(f"v_xor_b32 v{vVA+dt}, {dt<<5}, v{vVA}")
    for i in range(4): p(f"v_mov_b32 v{ONES+i}, 0x3f803f80")
    p("v_min_u32 v29, 17, v0\nv_lshlrev_b32 v29, 7, v29\nv_add_u32 v29, s54, v29")
    return p

def conv8(t, dst, pk=False):
    return [[f"v_pk_mul_f32 v[{t+i}:{t+i+1}], v[{t+i}:{t+i+1}], s[{sC}:{sC+1}]" for i in range(0, 8, 2)] if pk else
            [f"v_mul_f32 v{t+i}, s{sC}, v{t+i}" for i in range(8)],
            [f"v_cvt_pk_bf16_f32 v{t+i}, v{t+2*i}, v{t+2*i+1}" for i in range(4)],
            [f"v_permlane16_swap_b32 v{t}, v{t+2}", f"v_permlane16_swap_b32 v{t+1}, v{t+3}"],
            [f"v_accvgpr_write_b32 a{dst+i}, v{t+i}" for i in range(4)]]
def conv_h0(ks):
    out = []
    for q2 in range(2):
        us = []
        for u in range(2):
            qb = 2 * q2 + u; t = 64 + 8 * u
            us.append([[f"v_accvgpr_read_b32 v{t+i}, a{128 + 16 * (2 * ks + (i >> 2)) + 4 * qb + (i & 3)}" for i in range(8)]] + conv8(t, 16 * qb + 4 * ks))
        for stA, stB in zip(*us): out += stA + stB
    return out
def conv_h1(qb):
    us = [conv8(O_ + 32 * qb + 8 * ks, 64 + 16 * qb + 4 * ks, qb == 0) for ks in range(4)]
    return [t for stg in zip(*us) for x in stg for t in x]

kf = lambda kt, ks: R("a", KF + 16 * kt + 4 * ks)
vf = lambda dt, kk: R("a", VF + 8 * dt + 4 * kk)
qf = lambda hh, qb, ks: R("a", 64 * hh + 16 * qb + 4 * ks)
def k_reads(slot):
    return [(kt, f"ds_read_b128 {kf(kt, ks)}, v{vKA+ks} offset:{KR + slot*16384 + kt*4096}") for kt in range(4) for ks in range(4)]
def v_reads(slot):
    return [(dt, f"ds_read_b64_tr_b16 a[{VF+8*dt+4*kk+2*h}:{VF+8*dt+4*kk+2*h+1}], v{vVA+dt} offset:{slot*16384 + kk*8192 + h*4096}") for dt in range(8) for kk in range(2) for h in range(2)]
def mf_qk(hh, qb):
    r = []
    for kt in range(4):
        s = R("v", S_ + 16 * (qb & 1) + 4 * kt)
        for ks in range(4):
            r.append(mf16(s, kf(kt, ks), qf(hh, qb, ks), R("v", NEGM + 4 * qb) if ks == 0 else s))
    return r
def mf_pv(qb, first=False):
    r = []
    for dt in range(8):
        o = R("v", O_ + 32 * qb + 4 * dt)
        for kk in range(2):
            r.append(mf16(o, vf(dt, kk), R("v", P_ + 8 * (qb & 1) + 4 * kk), "0" if (first and kk == 0) else o))
    l = R("v", L_ + 4 * qb)
    for kk in range(2):
        r.append(mf16(l, R("v", ONES), R("v", P_ + 8 * (qb & 1) + 4 * kk), "0" if (first and kk == 0) else l))
    return r
def put_sm(g, g0, n, qb):
    s = S_ + 16 * (qb & 1); pp = P_ + 8 * (qb & 1)
    if n >= 33:
        for i in range(16): g.put(g0 + 2 * i + 1, f"v_exp_f32 v{s+i}, v{s+i}", 2)
        for j in range(8): g.put(g0 + 4 * j + 4, f"v_cvt_pk_bf16_f32 v{pp+j}, v{s+2*j}, v{s+2*j+1}")
    else:
        for i in range(16): g.put(g0 + min(i, n - 1), f"v_exp_f32 v{s+i}, v{s+i}", 2)
        for j in range(8): g.put(g0 + min(2 * j + 2, n - 1), ("s_nop 0\n" if 2 * j + 2 > n - 1 else "") + f"v_cvt_pk_bf16_f32 v{pp+j}, v{s+2*j}, v{s+2*j+1}") if False else None
        for j in range(8):
            gg = min(2 * j + 2, n - 1)
            if 2 * j + 2 > n - 1: g.val[g0 + gg].append("s_nop 0")
            g.put(g0 + gg, f"v_cvt_pk_bf16_f32 v{pp+j}, v{s+2*j}, v{s+2*j+1}")

def gen_prepass(hh):
    p = []
    for qb in range(4):
        s = R("v", S_ + 4 * qb)
        for ks in range(4): p.append(mf16(s, kf(0, ks), qf(hh, qb, ks), "0" if ks == 0 else s))
    vr = [t for _, t in v_reads(0)]
    q = []
    for i, t in enumerate(p): q += [t] + vr[2 * i: 2 * i + 2]
    p = q + ["s_nop 5"]
    m = lambda qb: vTMP + 5 + qb
    t = lambda qb: S_ + 16 + qb
    for qb in range(4):
        s = S_ + 4 * qb
        p.append(f"v_max3_f32 v{m(qb)}, v{s}, v{s+1}, v{s+2}")
    for qb in range(4): p.append(f"v_max_f32 v{m(qb)}, v{m(qb)}, v{S_+4*qb+3}")
    for op in ("v_permlane16_swap_b32", "v_permlane32_swap_b32"):
        for qb in range(4): p.append(f"v_mov_b32 v{t(qb)}, v{m(qb)}")
        p.append("s_nop 0")
        for qb in range(4): p.append(f"{op} v{m(qb)}, v{t(qb)}")
        for qb in range(4): p.append(f"v_max_f32 v{m(qb)}, v{m(qb)}, v{t(qb)}")
    for qb in range(4):
        for i in range(4): p.append(f"v_sub_f32 v{NEGM+4*qb+i}, 0, v{m(qb)}")
    p.append("s_nop 1")
    return p

def kv_events(O):
    ev = []
    la = O["la"]
    def LA(x):
        for (x0, y0), (x1, y1) in zip(la, la[1:]):
            if x <= x1: return y0 + (y1 - y0) * (x - x0) / (x1 - x0)
        return la[-1][1]
    for n in range(224):
        tile, i = 4 + n // 8, n % 8
        x = tile + O["dsp"] * i / 8
        pos = int(66 + 136 * (x - LA(x))) + O["doff"]
        assert pos >= 66 + 136 * (tile - 4)
        it = []
        if i == 0: it.append(f"s_mov_b32 s{sKOFF}, {tile * 16384}" if not O.get("skipkv") else f"s_and_b32 s{sKOFF}, s100, {tile * 16384}")
        if i % 4 == 0 or tile >= 29: it.append(f"s_add_u32 m0, s{sW4K}, {(KR if i < 4 else VR) + (tile % 4) * 16384}")
        vo, sr = (vKD + i, SK) if i < 4 else (vVD + (i & 1), SV)
        it.append(f"buffer_load_dwordx4 v{vo}, {srd(sr)}, s{sKOFF} offen offset:{(i % 4) * 1024} nt lds ;T{tile}")
        ev.append((pos, it))
    return ev

def gen_head(hh, O, st):
    mf = mf_qk(hh, 0) + mf_qk(hh, 1) + mf_qk(hh, 2) + mf_pv(0, True)
    for t in range(15):
        f = t == 0
        mf += mf_qk(hh, 3) + mf_pv(1, f) + mf_pv(2, f) + mf_qk(hh, 0) + mf_pv(3, f) + mf_qk(hh, 1) + mf_qk(hh, 2) + mf_pv(0)
    mf += mf_qk(hh, 3) + mf_pv(1) + mf_pv(2) + mf_pv(3)
    g = Gaps(mf)
    put_sm(g, 16, 16, 0); put_sm(g, 32, 34, 1)
    for t in range(16):
        g0 = 66 + 136 * t; T = 16 * hh + t
        bar = ([f"WAITVM T{T+1}"] if T < 31 else ["WAITVM PW0"]) + ["s_barrier"]
        if T == 29: bar = ["WAITVM F1"] + flag_check("FC1", 0, 128) + bar
        g.val[g0 - 1] += bar; g.used[g0 - 1] += 2
        if hh == 1 and t >= 12: g.val[g0 - 1].insert(0, "STAMP")
        if t == 15:
            put_sm(g, g0, 34, 2); put_sm(g, g0 + 34, 18, 3)
            g.val[g0 + 51].append("s_nop 1")
            break
        for i, qb in enumerate([2, 3, 0, 1]): put_sm(g, g0 + 34 * i, 34, qb)
        nslot = (t + 1) % 4
        gg = g0
        for kt, tx in k_reads(nslot): gg = g.place(tx, max(gg, g0 + 4 * kt + 3)) + 1
        g.put(g0 + 48, "s_waitcnt lgkmcnt(0)")
        gg = g0
        for dt, tx in v_reads(nslot): gg = g.place(tx, max(gg, g0 + 68 + 2 * dt + 1))
        assert gg < g0 + 110
        g.put(g0 + 116, "s_waitcnt lgkmcnt(0)")
    if hh == 0:
        for qb, (lo, hi, cap) in ((1, (0, 15, 5)), (2, (32, 90, 3)), (3, (66, 130, 3))):
            gg = lo
            for t in conv_h1(qb):
                while g.used[gg] >= cap: gg += 1
                assert gg <= hi, (qb, gg)
                g.put(gg, t)
        gg = 300
        for t in late_srds()[8:] + (["s_mov_b32 s49, 0"] if DIAG else []): gg = g.place(t, gg)
    else:
        gg = 700
        for t in late_srds()[:8]: gg = g.place(t, gg)
    ev = [(p_ - 2176 * hh, it) for p_, it in kv_events(O) if 2176 * hh <= p_ < 2176 * (hh + 1)]
    if hh == 1:
        B = lambda t: 66 + 136 * t
        for i, it in enumerate(o_stores(0)): ev.append((O["o0g"] + i * O["o0sp"], it))
        ev.append((B(12), [poll("F1", "W")]))
        for k in range(3):
            d = dmw(k)
            for i, gr in enumerate([d[0:6], d[6:12], d[12:15]]): ev.append((B(13 + k) + (36 if k < 2 else 0) + 12 * i, gr))
        ev.append((B(15) + O["gp0"], [poll("P0", "O")]))
        g.val[O["gs0"]] += sig_c(0)
        if O["eo2"]:
            g.val[B(15) + O["e2g"] - 2] += chk_c(0)
            for i, ts in enumerate(ldo(2)[:O["e2n"]]): ev.append((B(15) + O["e2g"] + O["e2s"] * i, ts))
    if hh == 0:
        for gp, gr in zip(O["wpf"], wopf()):
            if gp >= 1152: ev.append((gp - 1152, gr))
    for gp in O["hcpf"]: ev.append((gp, [f"buffer_load_dword v{vFL}, v41, s[92:95], s90 offen ;PF"]))
    ev.sort(key=lambda x: x[0])
    cur = 0
    for lo, items in ev:
        gg = max(cur, lo)
        for u in items:
            gg = g.place(u, min(gg, len(mf) - 1), cap=3 if gg >= 66 + 136 * 15 + 32 else 2)
            if u.startswith(("s_add_u32 m0", "buffer")): gg += 1
        cur = gg
    if hh == 1:
        gg = 500
        for t in wd_setup(): gg = g.place(t, gg)
    return g.lines()

SW2, SOUT, SDBG, SFL, SXB = 20, 24, 60, 32, 56
FLAG_OFF = 0x2900000
XB_OFF = 0x2a00000
sNG, sKG, sWL = 91, 64, 65
sHW, sHO = 74, 78
vW2, vFL, vAO, vAD, vWR = 23, 24, 25, 26, 28
ACC = 112
OPK = 48
acc = lambda j, nt: R("v", ACC + 4 * (j * 9 + nt))
STG = [(0, 0), (0, 1), (1, 0), (2, 0), (3, 0), (1, 1), (2, 1), (3, 1)]
def of(s_, j, m_):
    if s_ == 1: return R("v", OPK + 16 * j + 4 * m_)
    return R("a", (0 if s_ == 0 else [128, 64, 0][(s_ - 2) % 3]) + 16 * j + 4 * m_)
wf = lambda G, k: R("a", 192 + 8 * (G % 4) + 4 * k)
WL = [128, 144, 160, 176, 224, 240, 192, 208, 64]
wl = lambda nt, m_: R("a", WL[nt] + 4 * m_)
def ldo(s_):
    x, hh = STG[s_]
    out = []
    for m_ in range(4):
        for j in range(4):
            out.append(([f"s_add_u32 s68, s{sHO+x}, {(hh * 4 + m_) * 4096}"] if j == 0 else []) +
                       [f"buffer_load_dwordx4 {of(s_, j, m_)}, v{vL16}, {srd(SOW)}, s68 offen offset:{j*1024} sc1 ;PO{s_}{'ab'[m_ >> 1]}"])
    return out
def wopf():
    return [[f"s_mov_b32 s{sT}, {i * 18 * 128}", f"buffer_load_dword v22, v29, {srd(SWO)}, s{sT} offen ;PF"] for i in range(4)]
VWD = [1, 2, 22, 29, 42, 37, 38, 39, 40]
def wd_setup():
    r = []
    for i in range(9):
        r += [f"v_add_u32 v34, {64*i}, v0", "v_mul_u32_u24 v35, 3641, v34", "v_lshrrev_b32 v35, 16, v35", "v_mul_u32_u24 v36, 864, v35",
              f"v_lshl_add_u32 v36, v34, 4, v36", f"v_add_u32 v{VWD[i]}, s66, v36", f"v_subrev_u32 v{VWD[i]}, {(i % 4) * 1024}, v{VWD[i]}"]
    return r
def dmw(s_):
    x, hh = STG[s_]
    out = []
    for i in range(9):
        if i % 4 == 0:
            out += [f"s_add_u32 m0, s{sWL}, {(s_ % 3) * 18432 + i * 1024}", f"s_add_u32 s{sT}, s{sHW+x}, {hh * 128 * 1152}"]
        out.append(f"buffer_load_dwordx4 v{VWD[i]}, {srd(SW2)}, s{sT} offen offset:{(i % 4) * 1024} lds ;PW{s_}")
    return out
def rdw1(dst, s_, m_, nt):
    t, lo = dst[0], int(dst[2:].split(":")[0])
    return [f"ds_read_b64_tr_b16 {t}[{lo+2*h}:{lo+2*h+1}], v{vWR if m_ >= 2 else vW2} offset:{(s_ % 3) * 18432 + (m_ & 1) * 9216 + h * 4608 + nt * 32}" for h in range(2)]
def poll(tag, which):
    sr, so = {"W": (SDBG, 83), "O": (SFL, 82), "X": (SFL, 67)}[which]
    return f"buffer_load_dword v{vFL}, v{vAD+1}, {srd(sr)}, s{so} offen sc1 ;{tag}"
nextpoll = "s_add_u32 s82, s82, 0x10000"
def signal(which):
    if which == "W": return [f"v_mov_b32 v{vAD}, 1", "s_nop 0", f"buffer_atomic_add v{vAD}, v{vAO}, {srd(SDBG)}, s71 offen sc1 ;SG"]
    return [f"buffer_atomic_add v{vAD}, v{vAO}, {srd(SFL)}, s69 offen sc1 ;SG", "s_add_u32 s69, s69, 0x10000"]

def gen_op_setup():
    p = Asm()
    p(f"s_lshr_b32 s{sKG}, s{sHP}, 2\ns_and_b32 s{sNG}, s{sHP}, 3")
    p(f"s_mul_i32 s4, s{sKG}, {1024*1152}\ns_mul_i32 s5, s{sNG}, 288\ns_add_u32 s4, s4, s5")
    p("s_add_u32 s50, s72, s4\ns_addc_u32 s51, s73, 0")
    for x in range(4):
        if x == 0: p(f"s_mov_b32 s4, s{sNG}")
        else: p(f"s_cmp_lt_u32 {x-1}, s{sNG}\ns_cselect_b32 s4, {x-1}, {x}")
        p(f"s_mul_i32 s{sHW+x}, s4, {256*1152}\ns_lshl_b32 s{sHO+x}, s4, 15")
    p(f"v_lshl_add_u32 v34, v31, 2, v32\nv_mul_u32_u24 v34, 288, v34\nv_lshl_add_u32 v{vW2}, v33, 3, v34\nv_add_u32 v{vWR}, 0x10000, v{vW2}")
    p(f"s_lshr_b32 s6, s{sW}, 1\ns_lshl_b32 s6, s6, 16\ns_and_b32 s7, s{sW}, 1\ns_mul_i32 s7, s7, 9216\ns_add_u32 s{sWL}, s6, s7\ns_mul_i32 s66, s{sW}, {32*1152}")
    p(f"s_add_u32 s{SFL}, s88, {FLAG_OFF}\ns_addc_u32 s{SFL+1}, s89, 0\ns_mov_b32 s{SFL+2}, 0x80000\ns_mov_b32 s{SFL+3}, 0x20000")
    p(f"s_add_u32 s72, s88, {XB_OFF}\ns_addc_u32 s73, s89, 0")
    p(f"v_mov_b32 v{vAD+1}, 0\nv_lshlrev_b32 v{vAO}, 19, v0\ns_lshl_b32 s83, s{sBR}, 7")
    p(f"s_lshl_b32 s4, s{sBR}, 3\ns_add_u32 s4, s4, s{sB}\ns_lshl_b32 s5, s4, 2\ns_add_u32 s5, s5, s{sW}\ns_lshl_b32 s5, s5, 2\ns_add_u32 s5, s5, s{sKG}\ns_lshl_b32 s69, s5, 8\ns_mov_b32 s82, s69")
    p(f"s_lshl_b32 s5, s{sNG}, 19\ns_add_u32 s5, s5, s69\nv_lshlrev_b32 v{vAD}, 16, v0\nv_lshrrev_b32 v34, 1, v0\nv_lshl_add_u32 v{vAD}, v34, 19, v{vAD}\nv_add_u32 v{vAD}, s5, v{vAD}")
    p(f"s_lshl_b32 s4, s4, 4\ns_add_u32 s4, s4, s{sHP}\ns_lshl_b32 s4, s4, 2\ns_add_u32 s70, s4, s{sW}")
    p("s_lshl_b32 s67, s70, 8\ns_add_u32 s67, s67, 0x40000")
    p(f"s_lshl_b32 s71, s{sW}, 8\ns_add_u32 s71, s71, s83")
    return p
ZF = lambda: [f"buffer_store_dword v{vAD+1}, v{vAD}, {srd(SFL)}, 0 offen sc1 ;ZF", f"buffer_store_dword v{vAD+1}, v{vAO}, {srd(SFL)}, s67 offen sc1 ;ZF"]
def late_srds():
    r = []
    for sr, lo, n in ((SW2, 50, 1023 * 1152 + 288), (SOUT, 84, 8 * 256 * 1152 * 2), (SDBG, 86, 256), (SXB, 72, 1024 * 15360)):
        r += [f"s_mov_b32 s{sr}, s{lo}", f"s_mov_b32 s{sr+1}, s{lo+1}", f"s_mov_b32 s{sr+2}, {n}", f"s_mov_b32 s{sr+3}, 0x20000"]
    return r

def flag_check(name, shift, want, bits=8):
    return [f"s_mov_b32 s55, 0x20000", f"{name}_RE:",
            f"v_readfirstlane_b32 s53, v{vFL}", "s_nop 0", f"s_bfe_u32 s53, s53, {shift | (bits << 16)}", f"s_cmp_ge_u32 s53, {want}",
            f"s_cbranch_scc0 {name}_SPIN", f"{name}_OK:"]
def flag_spin(name, which):
    cnt = {"FC1": 0, "FC4": 0}.get(name, 1 << (4 * int(name[2:])))
    return [f"{name}_SPIN:"] + ([f"s_add_u32 s49, s49, {cnt}"] if DIAG else []) + ["s_sub_u32 s55, s55, 1", f"s_cbranch_scc1 {name}_OK", f"s_sleep {1 if which == 'X' else 8}", poll("FS", which), "s_waitcnt vmcnt(0)", f"s_branch {name}_RE"]

SEL = 96
def gen_oproj(O):
    D = 2
    mf = []
    for r in range(14):
        s_, h = r >> 1, r & 1
        for nt in range(9):
            for j in range(4):
                for k in range(2):
                    mf.append(mf16(acc(j, nt), wf(9 * r + nt, k), of(s_, j, 2 * h + k), "0" if (r == 0 and k == 0) else acc(j, nt)))
    for j in (1, 2, 3, 0):
        for nt in range(9):
            for m_ in range(4):
                mf.append(mf16(acc(j, nt), wl(nt, m_), of(7, j, m_), acc(j, nt)))
    g = Gaps(mf)
    def rdw(G):
        r, nt = G // 9, G % 9
        return sum((rdw1(wf(G, k), r >> 1, 2 * (r & 1) + k, nt) for k in range(2)), [])
    head = []
    for G in range(D): head += rdw(G)
    BAR = 8 * (17 - D) + 7
    for G in range(126):
        g0 = 8 * G
        if G + D < 126:
            for i, t in enumerate(rdw(G + D)): g.put(g0 + i, t)
        if G % 18 == 17 - D:
            s_ = G // 18
            g.put(g0 + 6, f"WAITVM PW{s_+1}")
            g.put(g0 + 7, "s_waitcnt lgkmcnt(0)"); g.put(g0 + 7, "s_barrier")
        if G % 18 == 17 and G // 18 >= 1:
            g.put(g0 + 7, f"WAITVM PO{G // 18 + 1}{'b' if G // 18 == 6 else 'a'}")
        if G % 18 == 8 and G // 18 >= 2:
            g.put(g0 + 7, f"WAITVM PO{G // 18}b")
    gg = 144 * 6 + BAR + 1
    for nt in range(9):
        for m_ in range(4):
            for t in rdw1(wl(nt, m_), 7, m_, nt): gg = g.place(t, max(gg, 144 * 7 if nt >= 6 else 0))
    assert gg < 144 * 7 + 30, gg - 144 * 7
    ev = []
    for s_ in range(3, 8):
        d = dmw(s_)
        gs = [d[0:3], d[3:4], d[4:5], d[5:6], d[6:9], d[9:10], d[10:11], d[11:12], d[12:15]]
        ev += [(144 * (s_ - 3) + BAR + 1 + O["wsp"] * i, gr, 1) for i, gr in enumerate(gs)]
    for i, ts in enumerate(o_stores(1)): ev.append((O["osg"] + i * O["ossp"], ts, 1))
    if O["eo2"]:
        for i, ts in enumerate(ldo(2)[O["e2n"]:]): ev.append((1 + 4 * i, ts, 1))
    if not O["eo2"]: ev.append((O["go"] - 2, chk_c(0), 0))
    ev.append((O["gs1"], sig_c(1), 0))
    ev.append((O["gp1"], [poll("P1", "O")], 1))
    ev.append((O["gc1"], chk_c(1), 0))
    n1 = 32 if O["eo2"] else 48
    osp1 = O.get("osp1", O["osp"])
    assert O["go"] + n1 * osp1 <= O["gc1"] + 2 and O["go"] + (n1 - 16) * osp1 >= 144 and O["gc1"] >= 432
    assert O["gc1"] + 2 + 16 * O["osp"] >= 576 and O["gc1"] + 2 + 32 * O["osp"] >= 720
    for g0, ss, sp in ((O["go"], (3, 4) if O["eo2"] else (2, 3, 4), osp1), (O["gc1"] + 2, (5, 6, 7), O["osp"])):
        for i, ts in enumerate(sum((ldo(s_) for s_ in ss), [])): ev.append((g0 + i * sp, ts, 1))
    su = Asm()
    su("v_lshlrev_b32 v34, 2, v31\nv_sub_u32 v34, v30, v34\nv_mov_b32 v35, 0x3f80\nv_mov_b32 v36, 0x3f800000")
    for i in range(2):
        su(f"v_cmp_eq_u32 vcc, {2*i}, v34\nv_mov_b32 v{SEL+2+i}, 0\nv_mov_b32 v{SEL+4+i}, 0\nv_cndmask_b32 v{SEL+i}, 0, v35, vcc")
        su(f"v_cmp_eq_u32 vcc, {2*i+1}, v34\nv_mov_b32 v37, 0\nv_mov_b32 v37, 0\nv_cndmask_b32 v{SEL+i}, v{SEL+i}, v36, vcc\nv_mov_b32 v{SEL+6+i}, v{SEL+i}")
    su(f"v_mul_u32_u24 v9, 304, v30\nv_lshl_add_u32 v9, v31, 3, v9\nv_add_u32 v9, s{sW8K}, v9\nv_add_u32 v9, {SP}, v9")
    for i in range(5):
        su(f"v_add_u32 v34, {64*i}, v0\nv_mul_u32_u24 v35, 3641, v34\nv_lshrrev_b32 v35, 16, v35\nv_mul_u32_u24 v36, 18, v35\nv_sub_u32 v36, v34, v36\nv_lshlrev_b32 v36, 4, v36")
        su(f"v_mul_u32_u24 v34, 304, v35\nv_add3_u32 v{10+i}, v34, v36, s{sW8K}\nv_add_u32 v{10+i}, {SP}, v{10+i}\nv_mul_u32_u24 v34, 2304, v35\nv_add_u32 v{15+i}, v34, v36")
    su("v_cmp_gt_u32 vcc, 32, v0\nv_mov_b32 v34, 0x7fff0000\nv_lshlrev_b32 v8, 3, v0\nv_cndmask_b32 v19, v34, v19, vcc")
    gg = 144 * 6 + 4
    for t in su.lines: gg = g.place(t, gg)
    assert gg < 144 * 6 + BAR - 2
    for pi, j in enumerate((1, 2, 3)):
        gg = 144 * 7 + 36 * pi + 12
        first = True
        for n0 in range(0, 9, 2):
            d = ACC + 4 * (9 * j + n0)
            gg = max(gg, 144 * 7 + 36 * pi + 4 * min(n0 + 1, 8) + 3 + 5)
            cv = [f"v_cvt_pk_bf16_f32 v{d}, v{d}, v{d+1}", f"v_cvt_pk_bf16_f32 v{d+1}, v{d+2}, v{d+3}"]
            if n0 < 8: cv += [f"v_cvt_pk_bf16_f32 v{d+2}, v{d+4}, v{d+5}", f"v_cvt_pk_bf16_f32 v{d+3}, v{d+6}, v{d+7}"]
            for t in cv: gg = g.place(t, gg)
            gg += 1
            if first:
                for t in (f"s_xor_b32 s71, s70, {j << 4}", "s_mul_i32 s71, s71, 15360", f"s_add_u32 s71, s71, {(j - 1) * 5120}"): gg = g.place(t, gg)
                first = False
            if n0 == 8:
                gg = g.place("s_add_u32 s71, s71, 4096", gg)
                gg = g.place(f"buffer_store_dwordx2 v[{d}:{d+1}], v8, {srd(SXB)}, s71 offen sc1 ;XS{j}", gg) + 1
            else:
                gg = g.place(f"buffer_store_dwordx4 v[{d}:{d+3}], v{vL16}, {srd(SXB)}, s71 offen offset:{(n0 // 2) * 1024} sc1 ;XS{j}", gg) + 1
    ev.sort(key=lambda x: x[0])
    cur = 0
    for lo, items, stride in ev:
        gg = max(cur, lo)
        if stride == 0:
            g.val[gg] += items; gg += 1
        else:
            for u in items:
                gg = g.place(u, gg)
                if u.startswith("s_add_u32 m0"): gg += 1
                if u.startswith("buffer"): gg += stride
        cur = gg
    for s_ in (0, 1, 2, 4, 6): g.val[144 * s_ + 143].append("STAMP2")
    return head + g.lines()

def gen_ored():
    e = Asm()
    for j in (1, 2, 3):
        e(f"s_xor_b32 s4, s70, {j << 4}\ns_lshl_b32 s4, s4, 8\ns_add_u32 s4, s4, 0x40000\nWAITVM XS{j}")
        e(f"buffer_atomic_add v{vAD}, v{vAO}, {srd(SFL)}, s4 offen sc1 ;SG")
    e("STAMP2")
    e(poll("F4", "X"))
    e(f"s_lshl_b32 s4, s{sB}, 4\ns_lshl_b32 s5, s{sW}, 2\ns_add_u32 s4, s4, s5\ns_add_u32 s4, s4, s{sKG}\ns_mul_i32 s4, s4, {16*2304}")
    e(f"s_mul_i32 s5, s{sBR}, 1152\ns_add_u32 s4, s4, s5\ns_mul_i32 s5, s{sNG}, 288\ns_add_u32 s4, s4, s5\ns_mul_i32 s71, s70, 15360")
    e("s_waitcnt vmcnt(0)")
    e.lines += flag_check("FC4", 0, 3) + ["STAMP2"]
    xr = lambda j, i: 128 + 20 * (j - 1) + 4 * i
    for i in range(5):
        for j in (1, 2, 3):
            e(f"s_add_u32 s{sT}, s71, {(j - 1) * 5120 + i * 1024}")
            if i < 4: e(f"buffer_load_dwordx4 {R('a', xr(j, i))}, v{vL16}, {srd(SXB)}, s{sT} offen sc1 ;XL{i}")
            else: e(f"buffer_load_dwordx2 a[{xr(j, i)}:{xr(j, i)+1}], v8, {srd(SXB)}, s{sT} offen sc1 ;XL{i}")
    for j in (1, 2, 3):
        e(f"v_accvgpr_write_b32 a{xr(j, 4)+2}, 0\nv_accvgpr_write_b32 a{xr(j, 4)+3}, 0")
    def fin(nt):
        d = ACC + 4 * nt
        e(f"v_cvt_pk_bf16_f32 v{d}, v{d}, v{d+1}\nv_cvt_pk_bf16_f32 v{d+1}, v{d+2}, v{d+3}")
        e(f"ds_write_b64 v9, v[{d}:{d+1}] offset:{nt*32}")
    for i in range(5):
        e(f"WAITVM XL{i}")
        for t in range(2 if i < 4 else 1):
            for j in (1, 2, 3):
                e(mf16(acc(0, 2 * i + t), R("v", SEL + 4 * t), R("a", xr(j, i)), acc(0, 2 * i + t)))
        if i >= 1:
            e("s_nop 1"); fin(2 * i - 2); fin(2 * i - 1)
    e("s_nop 1"); fin(8)
    e("s_waitcnt lgkmcnt(0)")
    for i in range(5): e(f"ds_read_b128 {R('v', 48+4*i)}, v{10+i}")
    for i in range(5): e(f"buffer_store_dwordx4 {R('v', 48+4*i)}, v{15+i}, {srd(SOUT)}, s4 offen")
    return e.lines

STAUX = 'sc1'
DIAG = False
def o_stores(hh):
    return [[f"s_add_u32 s72, s{sHO}, {(hh * 4 + m_) * 4096}",
             f"buffer_store_dwordx4 {of(hh, j, m_)}, v{vL16}, {srd(SOW)}, s72 offen offset:{j*1024} {STAUX} ;OC{hh}"] for m_ in range(4) for j in range(4)]
sig_c = lambda c: [f"WAITVM OC{c}"] + signal("O")
chk_c = lambda c: [f"WAITVM P{c}"] + flag_check(f"FO{c}", 0, 4) + [nextpoll]

def gen_fallback(hh):
    e = Asm(); n = f"FB{hh}"
    T0 = 10 if hh else 34
    e.label(n)
    e("s_waitcnt vmcnt(0) lgkmcnt(0)")
    e("v_and_b32 v38, 1, v31\nv_lshrrev_b32 v39, 1, v31\nv_lshl_add_u32 v38, v38, 1, v39\nv_lshlrev_b32 v38, 4, v38\nv_lshl_add_u32 v38, v30, 8, v38".replace("v38", f"v{T0+4}").replace("v39", f"v{T0+5}"))
    e(f"v_lshl_add_u32 v39, v31, 2, v32\nv_lshlrev_b32 v39, 8, v39\nv_lshl_add_u32 v39, v33, 3, v39\nv_add_u32 v39, s{sW8K}, v39\nv_add_u32 v39, {SP}, v39".replace("v39", f"v{T0+5}"))
    for qb in range(4): e(f"v_mov_b32 v{T0+qb}, 0xff800000")
    kfr = lambda kt, ks: R("a", 192 + 16 * kt + 4 * ks)
    def kload():
        e("s_add_u32 s5, s4, 4096")
        for kt in range(2):
            for ks in range(4): e(f"buffer_load_dwordx4 {kfr(kt, ks)}, v{T0+4}, {srd(SK)}, s{4+kt} offen offset:{ks*64}")
    def qk(neg):
        for qb in range(4):
            for kt in range(2):
                d = R("v", S_ + 8 * qb + 4 * kt)
                for ks in range(4): e(mf16(d, kfr(kt, ks), qf(hh, qb, ks), (R("v", NEGM + 4 * qb) if neg else "0") if ks == 0 else d))
        e("s_nop 7")
    l1 = Asm(); l2 = Asm(); mid = Asm(); top = e
    e = l1
    kload(); e("s_waitcnt vmcnt(0)"); qk(False)
    for i in range(4):
        for qb in range(4): e(f"v_max3_f32 v{T0+qb}, v{T0+qb}, v{S_+8*qb+2*i}, v{S_+8*qb+2*i+1}")
    e = mid
    for op in ("v_permlane16_swap_b32", "v_permlane32_swap_b32"):
        for qb in range(4): e(f"v_mov_b32 v{S_+qb}, v{T0+qb}")
        e("s_nop 1")
        for qb in range(4): e(f"{op} v{T0+qb}, v{S_+qb}")
        for qb in range(4): e(f"v_max_f32 v{T0+qb}, v{T0+qb}, v{S_+qb}")
    for qb in range(4):
        for i in range(4): e(f"v_sub_f32 v{NEGM+4*qb+i}, 0, v{T0+qb}")
    for i in range(128): e(f"v_mov_b32 v{O_+i}, 0")
    for i in range(16): e(f"v_mov_b32 v{L_+i}, 0")
    e = l2
    kload()
    for hf in range(2):
        e(f"s_add_u32 m0, s{sW8K}, {SP + hf * 4096}\ns_nop 0")
        for i in range(4): e(f"buffer_load_dwordx4 v{vL16}, {srd(SV)}, s{4+hf} offen offset:{i*1024} lds")
    e("s_waitcnt vmcnt(0)")
    for dt in range(8):
        for h in range(2): e(f"ds_read_b64_tr_b16 a[{224+4*dt+2*h}:{225+4*dt+2*h}], v{T0+5} offset:{h*4096 + dt*32}")
    qk(True)
    for i in range(32): e(f"v_exp_f32 v{S_+i}, v{S_+i}")
    e("s_nop 0")
    for j in range(16): e(f"v_cvt_pk_bf16_f32 v{P_+j}, v{S_+2*j}, v{S_+2*j+1}")
    e("s_waitcnt lgkmcnt(0)\ns_nop 0")
    for qb in range(4):
        for dt in range(8):
            o = R("v", O_ + 32 * qb + 4 * dt)
            e(mf16(o, R("a", 224 + 4 * dt), R("v", P_ + 4 * qb), o))
        e(mf16(R("v", L_ + 4 * qb), R("v", ONES), R("v", P_ + 4 * qb), R("v", L_ + 4 * qb)))
    lo, hi = hh * 262144, (hh + 1) * 262144
    nxt = lambda lab: ["s_add_u32 s4, s4, 8192", f"s_cmp_lt_u32 s4, {hi}", f"s_cbranch_scc1 {lab}"]
    code = top.lines + [f"s_mov_b32 s4, {lo}", f"{n}_L1:"] + l1.lines + nxt(f"{n}_L1") + mid.lines + [f"s_mov_b32 s4, {lo}", f"{n}_L2:"] + l2.lines + nxt(f"{n}_L2") + ["s_nop 7", f"s_branch {n}_RET"]
    trace = top.lines + l1.lines + nxt("x") + l1.lines + nxt("x") + mid.lines + l2.lines + nxt("x") + l2.lines + nxt("x") + ["s_nop 7"]
    return code, trace

def l_check(hh):
    r = [f"v_cmp_nge_f32 s[{4+2*(qb&1)}:{5+2*(qb&1)}], s{sTH}, v{L_+4*qb}" if qb < 2 else f"v_cmp_nge_f32 {'vcc' if qb == 2 else 's[100:101]'}, s{sTH}, v{L_+4*qb}" for qb in range(4)]
    r += ["s_nop 0", "s_or_b64 s[4:5], s[4:5], s[6:7]", "s_or_b64 vcc, vcc, s[100:101]", "s_or_b64 s[4:5], s[4:5], vcc", f"s_cbranch_scc1 FB{hh}", f"FB{hh}_RET:"]
    return r

def gen_epi(O, last):
    p = Asm()
    p("s_nop 7")
    p.lines += l_check(1 if last else 0)
    rl = lambda qb: 112 + 2 * qb
    for qb in range(4): p(f"v_rcp_f32 v{rl(qb)}, v{L_+4*qb}")
    if not last:
        p.lines += signal("W")
        p.lines += [t for _, t in k_reads(0)]
    for qb in range(4):
        o = O_ + 32 * qb
        for i in range(0, 32, 2):
            p(f"v_pk_mul_f32 v[{o+i}:{o+i+1}], v[{o+i}:{o+i+1}], v[{rl(qb)}:{rl(qb)+1}] op_sel_hi:[1,0]")
        for j in range(16):
            p(f"v_cvt_pk_bf16_f32 v{(OPK + 16 * qb if last else o) + j}, v{o+2*j}, v{o+2*j+1}")
        if not last:
            for j in range(16): p(f"v_accvgpr_write_b32 a{16*qb+j}, v{o+j}")
    return p

def stamp(i):
    return [f"s_memtime s[96:97]", "s_memrealtime s[98:99]", "s_waitcnt lgkmcnt(0)", f"v_writelane_b32 v43, s96, {i}", f"v_writelane_b32 v43, s98, {32+i}"]

def gen_kf(stamps=False, **opt):
    st = (lambda i: stamp(i)) if stamps else (lambda i: [])
    O = dict(eo2=1, e2g=32, e2s=4, e2n=8, osg=34, la=[(4, 3), (18, 3), (20, 4), (32, 4)], dsp=1.0, doff=0, cp2=1, wdv=0, o0g=66+136*11+20, wpf=(1140, 1141, 1142, 1143), o0sp=20, gs0=66+136*14+30, ossp=14, gp0=-20, go=230, gs1=330, gp1=440, gc1=520, osp=9, wsp=14, xd=6, cpf=1, pro=('W0', 'X0', 'P0'), ear=('W1', 'W2', 'X1', 'W3', 'P1'), gpf={2: 136, 3: 392, 4: 520}, gcpf=780, gzf=700, ccap=4, hcpf=(1200,), xaux='', waux='', st=8, xp=92, xs=9, t0=(600, 760), t1=(760, 930))
    O.update(opt)
    global DIAG, XAUX, WAUX, VMLOOK
    VMLOOK = O.get("vml", 6)
    DIAG = stamps; XAUX = O["xaux"]; WAUX = O["waux"]
    pro = gen_prologue().lines
    for it in O["pro"]: pro += early_item(it)
    if O.get("skipkv"):
        pro2 = gen_prologue2(O).lines + ["s_lshr_b32 s4, s2, 3", f"s_mul_i32 s4, s4, {O['skipkv'][0]}", "s_and_b32 s4, s4, 31", f"s_cmp_lt_u32 s4, {O['skipkv'][1]}",
                                         "s_cselect_b32 s100, 0, -1"]
        pro += pro2 + gen_prologue3().lines + gen_addr2().lines + gen_op_setup().lines
    else: pro += gen_prologue2(O).lines + gen_prologue3().lines + gen_addr2().lines + gen_op_setup().lines
    if stamps:
        if O.get("pst"):
            i1 = pro.index("s_waitcnt lgkmcnt(0)")
            i2 = next(i for i, l in enumerate(pro) if l.startswith("buffer_"))
            i3 = next(i for i, l in enumerate(pro) if l.startswith("s_getpc"))
            pro = pro[:i1 + 1] + st(23) + pro[i1 + 1:i2] + st(24) + pro[i2:i3] + st(25) + pro[i3:] + st(26)
        pro = pro[:4] + ["v_mov_b32 v43, 0"] + st(0) + pro[4:]
    qp = gen_qproj(O)
    S_T = ["STAMP"]
    h0 = gen_head(0, O, st); h1 = gen_head(1, O, st)
    epi0 = gen_epi(O, False).lines
    prog = pro + qp[:3] + S_T + qp[3:] + [t for _, t in k_reads(0)] + ["s_nop 1"] + conv_h1(0) + S_T + gen_prepass(0) + h0 + S_T + epi0 + S_T + gen_prepass(1) + h1 + S_T + \
        gen_epi(O, True).lines + S_T + gen_oproj(O) + S_T + gen_ored() + S_T
    nb = []; si = 1
    for l in prog:
        if l == "STAMP": nb += st(si); si += 1
        elif l == "STAMP2":
            if O.get("fine"): nb += st(si); si += 1
        else: nb.append(l)
    if O.get("skipkv"): nb = [l.replace(" nt lds ;T0", " lds ;T0").replace("s[100:101]", "s[6:7]") for l in nb]
    prog = resolve_vm(nb)
    prog, _ = auto_lgkm(prog)
    a = Asm()
    cold = []
    for n, w_ in [("FC1", "W"), ("FC4", "X")] + [(f"FO{c}", "O") for c in range(2)]: cold += flag_spin(n, w_)
    k0 = prog.index("FB0_RET:")
    fb = []
    for hh in range(2):
        code, tr = gen_fallback(hh)
        fb.append(code)
        k = prog.index(f"FB{hh}_RET:")
        assert not chk.check(prog[k - 200:k] + tr + prog[k:k + 300], verbose=False)
    a.lines += prog
    if stamps:
        a("s_waitcnt vmcnt(0)")
        a.lines += st(si)
        print('stamps', si + 1)
        a('v_writelane_b32 v43, s49, 31')
        a(f"s_lshl_b32 s4, s2, 2\ns_add_u32 s4, s4, s{sW}\ns_lshl_b32 s4, s4, 8\ns_add_u32 s4, s4, 0x8000000")
        a("s_mov_b32 s8, s88\ns_mov_b32 s9, s89\ns_mov_b32 s10, 0x10000000\ns_mov_b32 s11, 0x20000\nv_lshlrev_b32 v41, 2, v0")
        a("buffer_store_dword v43, v41, s[8:11], s4 offen")
    a("s_endpgm")
    a.label("K1_COLD")
    a.lines += cold + fb[0] + fb[1]
    a.label("K1_END")
    trace = prog
    errs = chk.check(trace, maxerr=8)
    assert not errs or O.get('diag')
    return a.text()

if __name__ == "__main__":
    import sys
    for name, kw in eval(sys.argv[1] if len(sys.argv) > 1 else "[('kf', {})]"):
        kw.setdefault("stamps", True)
        body = gen_kf(**kw)
        open(name + ".s", "w").write(single_kernel_file(body, 256, 256, 160 * 1024, vgpr=512, accum=256))
```

```python
import sys
from g import *
import kf
HDR = open("concat_heads__mha_block_cached__mha_block_cached__near_ridge.s.ref").read().split("; Override launch")[0]
def build(fname, **kw):
    body = kf.gen_kf(stamps=False, **kw)
    txt = single_kernel_file(body, 256, 256, 160 * 1024, vgpr=512, accum=256)
    out = []
    for l in txt.split("\n"):
        if not l.startswith(";"): l = l.split(";")[0].strip().replace(", ", ",").replace(" offset:0 ", " ")
        out.append(l)
    doc = """; One workgroup (4 waves, 64 query rows each) per (branch, batch, head pair); 256 workgroups, one per CU.
"""
    open(fname, "w").write(HDR + doc + "\n".join(out))
if __name__ == "__main__":
    if len(sys.argv) > 1:
        for name, kw in eval(sys.argv[1]): build(name, **kw)
    else:
        build("concat_heads__mha_block_cached__mha_block_cached__near_ridge.s")
```

```python
from g import *
import chk, re
from k2 import WOT_OFF, mf16, R

KR, VR, SP = 0, 65536, 131072
SL = [32768, 98304, 131072]
C_SCALE = 0x3e0293ee
THRESH = 0x53800000

sW = 3
SK, SV, SX, SWQ, SWO, SOW, SWT = 8, 12, 16, 20, 24, 28, 32
SPW, SPX = 56, 60
sWOB = 54
sBR, sB, sHP, sW4K, sW8K, sT, sC, sXO, sKOFF, sIT, sHD, sOO, sTH = 36, 37, 38, 39, 40, 41, 42, 44, 48, 49, 50, 51, 52
srd = lambda s: f"s[{s}:{s+3}]"
vX2, vXR = 42, 39
vX, vWQ, vL16, vKD, vVD, vWA, vKA, vVA, vTMP = 1, 2, 3, 4, 8, 48, 10, 14, 29
ONES, L_, NEGM, P_, S_, O_ = 44, 48, 64, 80, 96, 128
Q_, Q2_, KF, VF = 0, 64, 128, 192

VMLOOK = 6
class Gaps:
    def __init__(self, mf):
        self.mf = mf
        self.pre = [[] for _ in mf]
        self.val = [[] for _ in mf]
        self.used = [0] * len(mf)
    def put(self, g, txt, cost=1):
        (self.val if txt.startswith("v_") else self.pre)[g].append(txt)
        self.used[g] += cost
    def place(self, txt, lo, hi=None, cost=1, cap=2):
        hi = len(self.mf) - 1 if hi is None else hi
        vm = txt.startswith("buffer"); va = txt.startswith("v_")
        for look in ((VMLOOK, 1 << 30) if not va else (1 << 30,)):
            for g in range(lo, min(hi, lo + look) + 1):
                if self.used[g] + cost > cap: continue
                if look == VMLOOK:
                    if vm and self.pre[g]: continue
                    if not vm and any(u.startswith("buffer") for u in self.pre[g]): continue
                self.put(g, txt, cost); return g
        g = min(range(lo, hi + 1), key=lambda x: self.used[x])
        self.put(g, txt, cost)
        return g
    def lines(self):
        out = []
        for m, p, v in zip(self.mf, self.pre, self.val):
            out.append(m); out += p; out += v
        return out

def auto_lgkm(lines, pend=None, age=16):
    out = []
    pend = [] if pend is None else pend
    pos = pend[-1][1] + 1000 if pend else 0
    for l in lines:
        if l.endswith(":") or l.startswith("."):
            out.append(l); continue
        x = chk.I(l)
        if x.kind == "wait" and x.lg is not None:
            pend = pend[len(pend) - x.lg:] if 0 < x.lg < len(pend) else ([] if x.lg == 0 else pend)
        touched = set(x.r + x.w)
        mm = re.search(r'need:(\S+)', l)
        if mm: touched |= set(chk.regs_of(mm.group(1)))
        need = -1
        for i, (rs, _) in enumerate(pend):
            if touched & rs: need = i
        if need >= 0:
            for i, (rs, p) in enumerate(pend):
                if pos - p >= age: need = max(need, i)
            n = len(pend) - 1 - need
            n = min(n, 15)
            out.append(f"s_waitcnt lgkmcnt({n})")
            pend = pend[len(pend) - n:] if n > 0 else []
        out.append(l)
        if x.kind in ("dsr", "dsw"):
            pend.append((set(x.w), pos))
        pos += 1
    return out, pend

def resolve_vm(lines):
    out = []; ops = []; done = -1
    for l in lines:
        if l.startswith("WAITVM"):
            tag = l.split()[1]
            idx = max(i for i, t in enumerate(ops) if t == tag)
            tot = sum(1 for u in lines if u.startswith(("buffer_", "global_")) and ";" in u and u.split(";")[1].split()[0] == tag)
            assert tot == ops.count(tag), (tag, tot, ops.count(tag))
            if idx <= done: continue
            n = len(ops) - 1 - idx
            assert n <= 63
            done = idx
            out.append(f"s_waitcnt vmcnt({n})")
            continue
        mw = re.match(r"s_waitcnt vmcnt\((\d+)\)", l)
        if mw: done = max(done, len(ops) - 1 - int(mw.group(1)))
        if l.startswith(("buffer_", "global_")):
            if len(ops) - 1 - done >= 63:
                out.append("s_waitcnt vmcnt(54)"); done = len(ops) - 1 - 54
            ops.append(l.split(";")[1].split()[0] if ";" in l else None)
        out.append(l)
    return out

def koff_set(tile):
    return [f"s_mov_b32 s{sKOFF}, {tile * 16384}", f"s_add_u32 s{sKOFF}, s{sROT}, {tile * 16384}", f"s_and_b32 s{sKOFF}, s{sKOFF}, 0x3ffff"]
def koff_next():
    return [f"s_add_u32 s{sKOFF}, s{sKOFF}, 16384"]
def kv_dma(tile_slot, soff, tag, which="KV"):
    r = []
    if "K" in which:
        r.append(f"s_add_u32 m0, s{sW4K}, {KR + tile_slot * 16384}")
        for n in range(4):
            r.append(f"buffer_load_dwordx4 v{vKD+n}, {srd(SK)}, {soff} offen offset:{n*1024} nt lds ;{tag}")
    if "V" in which:
        r.append(f"s_add_u32 m0, s{sW4K}, {VR + tile_slot * 16384}")
        for n in range(4):
            r.append(f"buffer_load_dwordx4 v{vVD+(n&1)}, {srd(SV)}, {soff} offen offset:{n*1024} nt lds ;{tag}")
    return r

def gen_prologue():
    p = Asm()
    p("s_cmp_lt_u32 s2, 256\ns_cbranch_scc1 K1_GO\ns_endpgm\nK1_GO:")
    p("s_load_dwordx16 s[64:79], s[0:1], 0\ns_load_dwordx8 s[80:87], s[0:1], 64\ns_load_dwordx2 s[88:89], s[0:1], 96")
    p("s_getpc_b64 s[92:93]\nK1_PC:\ns_mov_b32 s94, K1_COLD-K1_PC\ns_mov_b32 s95, 0x20000\ns_lshr_b32 s90, s2, 3\ns_lshl_b32 s90, s90, 12")
    p("v_lshrrev_b32 v29, 6, v0\nv_and_b32 v41, 7, v0\nv_lshl_add_u32 v41, v29, 3, v41\nv_lshlrev_b32 v41, 7, v41")
    p("buffer_load_dword v22, v41, s[92:95], s90 offen ;PF")
    p(f"v_and_b32 v0, 63, v0\nv_readfirstlane_b32 s{sW}, v29")
    p("s_and_b32 s4, s2, 7\ns_lshr_b32 s5, s2, 3")
    p(f"s_lshr_b32 s{sBR}, s4, 2")
    p(f"s_and_b32 s6, s4, 1\ns_lshl_b32 s6, s6, 2\ns_and_b32 s7, s5, 3\ns_add_u32 s{sB}, s6, s7")
    p(f"s_and_b32 s6, s4, 2\ns_lshl_b32 s6, s6, 2\ns_lshr_b32 s7, s5, 2\ns_add_u32 s{sHP}, s6, s7")
    p(f"s_lshl_b32 s{sW4K}, s{sW}, 12\ns_lshl_b32 s{sW8K}, s{sW}, 13")
    p(f"s_mov_b32 s{sC}, {C_SCALE}\ns_mov_b32 s{sC+1}, {C_SCALE}\ns_mov_b32 s{sTH}, {THRESH}")
    p(f"s_lshr_b32 s6, s{sHP}, 2")
    for qb in range(4): p(f"s_xor_b32 s{sXO+qb}, s6, {qb}\ns_mul_i32 s{sXO+qb}, s{sXO+qb}, 18432")
    p("v_and_b32 v30, 15, v0\nv_lshrrev_b32 v31, 4, v0\nv_bfe_u32 v32, v0, 2, 2\nv_and_b32 v33, 3, v0")
    p(f"v_lshlrev_b32 v{vL16}, 4, v0")
    p("v_and_b32 v34, 1, v29\nv_lshl_add_u32 v34, v34, 2, v31\nv_lshlrev_b32 v34, 1, v34\nv_xor_b32 v34, v34, v30\nv_lshlrev_b32 v34, 4, v34")
    p(f"v_lshl_add_u32 v35, v29, 3, v31\nv_lshl_add_u32 v{vWQ}, v35, 13, v34")
    p("v_lshrrev_b32 v34, 3, v0\nv_lshl_add_u32 v35, v29, 6, v34\nv_mul_u32_u24 v35, 1152, v35")
    p(f"v_and_b32 v36, 7, v0\nv_xor_b32 v36, v36, v31\nv_lshlrev_b32 v36, 4, v36\nv_add_u32 v{vX}, v35, v36\nv_xor_b32 v36, 64, v36\nv_add_u32 v{vX2}, v35, v36")
    p(f"s_lshl_b32 s6, s5, 2\ns_add_u32 s6, s6, s{sW}")
    p(f"s_lshl_b32 s7, s6, 13\ns_and_b32 s53, s{sHP}, 8\ns_lshl_b32 s53, s53, 9\ns_add_u32 s7, s7, s53")
    p("v_and_b32 v37, 31, v0\nv_lshlrev_b32 v37, 7, v37\nv_add_u32 v37, s7, v37")
    p(f"s_and_b32 s53, s{sB}, 4\ns_lshl_b32 s53, s53, 8\ns_lshl_b32 s7, s6, 3\ns_add_u32 s7, s7, s53\ns_mul_i32 s7, s7, 1152")
    p("v_and_b32 v38, 7, v0\nv_mul_u32_u24 v38, 1152, v38\nv_bfe_u32 v36, v0, 3, 1\nv_lshl_add_u32 v38, v36, 7, v38\nv_add_u32 v38, s7, v38")
    p("v_and_b32 v65, 7, v0\nv_mul_u32_u24 v65, 1152, v65\nv_add_u32 v65, s7, v65")
    p(f"s_lshr_b32 s7, s6, 1\ns_lshl_b32 s7, s7, 13\ns_and_b32 s53, s6, 1\ns_lshl_b32 s53, s53, 11\ns_add_u32 s7, s7, s53\ns_and_b32 s53, s{sHP}, 8\ns_lshl_b32 s53, s53, 9\ns_add_u32 s7, s7, s53")
    p("v_lshlrev_b32 v64, 7, v30\nv_add_u32 v64, s7, v64")
    p("s_waitcnt lgkmcnt(0)")
    p(f"s_cmp_eq_u32 s{sBR}, 0")
    for i in range(10): p(f"s_cselect_b32 s{64+i}, s{64+i}, s{74+i}")
    p(f"s_lshl_b32 s4, s{sHP}, 9")
    p(f"s_add_u32 s{SWQ}, s70, s4\ns_addc_u32 s{SWQ+1}, s71, 0\ns_sub_u32 s{SWQ+2}, {576*8192}, s4\ns_mov_b32 s{SWQ+3}, 0x20000")
    p(f"s_mul_i32 s4, s{sB}, 294912")
    p(f"s_add_u32 s{SX}, s64, s4\ns_addc_u32 s{SX+1}, s65, 0\ns_mov_b32 s{SX+2}, 294912\ns_mov_b32 s{SX+3}, 0x20000")
    p(f"s_mov_b32 s{SPW}, s70\ns_mov_b32 s{SPW+1}, s71\ns_mov_b32 s{SPW+2}, {576*8192}\ns_mov_b32 s{SPW+3}, 0x20000")
    p(f"s_mov_b32 s{SPX}, s64\ns_mov_b32 s{SPX+1}, s65\ns_mov_b32 s{SPX+2}, {8*294912}\ns_mov_b32 s{SPX+3}, 0x20000")
    return p

def gen_prologue2(O):
    p = Asm()
    p(f"s_lshl_b32 s4, s{sB}, 4\ns_add_u32 s4, s4, s{sHP}")
    p("s_lshl_b32 s5, s4, 19")
    p(f"s_add_u32 s{SK}, s66, s5\ns_addc_u32 s{SK+1}, s67, 0\ns_mov_b32 s{SK+2}, 0x80000\ns_mov_b32 s{SK+3}, 0x20000")
    p(f"s_add_u32 s{SV}, s68, s5\ns_addc_u32 s{SV+1}, s69, 0\ns_mov_b32 s{SV+2}, 0x80000\ns_mov_b32 s{SV+3}, 0x20000")
    p(f"s_lshr_b32 s5, s{sHP}, 3\ns_mul_i32 s5, s5, {2048*1152}\ns_add_u32 s{SWO}, s72, s5\ns_addc_u32 s{SWO+1}, s73, 0\ns_mov_b32 s{SWO+2}, {2048*1152}\ns_mov_b32 s{SWO+3}, 0x20000")
    p(f"s_lshr_b32 s5, s2, 3\ns_lshl_b32 s5, s5, 2\ns_add_u32 s5, s5, s{sW}\ns_and_b32 s6, s2, 1\ns_lshl_b32 s6, s6, 7\ns_add_u32 s5, s5, s6\ns_mul_i32 s5, s5, {72*128}")
    p("s_mov_b32 s54, s5")
    p(f"s_lshl_b32 s5, s{sBR}, 5\ns_lshl_b32 s6, s{sB}, 2\ns_add_u32 s5, s5, s6\ns_add_u32 s5, s5, s{sW}\ns_lshl_b32 s5, s5, 7")
    p(f"s_and_b32 s6, s{sHP}, 12\ns_lshl_b32 s6, s6, 3\ns_add_u32 s5, s5, s6\ns_lshl_b32 s5, s5, 12")
    p(f"s_add_u32 s{SOW}, s88, s5\ns_addc_u32 s{SOW+1}, s89, 0\ns_mov_b32 s{SOW+2}, {32*4096}\ns_mov_b32 s{SOW+3}, 0x20000")
    return p

def gen_prologue3():
    p = Asm()
    p("v_lshlrev_b32 v35, 12, v31\nv_lshl_add_u32 v35, v32, 8, v35\nv_lshl_add_u32 v35, v33, 3, v35")
    p("v_and_b32 v34, 1, v31\nv_lshl_add_u32 v36, v34, 2, v32\nv_lshl_add_u32 v35, v36, 5, v35")
    for d3 in range(8):
        p(f"v_xor_b32 v36, {d3*32}, v35\nv_add_u32 v{vWA+d3}, 32768, v36\nv_add_u32 v{vWA+8+d3}, 98304, v36")
    p(f"v_lshrrev_b32 v34, 1, v30\nv_xor_b32 v34, v34, v31\nv_lshlrev_b32 v34, 4, v34\nv_lshl_add_u32 v34, v30, 7, v34\nv_lshl_add_u32 v34, v29, 13, v34")
    p(f"v_add_u32 v{vXR}, {SP}, v34\nv_xor_b32 v{vXR+1}, 64, v{vXR}")
    p("v_lshl_add_u32 v34, v29, 4, v31\nv_lshlrev_b32 v34, 8, v34")
    p(f"v_xor_b32 v35, v30, v31\nv_lshl_add_u32 v{vKD}, v35, 4, v34")
    for n in range(1, 4): p(f"v_xor_b32 v{vKD+n}, {n<<6}, v{vKD}")
    p(f"v_lshlrev_b32 v35, 1, v31\nv_xor_b32 v35, v30, v35\nv_lshl_add_u32 v{vVD}, v35, 4, v34\nv_xor_b32 v{vVD+1}, 0x80, v{vVD}")
    return p

WAREA = [49152, 114688, 32768, 98304]
def slab_dma(H):
    ss, hh = H >> 1, H & 1
    r = [f"s_add_u32 m0, s{sW4K}, {WAREA[H % 4]}"]
    for i in range(4):
        kc, h = i >> 1, i & 1
        r.append(f"s_mov_b32 s{sT}, {(ss * 64 + 32 * kc + 4 * h) * 8192 + hh * 256 - i * 1024}")
        r.append(f"buffer_load_dwordx4 v{vWQ}, {srd(SWQ)}, s{sT} offen offset:{i*1024} {WAUX} lds ;W{H}")
    return r

def pf(pr):
    return [f"s_mov_b32 s{sT}, {pr * 128 * 8192}",
            f"buffer_load_dword v22, v37, {srd(SPW)}, s{sT} offen ;PF",
            f"buffer_load_dword v22, v38, {srd(SPX)}, 0 offen offset:{pr * 256} ;PF"]

xf = lambda ss, qb, kc: R("a", 64 + 32 * (ss % 2) + 8 * qb + 4 * kc)
def x_dma(ss, qb):
    r = [f"s_add_u32 m0, s{sW8K}, {SP + qb * 2048}"]
    need = f" need:a[{64+32*((ss-1)%2)+8*qb}:{64+32*((ss-1)%2)+8*qb+7}]" if ss > 0 else ""
    for e in range(2):
        r.append(f"s_add_u32 s{sT}, s{sXO+qb}, {e * 9216 + ss * 128 - e * 1024}")
        r.append(f"buffer_load_dwordx4 v{vX2 if e else vX}, {srd(SX)}, s{sT} offen offset:{e*1024} {XAUX} lds ;X{ss}_{qb}{need}")
    return r
def x_rd(ss, qb):
    return [f"ds_read_b128 {xf(ss, qb, kc)}, v{vXR+kc} offset:{qb*2048}" for kc in range(2)]

def wo_dma():
    r = []
    r.append(f"s_lshr_b32 s4, s{sW}, 1\ns_lshl_b32 s4, s4, 16\ns_and_b32 s5, s{sW}, 1\ns_mul_i32 s5, s5, 9216\ns_add_u32 s4, s4, s5")
    for i in range(9):
        if i % 4 == 0:
            r.append(f"s_add_u32 m0, s4, {(i >> 2) * 4096}")
            r.append(f"s_mov_b32 s{sT}, {(i >> 2) * 4096}")
        r.append(f"buffer_load_dwordx4 v{vWOD}, {srd(SWO)}, s{sT} offen offset:{(i&3)*1024} nt lds ;WO")
    return r

def early_item(it):
    k, n = it[0], int(it[1])
    if k == "W": return slab_dma(n)
    if k == "P": return pf(n)
    if k == "S": return [f"s_mov_b32 s{sT}, {n * 64 * 8192}", f"buffer_load_dword v22, v64, {srd(SPW)}, s{sT} offen ;PF", f"buffer_load_dword v22, v65, {srd(SPX)}, 0 offen offset:{n * 128} ;PF"]
    return sum((x_dma(n, qb) for qb in range(4)), [])

def qacc(dt, qb):
    return R("a", 128 + 16 * dt + 4 * qb) if dt < 8 else R("v", O_ + 32 * qb + 4 * (dt - 8))

def gen_qproj(O):
    D = 3
    NR = 6
    wfr = lambda G, kc: 80 + 8 * (G % NR) + 4 * kc
    def rd(G):
        H, d3 = G // 8, G % 8
        ar = WAREA[H % 4]
        base = vWA + (0 if ar < 65536 else 8) + d3
        extra = ar - (32768 if ar < 65536 else 98304)
        return [f"ds_read_b64_tr_b16 v[{wfr(G,kc)+2*h}:{wfr(G,kc)+2*h+1}], v{base} offset:{extra + 2048*kc + 1024*h}" for kc in range(2) for h in range(2)]
    mf = []
    for G in range(144):
        ss, dt = G // 16, G % 16
        for qb in range(4):
            for kc in range(2):
                c = "0" if (ss == 0 and kc == 0) else qacc(dt, qb)
                mf.append(mf16(qacc(dt, qb), R("v", wfr(G, kc)), xf(ss, qb, kc), c))
    g = Gaps(mf)
    head = ["WAITVM X0_3", "WAITVM W0", "s_barrier"]
    for G in range(D): head += rd(G)
    for qb in range(4): head += x_rd(0, qb)
    BAR = 8 * (7 - D) + 7
    for G in range(144):
        H, d3 = G // 8, G % 8
        g0 = 8 * G
        if G + D < 144:
            for i, t in enumerate(rd(G + D)): g.put(g0 + i, t)
        if d3 == 7 - D:
            if H < 17: g.put(g0 + 6, f"WAITVM W{H+1}")
            g.put(g0 + 7, "s_waitcnt lgkmcnt(0)"); g.put(g0 + 7, "s_barrier")
    ev = []
    for i, it in enumerate(O["ear"]): ev.append((i, early_item(it), 1))
    for pr, gp in O["gpf"].items(): ev.append((gp, pf(pr) if isinstance(pr, int) else early_item(pr), 1))
    ev.append((O["gcpf"], ["buffer_load_dword v22, v41, s[92:95], s90 offen ;PF"], 1))
    for H in range(4, 18):
        sd = slab_dma(H)
        for i in range(4): ev.append((64 * (H - 4) + BAR + 1 + O["st"] * i, [sd[0]] + sd[1 + 2 * i: 3 + 2 * i], 1))
    XP = O["xp"]
    for ss in range(1, 9):
        for qb in range(4):
            gg = 128 * (ss - 1) + XP + O["xs"] * qb
            g.place(f"WAITVM X{ss}_{qb}", gg - 1)
            gg = max(gg, max(i for i in range(len(g.pre)) if f"WAITVM X{ss}_{qb}" in g.pre[i]))
            for t in x_rd(ss, qb): gg = g.place(t, gg)
            if ss < 8: ev.append((gg + O['xd'], x_dma(ss + 1, qb), 1))
    win = lambda H: 64 * H + BAR + 1
    def thin(groups, g_lo, g_hi):
        n = len(groups)
        for i, gr in enumerate(groups):
            ev.append((g_lo + (g_hi - g_lo) * i // n, gr, 1))
    def kv_groups(slot, tile, which):
        r = []
        for ten, base, vo, sr in (("K", KR, lambda n: vKD + n, SK), ("V", VR, lambda n: vVD + (n & 1), SV)):
            if ten not in which: continue
            for n in range(4):
                r.append([f"s_add_u32 m0, s{sW4K}, {base + slot * 16384}", f"s_mov_b32 s{sT}, {tile * 16384}",
                          f"buffer_load_dwordx4 v{vo(n)}, {srd(sr)}, s{sT} offen offset:{n*1024} nt lds ;T{tile}"])
        return r
    thin(kv_groups(0, 0, "KV"), *O["t0"]); thin(kv_groups(1, 1, "KV"), *O["t1"])
    t2 = max(O["t1"][1], win(14))
    thin(kv_groups(2, 2, "K"), t2, t2 + 30)
    t2 = max(t2 + 30, win(15))
    thin(kv_groups(2, 2, "V"), t2, t2 + 30)
    t2 = max(t2 + 30, win(16))
    thin(kv_groups(3, 3, "K"), t2, min(t2 + 30, win(17) - 4))
    ev.append((win(17), kv_dma(3, f"s{sKOFF}", "T3", "V"), 1))
    for gp, gr in zip(O["wpf"], wopf()):
        if gp < 1152: ev.append((gp, gr, 1))
    ev.append((O["gzf"], ZF(), 1))
    ev.append((win(16) + 50, [f"s_mov_b32 s{sKOFF}, 49152"], 1))
    g.pre[64 * 17 + BAR - 1].insert(0, "WAITVM T0")
    ev.sort(key=lambda x: x[0])
    cur = 0
    for lo, items, stride in ev:
        gg = max(cur, lo + (1 if (lo + 1) % 64 == BAR + 1 else 0))
        for u in items:
            gg = g.place(u, gg)
            if u.startswith("s_add_u32 m0"): gg += 1
            if u.startswith("buffer"): gg += stride
        cur = gg
    rest = []
    gg = 0
    for ks in range(4):
        gg = max(gg, 1024 + 16 * (ks + 1) + 5)
        for t in conv_h0(ks):
            while gg < len(mf) and g.used[gg] >= O["ccap"]: gg += 1
            if gg < len(mf): g.put(gg, t)
            else: rest.append(t)
    if O.get("ssst"):
        for ss in range(9):
            g.pre[128 * ss + 127] += stamp(22 + ss)[:3]
            g.val[128 * ss + 127] += stamp(22 + ss)[3:]
    if O.get("nox"):
        for gg in range(len(g.pre)): g.pre[gg] = [t for t in g.pre[gg] if ";X" not in t and not t.startswith("WAITVM X")]
    if O.get("now"):
        for gg in range(len(g.pre)): g.pre[gg] = [t for t in g.pre[gg] if not re.search(r";W\d", t) and not re.match(r"WAITVM W\d", t)]
    if O.get("nopf"):
        for gg in range(len(g.pre)): g.pre[gg] = [t for t in g.pre[gg] if not re.search(r";PF", t)]
    if O.get("noslow"):
        for gg in range(len(g.pre)): g.pre[gg] = [t for t in g.pre[gg] if not re.search(r";(WO|WT|T\d|PF)", t) and not t.startswith(("WAITVM WO", "WAITVM T"))]
    return head + g.lines() + ["STAMP"] + rest

def gen_addr2():
    p = Asm()
    p("v_and_b32 v34, 1, v31\nv_lshrrev_b32 v35, 1, v31\nv_lshl_add_u32 v34, v34, 1, v35")
    p(f"v_xor_b32 v34, v34, v30\nv_lshlrev_b32 v34, 4, v34\nv_lshl_add_u32 v{vKA}, v30, 8, v34")
    for ks in range(1, 4): p(f"v_xor_b32 v{vKA+ks}, {ks<<6}, v{vKA}")
    p("v_lshl_add_u32 v34, v31, 2, v32\nv_and_b32 v35, 7, v34\nv_lshlrev_b32 v35, 5, v35\nv_lshl_add_u32 v35, v33, 3, v35")
    p(f"v_lshl_add_u32 v34, v34, 8, v35\nv_add_u32 v{vVA}, {VR}, v34")
    for dt in range(1, 8): p(f"v_xor_b32 v{vVA+dt}, {dt<<5}, v{vVA}")
    for i in range(4): p(f"v_mov_b32 v{ONES+i}, 0x3f803f80")
    p("v_min_u32 v29, 17, v0\nv_lshlrev_b32 v29, 7, v29\nv_add_u32 v29, s54, v29")
    return p

def conv8(t, dst, pk=False):
    return [[f"v_pk_mul_f32 v[{t+i}:{t+i+1}], v[{t+i}:{t+i+1}], s[{sC}:{sC+1}]" for i in range(0, 8, 2)] if pk else
            [f"v_mul_f32 v{t+i}, s{sC}, v{t+i}" for i in range(8)],
            [f"v_cvt_pk_bf16_f32 v{t+i}, v{t+2*i}, v{t+2*i+1}" for i in range(4)],
            [f"v_permlane16_swap_b32 v{t}, v{t+2}", f"v_permlane16_swap_b32 v{t+1}, v{t+3}"],
            [f"v_accvgpr_write_b32 a{dst+i}, v{t+i}" for i in range(4)]]
def conv_h0(ks):
    out = []
    for q2 in range(2):
        us = []
        for u in range(2):
            qb = 2 * q2 + u; t = 64 + 8 * u
            us.append([[f"v_accvgpr_read_b32 v{t+i}, a{128 + 16 * (2 * ks + (i >> 2)) + 4 * qb + (i & 3)}" for i in range(8)]] + conv8(t, 16 * qb + 4 * ks))
        for stA, stB in zip(*us): out += stA + stB
    return out
def conv_h1(qb):
    us = [conv8(O_ + 32 * qb + 8 * ks, 64 + 16 * qb + 4 * ks, qb == 0) for ks in range(4)]
    return [t for stg in zip(*us) for x in stg for t in x]

kf = lambda kt, ks: R("a", KF + 16 * kt + 4 * ks)
vf = lambda dt, kk: R("a", VF + 8 * dt + 4 * kk)
qf = lambda hh, qb, ks: R("a", 64 * hh + 16 * qb + 4 * ks)
def k_reads(slot):
    return [(kt, f"ds_read_b128 {kf(kt, ks)}, v{vKA+ks} offset:{KR + slot*16384 + kt*4096}") for kt in range(4) for ks in range(4)]
def v_reads(slot):
    return [(dt, f"ds_read_b64_tr_b16 a[{VF+8*dt+4*kk+2*h}:{VF+8*dt+4*kk+2*h+1}], v{vVA+dt} offset:{slot*16384 + kk*8192 + h*4096}") for dt in range(8) for kk in range(2) for h in range(2)]
def mf_qk(hh, qb):
    r = []
    for kt in range(4):
        s = R("v", S_ + 16 * (qb & 1) + 4 * kt)
        for ks in range(4):
            r.append(mf16(s, kf(kt, ks), qf(hh, qb, ks), R("v", NEGM + 4 * qb) if ks == 0 else s))
    return r
def mf_pv(qb, first=False):
    r = []
    for dt in range(8):
        o = R("v", O_ + 32 * qb + 4 * dt)
        for kk in range(2):
            r.append(mf16(o, vf(dt, kk), R("v", P_ + 8 * (qb & 1) + 4 * kk), "0" if (first and kk == 0) else o))
    l = R("v", L_ + 4 * qb)
    for kk in range(2):
        r.append(mf16(l, R("v", ONES), R("v", P_ + 8 * (qb & 1) + 4 * kk), "0" if (first and kk == 0) else l))
    return r
def put_sm(g, g0, n, qb):
    s = S_ + 16 * (qb & 1); pp = P_ + 8 * (qb & 1)
    if n >= 33:
        for i in range(16): g.put(g0 + 2 * i + 1, f"v_exp_f32 v{s+i}, v{s+i}", 2)
        for j in range(8): g.put(g0 + 4 * j + 4, f"v_cvt_pk_bf16_f32 v{pp+j}, v{s+2*j}, v{s+2*j+1}")
    else:
        for i in range(16): g.put(g0 + min(i, n - 1), f"v_exp_f32 v{s+i}, v{s+i}", 2)
        for j in range(8): g.put(g0 + min(2 * j + 2, n - 1), ("s_nop 0\n" if 2 * j + 2 > n - 1 else "") + f"v_cvt_pk_bf16_f32 v{pp+j}, v{s+2*j}, v{s+2*j+1}") if False else None
        for j in range(8):
            gg = min(2 * j + 2, n - 1)
            if 2 * j + 2 > n - 1: g.val[g0 + gg].append("s_nop 0")
            g.put(g0 + gg, f"v_cvt_pk_bf16_f32 v{pp+j}, v{s+2*j}, v{s+2*j+1}")

def pre_mf(hh):
    p = []
    for qb in range(4):
        s = R("v", S_ + 4 * qb)
        for ks in range(4): p.append(mf16(s, kf(0, ks), qf(hh, qb, ks), "0" if ks == 0 else s))
    return p
def pre_valu():
    p = []
    m = lambda qb: vTMP + 5 + qb
    t = lambda qb: S_ + 4 * qb
    for qb in range(4):
        s = S_ + 4 * qb
        p.append(f"v_max3_f32 v{m(qb)}, v{s}, v{s+1}, v{s+2}")
    for qb in range(4): p.append(f"v_max_f32 v{m(qb)}, v{m(qb)}, v{S_+4*qb+3}")
    for op in ("v_permlane16_swap_b32", "v_permlane32_swap_b32"):
        for qb in range(4): p.append(f"v_mov_b32 v{t(qb)}, v{m(qb)}")
        for qb in range(4): p.append(f"{op} v{m(qb)}, v{t(qb)}")
        for qb in range(4): p.append(f"v_max_f32 v{m(qb)}, v{m(qb)}, v{t(qb)}")
    for qb in range(4):
        for i in range(4): p.append(f"v_sub_f32 v{NEGM+4*qb+i}, 0, v{m(qb)}")
    return p
def gen_prepass0():
    cv = conv_h1(0)
    g = Gaps(pre_mf(0))
    for i, (_, t) in enumerate(v_reads(0)): g.put(i // 2, t)
    for i, t in enumerate(cv[16:48]): g.put(i // 2, t)
    return cv[:16] + g.lines() + cv[48:] + pre_valu() + ["s_nop 1"]
def pack_o0(qb):
    o = O_ + 32 * qb
    return [f"v_cvt_pk_bf16_f32 v{o+j}, v{o+2*j}, v{o+2*j+1}" for j in range(16)] + [f"v_accvgpr_write_b32 a{16*qb+j}, v{o+j}" for j in range(16)]

def kv_events(O):
    ev = []
    la = O["la"]
    def LA(x):
        for (x0, y0), (x1, y1) in zip(la, la[1:]):
            if x <= x1: return y0 + (y1 - y0) * (x - x0) / (x1 - x0)
        return la[-1][1]
    for n in range(224):
        tile, i = 4 + n // 8, n % 8
        x = tile + O["dsp"] * i / 8
        pos = int(66 + 136 * (x - LA(x))) + O["doff"]
        assert pos >= 66 + 136 * (tile - 4)
        it = []
        if i == 0: it.append(f"s_mov_b32 s{sKOFF}, {tile * 16384}" if not O.get("skipkv") else f"s_and_b32 s{sKOFF}, s100, {tile * 16384}")
        if i % 4 == 0 or tile >= 29: it.append(f"s_add_u32 m0, s{sW4K}, {(KR if i < 4 else VR) + (tile % 4) * 16384}")
        vo, sr = (vKD + i, SK) if i < 4 else (vVD + (i & 1), SV)
        it.append(f"buffer_load_dwordx4 v{vo}, {srd(sr)}, s{sKOFF} offen offset:{(i % 4) * 1024} nt lds ;T{tile}")
        ev.append((pos, it))
    return ev

def gen_head(hh, O, st):
    mf = mf_qk(hh, 0) + mf_qk(hh, 1) + mf_qk(hh, 2) + mf_pv(0, True)
    for t in range(15):
        f = t == 0
        mf += mf_qk(hh, 3) + mf_pv(1, f) + mf_pv(2, f) + mf_qk(hh, 0) + mf_pv(3, f) + mf_qk(hh, 1) + mf_qk(hh, 2) + mf_pv(0)
    mf += mf_qk(hh, 3) + mf_pv(1) + mf_pv(2) + (pre_mf(1) if hh == 0 else []) + mf_pv(3)
    g = Gaps(mf)
    put_sm(g, 16, 16, 0); put_sm(g, 32, 34, 1)
    for t in range(16):
        g0 = 66 + 136 * t; T = 16 * hh + t
        bar = ([f"WAITVM T{T+1}"] if T < 31 else ["WAITVM PW0"]) + ["s_barrier"]
        if T == 29: bar = ["WAITVM F1"] + flag_check("FC1", 0, 128) + bar
        g.val[g0 - 1] += bar; g.used[g0 - 1] += 2
        if hh == 1 and t >= 12: g.val[g0 - 1].insert(0, "STAMP")
        if t == 15 and hh == 0:
            put_sm(g, g0, 34, 2); put_sm(g, g0 + 34, 34, 3)
            gg = g0
            for kt, tx in k_reads(0): gg = g.place(tx, max(gg, g0 + 4 * kt + 3)) + 1
            g.put(g0 + 48, "s_waitcnt lgkmcnt(0)")
            for i, tx in enumerate(pre_valu()): g.put(min(g0 + 72 + i // 3, len(mf) - 1), tx)
            break
        if t == 15:
            put_sm(g, g0, 34, 2); put_sm(g, g0 + 34, 18, 3)
            g.val[g0 + 51].append("s_nop 1")
            break
        for i, qb in enumerate([2, 3, 0, 1]): put_sm(g, g0 + 34 * i, 34, qb)
        nslot = (t + 1) % 4
        gg = g0
        for kt, tx in k_reads(nslot): gg = g.place(tx, max(gg, g0 + 4 * kt + 3)) + 1
        g.put(g0 + 48, "s_waitcnt lgkmcnt(0)")
        gg = g0
        for dt, tx in v_reads(nslot): gg = g.place(tx, max(gg, g0 + 68 + 2 * dt + 1))
        assert gg < g0 + 110
        g.put(g0 + 116, "s_waitcnt lgkmcnt(0)")
    if hh == 0:
        for qb, (lo, hi, cap) in ((1, (0, 15, 5)), (2, (32, 90, 3)), (3, (66, 130, 3))):
            gg = lo
            for t in conv_h1(qb):
                while g.used[gg] >= cap: gg += 1
                assert gg <= hi, (qb, gg)
                g.put(gg, t)
        gg = 300
        for t in late_srds()[8:] + (["s_mov_b32 s49, 0"] if DIAG else []): gg = g.place(t, gg)
    else:
        for qb, (lo, hi, cap) in ((0, (0, 15, 4)), (1, (0, 15, 4)), (2, (32, 90, 3)), (3, (66, 130, 2))):
            gg = lo
            for t in pack_o0(qb):
                while g.used[gg] >= cap: gg += 1
                assert gg <= hi, (qb, gg)
                g.put(gg, t)
        gg = 700
        for t in late_srds()[:8]: gg = g.place(t, gg)
    ev = [(p_ - 2176 * hh, it) for p_, it in kv_events(O) if 2176 * hh <= p_ < 2176 * (hh + 1)]
    if hh == 1:
        B = lambda t: 66 + 136 * t
        for i, it in enumerate(o_stores(0)): ev.append((O["o0g"] + i * O["o0sp"], it))
        if O["touch"]:
            tz = []
            for j in range(4):
                tz.append([f"s_xor_b32 s4, s70, {j << 4}", "s_mul_i32 s4, s4, 15360", f"buffer_load_dword v{vFL}, v{vAD+1}, {srd(SXB)}, s4 offen nt ;PF"])
            tz.append(out_base(5) + [f"buffer_load_dword v{vFL}, v{vAD+1}, {srd(SOUT)}, s5 offen nt ;PF"])
            for i, it in enumerate(tz): ev.append((O["touch"] + 10 * i, it))
        ev.append((B(12), [poll("F1", "W")]))
        for k in range(3):
            d = dmw(k)
            for i, gr in enumerate([d[0:6], d[6:12], d[12:15]]): ev.append((B(13 + k) + (36 if k < 2 else 0) + 12 * i, gr))
        ev.append((B(15) + O["gp0"], [poll("P0", "O")]))
        g.val[O["gs0"]] += sig_c(0)
        if O["eo2"]:
            g.val[B(15) + O["e2g"] - 2] += chk_c(0)
            for i, ts in enumerate(ldo(2)[:O["e2n"]]): ev.append((B(15) + O["e2g"] + O["e2s"] * i, ts))
    if hh == 0:
        for gp, gr in zip(O["wpf"], wopf()):
            if gp >= 1152: ev.append((gp - 1152, gr))
    for gp in O["hcpf"]: ev.append((gp, [f"buffer_load_dword v{vFL}, v41, s[92:95], s90 offen ;PF"]))
    ev.sort(key=lambda x: x[0])
    cur = 0
    for lo, items in ev:
        gg = max(cur, lo)
        for u in items:
            gg = g.place(u, min(gg, len(mf) - 1), cap=3 if gg >= 66 + 136 * 15 + 32 else 2)
            if u.startswith(("s_add_u32 m0", "buffer")): gg += 1
        cur = gg
    if hh == 1:
        gg = 500
        for t in wd_setup(): gg = g.place(t, gg)
    out = g.lines()
    if O.get("dg") and hh == 1:
        k = out.index("STAMP")
        body = out[:k]
        if "b" in O["dg"]: body = [l for l in body if l != "s_barrier"]
        if "d" in O["dg"]: body = [l for l in body if not l.startswith(("buffer_load_dwordx4", "WAITVM T", "s_add_u32 m0", "s_mov_b32 s48"))]
        if "r" in O["dg"]: body = [l for l in body if not l.startswith("ds_read")]
        if "c" in O["dg"]: body = [l for l in body if not l.startswith("v_cvt")]
        if "e" in O["dg"]: body = [l for l in body if not l.startswith("v_exp")]
        rest = out[k:]
        if "d" in O["dg"]: rest = [l for l in rest if not l.startswith("WAITVM T") and ";T" not in l]
        out = body + rest
    return out

SW2, SOUT, SDBG, SFL, SXB = 20, 24, 60, 32, 56
FLAG_OFF = 0x2900000
XB_OFF = 0x2a00000
sNG, sKG, sWL = 91, 64, 65
sHW, sHO = 74, 78
vW2, vFL, vAO, vAD, vWR = 23, 24, 25, 26, 28
ACC = 112
OPK = 48
acc = lambda j, nt: R("v", ACC + 4 * (j * 9 + nt))
STG = [(0, 0), (0, 1), (1, 0), (2, 0), (3, 0), (1, 1), (2, 1), (3, 1)]
def of(s_, j, m_):
    if s_ == 1: return R("v", OPK + 16 * j + 4 * m_)
    return R("a", (0 if s_ == 0 else [128, 64, 0][(s_ - 2) % 3]) + 16 * j + 4 * m_)
wf = lambda G, k: R("a", 192 + 8 * (G % 4) + 4 * k)
WL = [144, 160, 176, 224, 240, 192, 208, 80, 96]
wl = lambda nt, m_: R("a", WL[nt] + 4 * m_)
def ldo(s_):
    x, hh = STG[s_]
    out = []
    for m_ in range(4):
        for j in range(4):
            out.append(([f"s_add_u32 s68, s{sHO+x}, {(hh * 4 + m_) * 4096}"] if j == 0 else []) +
                       [f"buffer_load_dwordx4 {of(s_, j, m_)}, v{vL16}, {srd(SOW)}, s68 offen offset:{j*1024} sc1 ;PO{s_}{'ab'[m_ >> 1]}"])
    return out
def wopf():
    return [[f"s_mov_b32 s{sT}, {i * 18 * 128}", f"buffer_load_dword v22, v29, {srd(SWO)}, s{sT} offen ;PF"] for i in range(4)]
VWD = [1, 2, 22, 29, 42, 37, 38, 39, 40]
def wd_setup():
    r = []
    for i in range(9):
        r += [f"v_add_u32 v34, {64*i}, v0", "v_mul_u32_u24 v35, 3641, v34", "v_lshrrev_b32 v35, 16, v35", "v_mul_u32_u24 v36, 864, v35",
              f"v_lshl_add_u32 v36, v34, 4, v36", f"v_add_u32 v{VWD[i]}, s66, v36", f"v_subrev_u32 v{VWD[i]}, {(i % 4) * 1024}, v{VWD[i]}"]
    return r
def dmw(s_):
    x, hh = STG[s_]
    out = []
    for i in range(9):
        if i % 4 == 0:
            out += [f"s_add_u32 m0, s{sWL}, {(s_ % 3) * 18432 + i * 1024}", f"s_add_u32 s{sT}, s{sHW+x}, {hh * 128 * 1152}"]
        out.append(f"buffer_load_dwordx4 v{VWD[i]}, {srd(SW2)}, s{sT} offen offset:{(i % 4) * 1024} lds ;PW{s_}")
    return out
def rdw1(dst, s_, m_, nt):
    t, lo = dst[0], int(dst[2:].split(":")[0])
    return [f"ds_read_b64_tr_b16 {t}[{lo+2*h}:{lo+2*h+1}], v{vWR if m_ >= 2 else vW2} offset:{(s_ % 3) * 18432 + (m_ & 1) * 9216 + h * 4608 + nt * 32}" for h in range(2)]
def poll(tag, which):
    sr, so = {"W": (SDBG, 83), "O": (SFL, 82), "X": (SFL, 67)}[which]
    return f"buffer_load_dword v{vFL}, v{vAD+1}, {srd(sr)}, s{so} offen sc1 ;{tag}"
nextpoll = "s_add_u32 s82, s82, 0x10000"
def signal(which):
    if which == "W": return [f"v_mov_b32 v{vAD}, 1", "s_nop 0", f"buffer_atomic_add v{vAD}, v{vAO}, {srd(SDBG)}, s71 offen sc1 ;SG"]
    return [f"buffer_atomic_add v{vAD}, v{vAO}, {srd(SFL)}, s69 offen sc1 ;SG", "s_add_u32 s69, s69, 0x10000"]

def gen_op_setup():
    p = Asm()
    p(f"s_lshr_b32 s{sKG}, s{sHP}, 2\ns_and_b32 s{sNG}, s{sHP}, 3")
    p(f"s_mul_i32 s4, s{sKG}, {1024*1152}\ns_mul_i32 s5, s{sNG}, 288\ns_add_u32 s4, s4, s5")
    p("s_add_u32 s50, s72, s4\ns_addc_u32 s51, s73, 0")
    for x in range(4):
        if x == 0: p(f"s_mov_b32 s4, s{sNG}")
        else: p(f"s_cmp_lt_u32 {x-1}, s{sNG}\ns_cselect_b32 s4, {x-1}, {x}")
        p(f"s_mul_i32 s{sHW+x}, s4, {256*1152}\ns_lshl_b32 s{sHO+x}, s4, 15")
    p(f"v_lshl_add_u32 v34, v31, 2, v32\nv_mul_u32_u24 v34, 288, v34\nv_lshl_add_u32 v{vW2}, v33, 3, v34\nv_add_u32 v{vWR}, 0x10000, v{vW2}")
    p(f"s_lshr_b32 s6, s{sW}, 1\ns_lshl_b32 s6, s6, 16\ns_and_b32 s7, s{sW}, 1\ns_mul_i32 s7, s7, 9216\ns_add_u32 s{sWL}, s6, s7\ns_mul_i32 s66, s{sW}, {32*1152}")
    p(f"s_add_u32 s{SFL}, s88, {FLAG_OFF}\ns_addc_u32 s{SFL+1}, s89, 0\ns_mov_b32 s{SFL+2}, 0x80000\ns_mov_b32 s{SFL+3}, 0x20000")
    p(f"s_add_u32 s72, s88, {XB_OFF}\ns_addc_u32 s73, s89, 0")
    p(f"v_mov_b32 v{vAD+1}, 0\nv_lshlrev_b32 v{vAO}, 19, v0\ns_lshl_b32 s83, s{sBR}, 7")
    p(f"s_lshl_b32 s4, s{sBR}, 3\ns_add_u32 s4, s4, s{sB}\ns_lshl_b32 s5, s4, 2\ns_add_u32 s5, s5, s{sW}\ns_lshl_b32 s5, s5, 2\ns_add_u32 s5, s5, s{sKG}\ns_lshl_b32 s69, s5, 8\ns_mov_b32 s82, s69")
    p(f"s_lshl_b32 s5, s{sNG}, 19\ns_add_u32 s5, s5, s69\nv_lshlrev_b32 v{vAD}, 16, v0\nv_lshrrev_b32 v34, 1, v0\nv_lshl_add_u32 v{vAD}, v34, 19, v{vAD}\nv_add_u32 v{vAD}, s5, v{vAD}")
    p(f"s_lshl_b32 s4, s4, 4\ns_add_u32 s4, s4, s{sHP}\ns_lshl_b32 s4, s4, 2\ns_add_u32 s70, s4, s{sW}")
    p("s_lshl_b32 s67, s70, 8\ns_add_u32 s67, s67, 0x40000")
    p(f"s_lshl_b32 s71, s{sW}, 8\ns_add_u32 s71, s71, s83")
    return p
ZF = lambda: [f"buffer_store_dword v{vAD+1}, v{vAD}, {srd(SFL)}, 0 offen sc1 ;ZF", f"buffer_store_dword v{vAD+1}, v{vAO}, {srd(SFL)}, s67 offen sc1 ;ZF"]
def late_srds():
    r = []
    for sr, lo, n in ((SW2, 50, 1023 * 1152 + 288), (SOUT, 84, 8 * 256 * 1152 * 2), (SDBG, 86, 256), (SXB, 72, 1024 * 15360)):
        r += [f"s_mov_b32 s{sr}, s{lo}", f"s_mov_b32 s{sr+1}, s{lo+1}", f"s_mov_b32 s{sr+2}, {n}", f"s_mov_b32 s{sr+3}, 0x20000"]
    return r

def flag_check(name, shift, want, bits=8):
    return [f"s_mov_b32 s55, 0x20000", f"{name}_RE:",
            f"v_readfirstlane_b32 s53, v{vFL}", "s_nop 0", f"s_bfe_u32 s53, s53, {shift | (bits << 16)}", f"s_cmp_ge_u32 s53, {want}",
            f"s_cbranch_scc0 {name}_SPIN", f"{name}_OK:"]
def flag_spin(name, which):
    cnt = {"FC1": 0, "FC4": 0}.get(name, 1 << (4 * int(name[2:])))
    return [f"{name}_SPIN:"] + ([f"s_add_u32 s49, s49, {cnt}"] if DIAG else []) + ["s_sub_u32 s55, s55, 1", f"s_cbranch_scc1 {name}_OK", f"s_sleep {1 if which == 'X' else 8}", poll("FS", which), "s_waitcnt vmcnt(0)", f"s_branch {name}_RE"]

SEL = 96
def gen_oproj(O):
    D = 2
    DF = O["defer"]
    mf = []; gs_ = []
    for r in range(14):
        s_, h = r >> 1, r & 1
        for nt in range(9):
            gs_.append(len(mf))
            for j in range(1 if s_ >= DF else 0, 4):
                for k in range(2):
                    mf.append(mf16(acc(j, nt), wf(9 * r + nt, k), of(s_, j, 2 * h + k), "0" if (r == 0 and k == 0) else acc(j, nt)))
    L7 = len(mf); gs_.append(L7)
    for j in (1, 2, 3, 0):
        for nt in range(9):
            for m_ in range(4):
                mf.append(mf16(acc(j, nt), wl(nt, m_), of(7, j, m_), acc(j, nt)))
    for s_ in range(DF, 7):
        for nt in range(9):
            for m_ in range(4):
                mf.append(mf16(acc(0, nt), wl(nt, m_), of(s_, 0, m_), acc(0, nt)))
    g = Gaps(mf)
    ST = lambda s_: gs_[18 * s_]
    def rdw(G):
        r, nt = G // 9, G % 9
        return sum((rdw1(wf(G, k), r >> 1, 2 * (r & 1) + k, nt) for k in range(2)), [])
    head = []
    for G in range(D): head += rdw(G)
    BARG = {}
    for G in range(126):
        g0 = gs_[G]; ge = gs_[G + 1] - 1
        if G + D < 126:
            for i, t in enumerate(rdw(G + D)): g.put(g0 + (i if ge - g0 == 7 or G % 18 != 17 - D else i // 2), t)
        if G % 18 == 17 - D:
            s_ = G // 18
            g.put(ge - 1, f"WAITVM PW{s_+1}")
            g.put(ge, "s_waitcnt lgkmcnt(0)"); g.put(ge, "s_barrier"); BARG[s_] = ge
        if G % 18 == 17 and G // 18 >= 1:
            g.put(ge, f"WAITVM PO{G // 18 + 1}{'b' if G // 18 == 6 else 'a'}")
        if G % 18 == 8 and G // 18 >= 2:
            g.put(ge, f"WAITVM PO{G // 18}b")
    gg = BARG[6] + 1
    for nt in range(9):
        for m_ in range(4):
            for t in rdw1(wl(nt, m_), 7, m_, nt): gg = g.place(t, max(gg, L7 if nt >= 5 else 0))
    assert gg < L7 + 30, gg - L7
    for i, s_ in enumerate(range(DF, 7)):
        p0 = L7 + 108 + 36 * i
        for nt in range(9):
            for m_ in range(4):
                for t in rdw1(wl(nt, m_), s_, m_, nt): g.put(p0 + 4 * nt + m_ + 4, t)
    ev = []
    for s_ in range(3, 8):
        d = dmw(s_)
        gs = [d[0:3], d[3:4], d[4:5], d[5:6], d[6:9], d[9:10], d[10:11], d[11:12], d[12:15]]
        ev += [(BARG[s_ - 3] + 1 + (O["wsp"] if s_ < 7 else O["wsp7"]) * i, gr, 1) for i, gr in enumerate(gs)]
    for i, ts in enumerate(o_stores(1)): ev.append((O["osg"] + i * O["ossp"], ts, 1))
    if O["eo2"]:
        for i, ts in enumerate(ldo(2)[O["e2n"]:]): ev.append((1 + 4 * i, ts, 1))
    if not O["eo2"]: ev.append((O["go"] - 2, chk_c(0), 0))
    ev.append((O["gs1"], sig_c(1), 0))
    ev.append((O["gp1"], [poll("P1", "O")], 1))
    ev.append((O["gc1"], chk_c(1), 0))
    n1 = 32 if O["eo2"] else 48
    osp1 = O.get("osp1", O["osp"])
    assert O["go"] + n1 * osp1 <= O["gc1"] + 2 and O["go"] + (n1 - 16) * osp1 >= 144 and O["gc1"] >= 432
    assert O["gc1"] + 2 + 16 * O["osp"] >= 576 and O["gc1"] + 2 + 32 * O["osp"] >= 720
    for g0, ss, sp in ((O["go"], (3, 4) if O["eo2"] else (2, 3, 4), osp1), (O["gc1"] + 2, (5, 6, 7), O["osp"])):
        for i, ts in enumerate(sum((ldo(s_) for s_ in ss), [])): ev.append((g0 + i * sp, ts, 1))
    su = Asm()
    su("v_lshlrev_b32 v34, 2, v31\nv_sub_u32 v34, v30, v34\nv_mov_b32 v35, 0x3f80\nv_mov_b32 v36, 0x3f800000")
    for i in range(2):
        su(f"v_cmp_eq_u32 vcc, {2*i}, v34\nv_mov_b32 v{SEL+2+i}, 0\nv_mov_b32 v{SEL+4+i}, 0\nv_cndmask_b32 v{SEL+i}, 0, v35, vcc")
        su(f"v_cmp_eq_u32 vcc, {2*i+1}, v34\nv_mov_b32 v37, 0\nv_mov_b32 v37, 0\nv_cndmask_b32 v{SEL+i}, v{SEL+i}, v36, vcc\nv_mov_b32 v{SEL+6+i}, v{SEL+i}")
    su(f"v_mul_u32_u24 v9, 304, v30\nv_lshl_add_u32 v9, v31, 3, v9\nv_add_u32 v9, s{sW8K}, v9\nv_add_u32 v9, {SP}, v9")
    for i in range(5):
        su(f"v_add_u32 v34, {64*i}, v0\nv_mul_u32_u24 v35, 3641, v34\nv_lshrrev_b32 v35, 16, v35\nv_mul_u32_u24 v36, 18, v35\nv_sub_u32 v36, v34, v36\nv_lshlrev_b32 v36, 4, v36")
        su(f"v_mul_u32_u24 v34, 304, v35\nv_add3_u32 v{10+i}, v34, v36, s{sW8K}\nv_add_u32 v{10+i}, {SP}, v{10+i}\nv_mul_u32_u24 v34, 2304, v35\nv_add_u32 v{15+i}, v34, v36")
    su("v_cmp_gt_u32 vcc, 32, v0\nv_mov_b32 v34, 0x7fff0000\nv_lshlrev_b32 v8, 3, v0\nv_cndmask_b32 v19, v34, v19, vcc")
    su_lines = su.lines
    for pi, j in enumerate((1, 2, 3)):
        gg = L7 + 36 * pi + 12
        first = True
        for n0 in range(0, 9, 2):
            d = ACC + 4 * (9 * j + n0)
            gg = max(gg, L7 + 36 * pi + 4 * min(n0 + 1, 8) + 3 + 5)
            cv = [f"v_cvt_pk_bf16_f32 v{d}, v{d}, v{d+1}", f"v_cvt_pk_bf16_f32 v{d+1}, v{d+2}, v{d+3}"]
            if n0 < 8: cv += [f"v_cvt_pk_bf16_f32 v{d+2}, v{d+4}, v{d+5}", f"v_cvt_pk_bf16_f32 v{d+3}, v{d+6}, v{d+7}"]
            for t in cv: gg = g.place(t, gg, cap=3 if gg >= L7 + 112 else 2)
            gg += 1
            if first:
                for t in (f"s_xor_b32 s71, s70, {j << 4}", "s_mul_i32 s71, s71, 15360", f"s_add_u32 s71, s71, {(j - 1) * 5120}"): gg = g.place(t, gg)
                first = False
            if n0 == 8:
                gg = g.place("s_add_u32 s71, s71, 4096", gg, cap=3)
                gg = g.place(f"buffer_store_dwordx2 v[{d}:{d+1}], v8, {srd(SXB)}, s71 offen sc1 ;XS{j}", gg, cap=3) + 1
            else:
                gg = g.place(f"buffer_store_dwordx4 v[{d}:{d+3}], v{vL16}, {srd(SXB)}, s71 offen offset:{(n0 // 2) * 1024} sc1 ;XS{j}", gg, cap=3 if gg >= L7 + 112 else 2) + 1
    ev.sort(key=lambda x: x[0])
    cur = 0
    for lo, items, stride in ev:
        gg = max(cur, lo)
        if stride == 0:
            g.val[gg] += items; gg += 1
        else:
            for u in items:
                gg = g.place(u, gg)
                if u.startswith("s_add_u32 m0"): gg += 1
                if u.startswith("buffer"): gg += stride
        cur = gg
    lastw = max(i for i in range(len(mf)) if any(";PW7" in u for u in g.pre[i]))
    gg = lastw + 1
    for t in su_lines: gg = g.place(t, gg)
    assert gg < L7 + 8, gg - L7
    for j, gp in zip((1, 2, 3), O["xsig"]):
        if gp is not None: g.val[L7 + gp] += xsig(j)
    for s_ in (0, 1, 2, 4, 6): g.val[ST(s_ + 1) - 1].append("STAMP2")
    return head + g.lines()

def xsig(j):
    return [f"s_xor_b32 s4, s70, {j << 4}", "s_lshl_b32 s4, s4, 8", "s_add_u32 s4, s4, 0x40000", f"WAITVM XS{j}",
            f"buffer_atomic_add v{vAD}, v{vAO}, {srd(SFL)}, s4 offen sc1 ;SG"]

def out_base(d):
    return [f"s_lshl_b32 s{d}, s{sB}, 4", f"s_lshl_b32 s6, s{sW}, 2", f"s_add_u32 s{d}, s{d}, s6", f"s_add_u32 s{d}, s{d}, s{sKG}", f"s_mul_i32 s{d}, s{d}, {16*2304}",
            f"s_mul_i32 s6, s{sBR}, 1152", f"s_add_u32 s{d}, s{d}, s6", f"s_mul_i32 s6, s{sNG}, 288", f"s_add_u32 s{d}, s{d}, s6"]
def gen_ored(O):
    e = Asm()
    for j, gp in zip((1, 2, 3), O["xsig"]):
        if gp is None: e.lines += xsig(j)
    e("STAMP2")
    e(poll("F4", "X"))
    e.lines += out_base(4) + ["s_mul_i32 s71, s70, 15360"]
    e("s_waitcnt vmcnt(0)")
    e.lines += flag_check("FC4", 0, 3) + ["STAMP2"]
    xr = lambda j, i: 20 * (j - 1) + 4 * i
    for i in range(5):
        for j in (1, 2, 3):
            e(f"s_add_u32 s{sT}, s71, {(j - 1) * 5120 + i * 1024}")
            if i < 4: e(f"buffer_load_dwordx4 {R('a', xr(j, i))}, v{vL16}, {srd(SXB)}, s{sT} offen sc1 ;XL{i}")
            else: e(f"buffer_load_dwordx2 a[{xr(j, i)}:{xr(j, i)+1}], v8, {srd(SXB)}, s{sT} offen sc1 ;XL{i}")
    for j in (1, 2, 3):
        e(f"v_accvgpr_write_b32 a{xr(j, 4)+2}, 0\nv_accvgpr_write_b32 a{xr(j, 4)+3}, 0")
    def fin(nt):
        d = ACC + 4 * nt
        e(f"v_cvt_pk_bf16_f32 v{d}, v{d}, v{d+1}\nv_cvt_pk_bf16_f32 v{d+1}, v{d+2}, v{d+3}")
        e(f"ds_write_b64 v9, v[{d}:{d+1}] offset:{nt*32}")
    for i in range(5):
        e(f"WAITVM XL{i}")
        for t in range(2 if i < 4 else 1):
            for j in (1, 2, 3):
                e(mf16(acc(0, 2 * i + t), R("v", SEL + 4 * t), R("a", xr(j, i)), acc(0, 2 * i + t)))
        if i >= 1:
            e("s_nop 1"); fin(2 * i - 2); fin(2 * i - 1)
    e("s_nop 1"); fin(8)
    e("s_waitcnt lgkmcnt(0)")
    for i in range(5): e(f"ds_read_b128 {R('v', 48+4*i)}, v{10+i}")
    for i in range(5): e(f"buffer_store_dwordx4 {R('v', 48+4*i)}, v{15+i}, {srd(SOUT)}, s4 offen {O['oaux']}")
    return e.lines

STAUX = 'sc1'
DIAG = False
def o_stores(hh):
    return [[f"s_add_u32 s72, s{sHO}, {(hh * 4 + m_) * 4096}",
             f"buffer_store_dwordx4 {of(hh, j, m_)}, v{vL16}, {srd(SOW)}, s72 offen offset:{j*1024} {STAUX} ;OC{hh}"] for m_ in range(4) for j in range(4)]
sig_c = lambda c: [f"WAITVM OC{c}"] + signal("O")
chk_c = lambda c: [f"WAITVM P{c}"] + flag_check(f"FO{c}", 0, 4) + [nextpoll]

def gen_fallback(hh):
    e = Asm(); n = f"FB{hh}"
    T0 = 10 if hh else 34
    e.label(n)
    e("s_waitcnt vmcnt(0) lgkmcnt(0)\ns_mov_b32 s7, m0")
    e("v_and_b32 v38, 1, v31\nv_lshrrev_b32 v39, 1, v31\nv_lshl_add_u32 v38, v38, 1, v39\nv_lshlrev_b32 v38, 4, v38\nv_lshl_add_u32 v38, v30, 8, v38".replace("v38", f"v{T0+4}").replace("v39", f"v{T0+5}"))
    e(f"v_lshl_add_u32 v39, v31, 2, v32\nv_lshlrev_b32 v39, 8, v39\nv_lshl_add_u32 v39, v33, 3, v39\nv_add_u32 v39, s{sW8K}, v39\nv_add_u32 v39, {SP}, v39".replace("v39", f"v{T0+5}"))
    for qb in range(4): e(f"v_mov_b32 v{T0+qb}, 0xff800000")
    kfr = lambda kt, ks: R("a", 192 + 16 * kt + 4 * ks)
    def kload():
        e("s_add_u32 s5, s4, 4096")
        for kt in range(2):
            for ks in range(4): e(f"buffer_load_dwordx4 {kfr(kt, ks)}, v{T0+4}, {srd(SK)}, s{4+kt} offen offset:{ks*64}")
    def qk(neg):
        for qb in range(4):
            for kt in range(2):
                d = R("v", S_ + 8 * qb + 4 * kt)
                for ks in range(4): e(mf16(d, kfr(kt, ks), qf(hh, qb, ks), (R("v", NEGM + 4 * qb) if neg else "0") if ks == 0 else d))
        e("s_nop 7")
    l1 = Asm(); l2 = Asm(); mid = Asm(); top = e
    e = l1
    kload(); e("s_waitcnt vmcnt(0)"); qk(False)
    for i in range(4):
        for qb in range(4): e(f"v_max3_f32 v{T0+qb}, v{T0+qb}, v{S_+8*qb+2*i}, v{S_+8*qb+2*i+1}")
    e = mid
    for op in ("v_permlane16_swap_b32", "v_permlane32_swap_b32"):
        for qb in range(4): e(f"v_mov_b32 v{S_+qb}, v{T0+qb}")
        e("s_nop 1")
        for qb in range(4): e(f"{op} v{T0+qb}, v{S_+qb}")
        for qb in range(4): e(f"v_max_f32 v{T0+qb}, v{T0+qb}, v{S_+qb}")
    for qb in range(4):
        for i in range(4): e(f"v_sub_f32 v{NEGM+4*qb+i}, 0, v{T0+qb}")
    for i in range(128): e(f"v_mov_b32 v{O_+i}, 0")
    for i in range(16): e(f"v_mov_b32 v{L_+i}, 0")
    e = l2
    kload()
    for hf in range(2):
        e(f"s_add_u32 m0, s{sW8K}, {SP + hf * 4096}\ns_nop 0")
        for i in range(4): e(f"buffer_load_dwordx4 v{vL16}, {srd(SV)}, s{4+hf} offen offset:{i*1024} lds")
    e("s_waitcnt vmcnt(0)")
    for dt in range(8):
        for h in range(2): e(f"ds_read_b64_tr_b16 a[{224+4*dt+2*h}:{225+4*dt+2*h}], v{T0+5} offset:{h*4096 + dt*32}")
    qk(True)
    for i in range(32): e(f"v_exp_f32 v{S_+i}, v{S_+i}")
    e("s_nop 0")
    for j in range(16): e(f"v_cvt_pk_bf16_f32 v{P_+j}, v{S_+2*j}, v{S_+2*j+1}")
    e("s_waitcnt lgkmcnt(0)\ns_nop 0")
    for qb in range(4):
        for dt in range(8):
            o = R("v", O_ + 32 * qb + 4 * dt)
            e(mf16(o, R("a", 224 + 4 * dt), R("v", P_ + 4 * qb), o))
        e(mf16(R("v", L_ + 4 * qb), R("v", ONES), R("v", P_ + 4 * qb), R("v", L_ + 4 * qb)))
    redo = (pre_mf(1) + ["s_nop 7"] + pre_valu()) if hh == 0 else []
    lo, hi = hh * 262144, (hh + 1) * 262144
    nxt = lambda lab: ["s_add_u32 s4, s4, 8192", f"s_cmp_lt_u32 s4, {hi}", f"s_cbranch_scc1 {lab}"]
    code = top.lines + [f"s_mov_b32 s4, {lo}", f"{n}_L1:"] + l1.lines + nxt(f"{n}_L1") + mid.lines + [f"s_mov_b32 s4, {lo}", f"{n}_L2:"] + l2.lines + nxt(f"{n}_L2") + redo + ["s_mov_b32 m0, s7", "s_nop 7", f"s_branch {n}_RET"]
    trace = top.lines + l1.lines + nxt("x") + l1.lines + nxt("x") + mid.lines + l2.lines + nxt("x") + l2.lines + nxt("x") + redo + ["s_nop 7"]
    return code, trace

def l_check(hh):
    r = [f"v_cmp_nge_f32 s[{4+2*(qb&1)}:{5+2*(qb&1)}], s{sTH}, v{L_+4*qb}" if qb < 2 else f"v_cmp_nge_f32 {'vcc' if qb == 2 else 's[100:101]'}, s{sTH}, v{L_+4*qb}" for qb in range(4)]
    r += ["s_nop 0", "s_or_b64 s[4:5], s[4:5], s[6:7]", "s_or_b64 vcc, vcc, s[100:101]", "s_or_b64 s[4:5], s[4:5], vcc", f"s_cbranch_scc1 FB{hh}", f"FB{hh}_RET:"]
    return r

def gen_epi(O, last):
    p = Asm()
    p("s_nop 7")
    p.lines += l_check(1 if last else 0)
    rl = lambda qb: 112 + 2 * qb
    for qb in range(4): p(f"v_rcp_f32 v{rl(qb)}, v{L_+4*qb}")
    if not last:
        p.lines += signal("W")
        p.lines += [t for _, t in v_reads(0)]
    for qb in range(4):
        o = O_ + 32 * qb
        for i in range(0, 32, 2):
            p(f"v_pk_mul_f32 v[{o+i}:{o+i+1}], v[{o+i}:{o+i+1}], v[{rl(qb)}:{rl(qb)+1}] op_sel_hi:[1,0]")
        if last:
            for j in range(16): p(f"v_cvt_pk_bf16_f32 v{OPK + 16 * qb + j}, v{o+2*j}, v{o+2*j+1}")
    return p

def stamp(i):
    return [f"s_memtime s[96:97]", "s_memrealtime s[98:99]", "s_waitcnt lgkmcnt(0)", f"v_writelane_b32 v43, s96, {i}", f"v_writelane_b32 v43, s98, {32+i}"]

def gen_kf(stamps=False, **opt):
    st = (lambda i: stamp(i)) if stamps else (lambda i: [])
    O = dict(defer=5, wsp7=9, xsig=(130, 160, 190), touch=0, oaux='', eo2=1, e2g=32, e2s=4, e2n=8, osg=34, la=[(4, 3.2), (16, 2.8), (19, 3.8), (32, 3.8)], dsp=1.0, doff=0, cp2=1, wdv=0, o0g=66+136*11+20, wpf=(1140, 1141, 1142, 1143), o0sp=20, gs0=66+136*14+30, ossp=14, gp0=-20, go=230, gs1=330, gp1=440, gc1=520, osp=8, wsp=14, xd=6, cpf=1, pro=('W0', 'X0', 'W1', 'S1'), ear=('S2', 'W2', 'X1', 'W3'), gpf={'S3': 60, 'S4': 136, 'S5': 264, 3: 392, 'S8': 520}, gcpf=521, gzf=1100, ccap=4, hcpf=(1200,), xaux='', waux='', st=8, xp=92, xs=9, t0=(600, 760), t1=(760, 930))
    O.update(opt)
    global DIAG, XAUX, WAUX, VMLOOK
    VMLOOK = O.get("vml", 6)
    DIAG = stamps; XAUX = O["xaux"]; WAUX = O["waux"]
    pro = gen_prologue().lines
    for it in O["pro"]: pro += early_item(it)
    if O.get("skipkv"):
        pro2 = gen_prologue2(O).lines + ["s_lshr_b32 s4, s2, 3", f"s_mul_i32 s4, s4, {O['skipkv'][0]}", "s_and_b32 s4, s4, 31", f"s_cmp_lt_u32 s4, {O['skipkv'][1]}",
                                         "s_cselect_b32 s100, 0, -1"]
        pro += pro2 + gen_prologue3().lines + gen_addr2().lines + gen_op_setup().lines
    else: pro += gen_prologue2(O).lines + gen_prologue3().lines + gen_addr2().lines + gen_op_setup().lines
    if stamps:
        if O.get("pst"):
            i1 = pro.index("s_waitcnt lgkmcnt(0)")
            i2 = next(i for i, l in enumerate(pro) if l.startswith("buffer_"))
            i3 = next(i for i, l in enumerate(pro) if l.startswith("s_getpc"))
            pro = pro[:i1 + 1] + st(23) + pro[i1 + 1:i2] + st(24) + pro[i2:i3] + st(25) + pro[i3:] + st(26)
        pro = pro[:4] + ["v_mov_b32 v43, 0"] + st(0) + pro[4:]
    qp = gen_qproj(O)
    S_T = ["STAMP"]
    h0 = gen_head(0, O, st); h1 = gen_head(1, O, st)
    epi0 = gen_epi(O, False).lines
    prog = pro + qp[:3] + S_T + qp[3:] + [t for _, t in k_reads(0)] + ["s_nop 1"] + gen_prepass0() + S_T + h0 + S_T + epi0 + S_T + h1 + S_T + \
        gen_epi(O, True).lines + S_T + gen_oproj(O) + S_T + gen_ored(O) + S_T
    nb = []; si = 1
    for l in prog:
        if l == "STAMP": nb += st(si); si += 1
        elif l == "STAMP2":
            if O.get("fine"): nb += st(si); si += 1
        else: nb.append(l)
    if O.get("skipkv"): nb = [l.replace(" nt lds ;T0", " lds ;T0").replace("s[100:101]", "s[6:7]") for l in nb]
    prog = resolve_vm(nb)
    prog, _ = auto_lgkm(prog)
    a = Asm()
    cold = []
    for n, w_ in [("FC1", "W"), ("FC4", "X")] + [(f"FO{c}", "O") for c in range(2)]: cold += flag_spin(n, w_)
    k0 = prog.index("FB0_RET:")
    fb = []
    for hh in range(2):
        code, tr = gen_fallback(hh)
        fb.append(code)
        k = prog.index(f"FB{hh}_RET:")
        assert not chk.check(prog[k - 200:k] + tr + prog[k:k + 300], verbose=False)
    a.lines += prog
    if stamps:
        a("s_waitcnt vmcnt(0)")
        a.lines += st(si)
        print('stamps', si + 1)
        a('v_writelane_b32 v43, s49, 31')
        a(f"s_lshl_b32 s4, s2, 2\ns_add_u32 s4, s4, s{sW}\ns_lshl_b32 s4, s4, 8\ns_add_u32 s4, s4, 0x8000000")
        a("s_mov_b32 s8, s88\ns_mov_b32 s9, s89\ns_mov_b32 s10, 0x10000000\ns_mov_b32 s11, 0x20000\nv_lshlrev_b32 v41, 2, v0")
        a("buffer_store_dword v43, v41, s[8:11], s4 offen")
    a("s_endpgm")
    a.label("K1_COLD")
    a.lines += cold + fb[0] + fb[1]
    a.label("K1_END")
    trace = prog
    errs = chk.check(trace, maxerr=8)
    assert not errs or O.get('diag')
    return a.text()

if __name__ == "__main__":
    import sys
    for name, kw in eval(sys.argv[1] if len(sys.argv) > 1 else "[('kf', {})]"):
        kw.setdefault("stamps", True)
        body = gen_kf(**kw)
        open(name + ".s", "w").write(single_kernel_file(body, 256, 256, 160 * 1024, vgpr=512, accum=256))
```

```python
from g import *
import chk, re
from k2 import WOT_OFF, mf16, R

KR, VR, SP = 0, 65536, 131072
SL = [32768, 98304, 131072]
C_SCALE = 0x3e0293ee
THRESH = 0x53800000

sW = 3
SK, SV, SX, SWQ, SWO, SOW, SWT = 8, 12, 16, 20, 24, 28, 32
SPW, SPX = 56, 60
sWOB = 54
sBR, sB, sHP, sW4K, sW8K, sT, sC, sXO, sKOFF, sIT, sHD, sOO, sTH = 36, 37, 38, 39, 40, 41, 42, 44, 48, 49, 50, 51, 52
srd = lambda s: f"s[{s}:{s+3}]"
vX2, vXR = 42, 39
vX, vWQ, vL16, vKD, vVD, vWA, vKA, vVA, vTMP = 1, 2, 3, 4, 8, 48, 10, 14, 29
ONES, L_, NEGM, P_, S_, O_ = 44, 48, 64, 80, 96, 128
Q_, Q2_, KF, VF = 0, 64, 128, 192

VMLOOK = 6
class Gaps:
    def __init__(self, mf):
        self.mf = mf
        self.pre = [[] for _ in mf]
        self.val = [[] for _ in mf]
        self.used = [0] * len(mf)
    def put(self, g, txt, cost=1):
        (self.val if txt.startswith("v_") else self.pre)[g].append(txt)
        self.used[g] += cost
    def place(self, txt, lo, hi=None, cost=1, cap=2):
        hi = len(self.mf) - 1 if hi is None else hi
        vm = txt.startswith("buffer"); va = txt.startswith("v_")
        for look in ((VMLOOK, 1 << 30) if not va else (1 << 30,)):
            for g in range(lo, min(hi, lo + look) + 1):
                if self.used[g] + cost > cap: continue
                if look == VMLOOK:
                    if vm and self.pre[g]: continue
                    if not vm and any(u.startswith("buffer") for u in self.pre[g]): continue
                self.put(g, txt, cost); return g
        g = min(range(lo, hi + 1), key=lambda x: self.used[x])
        self.put(g, txt, cost)
        return g
    def lines(self):
        out = []
        for m, p, v in zip(self.mf, self.pre, self.val):
            out.append(m); out += p; out += v
        return out

def auto_lgkm(lines, pend=None, age=16):
    out = []
    pend = [] if pend is None else pend
    pos = pend[-1][1] + 1000 if pend else 0
    for l in lines:
        if l.endswith(":") or l.startswith("."):
            out.append(l); continue
        x = chk.I(l)
        if x.kind == "wait" and x.lg is not None:
            pend = pend[len(pend) - x.lg:] if 0 < x.lg < len(pend) else ([] if x.lg == 0 else pend)
        touched = set(x.r + x.w)
        mm = re.search(r'need:(\S+)', l)
        if mm: touched |= set(chk.regs_of(mm.group(1)))
        need = -1
        for i, (rs, _) in enumerate(pend):
            if touched & rs: need = i
        if need >= 0:
            for i, (rs, p) in enumerate(pend):
                if pos - p >= age: need = max(need, i)
            n = len(pend) - 1 - need
            n = min(n, 15)
            out.append(f"s_waitcnt lgkmcnt({n})")
            pend = pend[len(pend) - n:] if n > 0 else []
        out.append(l)
        if x.kind in ("dsr", "dsw"):
            pend.append((set(x.w), pos))
        pos += 1
    return out, pend

def resolve_vm(lines):
    out = []; ops = []; done = -1
    for l in lines:
        if l.startswith("WAITVM"):
            tag = l.split()[1]
            idx = max(i for i, t in enumerate(ops) if t == tag)
            tot = sum(1 for u in lines if u.startswith(("buffer_", "global_")) and ";" in u and u.split(";")[1].split()[0] == tag)
            assert tot == ops.count(tag), (tag, tot, ops.count(tag))
            if idx <= done: continue
            n = len(ops) - 1 - idx
            assert n <= 63
            done = idx
            out.append(f"s_waitcnt vmcnt({n})")
            continue
        mw = re.match(r"s_waitcnt vmcnt\((\d+)\)", l)
        if mw: done = max(done, len(ops) - 1 - int(mw.group(1)))
        if l.startswith(("buffer_", "global_")):
            if len(ops) - 1 - done >= 63:
                out.append("s_waitcnt vmcnt(54)"); done = len(ops) - 1 - 54
            ops.append(l.split(";")[1].split()[0] if ";" in l else None)
        out.append(l)
    return out

def koff_set(tile):
    return [f"s_mov_b32 s{sKOFF}, {tile * 16384}", f"s_add_u32 s{sKOFF}, s{sROT}, {tile * 16384}", f"s_and_b32 s{sKOFF}, s{sKOFF}, 0x3ffff"]
def koff_next():
    return [f"s_add_u32 s{sKOFF}, s{sKOFF}, 16384"]
def kv_dma(tile_slot, soff, tag, which="KV"):
    r = []
    if "K" in which:
        r.append(f"s_add_u32 m0, s{sW4K}, {KR + tile_slot * 16384}")
        for n in range(4):
            r.append(f"buffer_load_dwordx4 v{vKD+n}, {srd(SK)}, {soff} offen offset:{n*1024} nt lds ;{tag}")
    if "V" in which:
        r.append(f"s_add_u32 m0, s{sW4K}, {VR + tile_slot * 16384}")
        for n in range(4):
            r.append(f"buffer_load_dwordx4 v{vVD+(n&1)}, {srd(SV)}, {soff} offen offset:{n*1024} nt lds ;{tag}")
    return r

def gen_prologue():
    p = Asm()
    p("s_cmp_lt_u32 s2, 256\ns_cbranch_scc1 K1_GO\ns_endpgm\nK1_GO:")
    p("s_load_dwordx16 s[64:79], s[0:1], 0\ns_load_dwordx8 s[80:87], s[0:1], 64\ns_load_dwordx2 s[88:89], s[0:1], 96")
    p("s_getpc_b64 s[92:93]\nK1_PC:\ns_mov_b32 s94, K1_COLD-K1_PC\ns_mov_b32 s95, 0x20000\ns_lshr_b32 s90, s2, 3\ns_lshl_b32 s90, s90, 12")
    p("v_lshrrev_b32 v29, 6, v0\nv_and_b32 v41, 7, v0\nv_lshl_add_u32 v41, v29, 3, v41\nv_lshlrev_b32 v41, 7, v41")
    p("buffer_load_dword v22, v41, s[92:95], s90 offen ;PF")
    p(f"v_and_b32 v0, 63, v0\nv_readfirstlane_b32 s{sW}, v29")
    p("s_and_b32 s4, s2, 7\ns_lshr_b32 s5, s2, 3")
    p(f"s_lshr_b32 s{sBR}, s4, 2")
    p(f"s_and_b32 s6, s4, 1\ns_lshl_b32 s6, s6, 2\ns_and_b32 s7, s5, 3\ns_add_u32 s{sB}, s6, s7")
    p(f"s_and_b32 s6, s4, 2\ns_lshl_b32 s6, s6, 2\ns_lshr_b32 s7, s5, 2\ns_add_u32 s{sHP}, s6, s7")
    p(f"s_lshl_b32 s{sW4K}, s{sW}, 12\ns_lshl_b32 s{sW8K}, s{sW}, 13")
    p(f"s_mov_b32 s{sC}, {C_SCALE}\ns_mov_b32 s{sC+1}, {C_SCALE}\ns_mov_b32 s{sTH}, {THRESH}")
    p(f"s_lshr_b32 s6, s{sHP}, 2")
    for qb in range(4): p(f"s_xor_b32 s{sXO+qb}, s6, {qb}\ns_mul_i32 s{sXO+qb}, s{sXO+qb}, 18432")
    p("v_and_b32 v30, 15, v0\nv_lshrrev_b32 v31, 4, v0\nv_bfe_u32 v32, v0, 2, 2\nv_and_b32 v33, 3, v0")
    p(f"v_lshlrev_b32 v{vL16}, 4, v0")
    p("v_and_b32 v34, 1, v29\nv_lshl_add_u32 v34, v34, 2, v31\nv_lshlrev_b32 v34, 1, v34\nv_xor_b32 v34, v34, v30\nv_lshlrev_b32 v34, 4, v34")
    p(f"v_lshl_add_u32 v35, v29, 3, v31\nv_lshl_add_u32 v{vWQ}, v35, 13, v34")
    p("v_lshrrev_b32 v34, 3, v0\nv_lshl_add_u32 v35, v29, 6, v34\nv_mul_u32_u24 v35, 1152, v35")
    p(f"v_and_b32 v36, 7, v0\nv_xor_b32 v36, v36, v31\nv_lshlrev_b32 v36, 4, v36\nv_add_u32 v{vX}, v35, v36\nv_xor_b32 v36, 64, v36\nv_add_u32 v{vX2}, v35, v36")
    p(f"s_lshl_b32 s6, s5, 2\ns_add_u32 s6, s6, s{sW}")
    p(f"s_lshl_b32 s7, s6, 13\ns_and_b32 s53, s{sHP}, 8\ns_lshl_b32 s53, s53, 9\ns_add_u32 s7, s7, s53")
    p("v_and_b32 v37, 31, v0\nv_lshlrev_b32 v37, 7, v37\nv_add_u32 v37, s7, v37")
    p(f"s_and_b32 s53, s{sB}, 4\ns_lshl_b32 s53, s53, 8\ns_lshl_b32 s7, s6, 3\ns_add_u32 s7, s7, s53\ns_mul_i32 s7, s7, 1152")
    p("v_and_b32 v38, 7, v0\nv_mul_u32_u24 v38, 1152, v38\nv_bfe_u32 v36, v0, 3, 1\nv_lshl_add_u32 v38, v36, 7, v38\nv_add_u32 v38, s7, v38")
    p("v_and_b32 v65, 7, v0\nv_mul_u32_u24 v65, 1152, v65\nv_add_u32 v65, s7, v65")
    p(f"s_lshr_b32 s7, s6, 1\ns_lshl_b32 s7, s7, 13\ns_and_b32 s53, s6, 1\ns_lshl_b32 s53, s53, 11\ns_add_u32 s7, s7, s53\ns_and_b32 s53, s{sHP}, 8\ns_lshl_b32 s53, s53, 9\ns_add_u32 s7, s7, s53")
    p("v_lshlrev_b32 v64, 7, v30\nv_add_u32 v64, s7, v64")
    p("s_waitcnt lgkmcnt(0)")
    p(f"s_cmp_eq_u32 s{sBR}, 0")
    for i in range(10): p(f"s_cselect_b32 s{64+i}, s{64+i}, s{74+i}")
    p(f"s_lshl_b32 s4, s{sHP}, 9")
    p(f"s_add_u32 s{SWQ}, s70, s4\ns_addc_u32 s{SWQ+1}, s71, 0\ns_sub_u32 s{SWQ+2}, {576*8192}, s4\ns_mov_b32 s{SWQ+3}, 0x20000")
    p(f"s_mul_i32 s4, s{sB}, 294912")
    p(f"s_add_u32 s{SX}, s64, s4\ns_addc_u32 s{SX+1}, s65, 0\ns_mov_b32 s{SX+2}, 294912\ns_mov_b32 s{SX+3}, 0x20000")
    p(f"s_mov_b32 s{SPW}, s70\ns_mov_b32 s{SPW+1}, s71\ns_mov_b32 s{SPW+2}, {576*8192}\ns_mov_b32 s{SPW+3}, 0x20000")
    p(f"s_mov_b32 s{SPX}, s64\ns_mov_b32 s{SPX+1}, s65\ns_mov_b32 s{SPX+2}, {8*294912}\ns_mov_b32 s{SPX+3}, 0x20000")
    return p

def gen_prologue2(O):
    p = Asm()
    p(f"s_lshl_b32 s4, s{sB}, 4\ns_add_u32 s4, s4, s{sHP}")
    p("s_lshl_b32 s5, s4, 19")
    p(f"s_add_u32 s{SK}, s66, s5\ns_addc_u32 s{SK+1}, s67, 0\ns_mov_b32 s{SK+2}, 0x80000\ns_mov_b32 s{SK+3}, 0x20000")
    p(f"s_add_u32 s{SV}, s68, s5\ns_addc_u32 s{SV+1}, s69, 0\ns_mov_b32 s{SV+2}, 0x80000\ns_mov_b32 s{SV+3}, 0x20000")
    p(f"s_lshr_b32 s5, s{sHP}, 3\ns_mul_i32 s5, s5, {2048*1152}\ns_add_u32 s{SWO}, s72, s5\ns_addc_u32 s{SWO+1}, s73, 0\ns_mov_b32 s{SWO+2}, {2048*1152}\ns_mov_b32 s{SWO+3}, 0x20000")
    p(f"s_lshr_b32 s5, s2, 3\ns_lshl_b32 s5, s5, 2\ns_add_u32 s5, s5, s{sW}\ns_and_b32 s6, s2, 1\ns_lshl_b32 s6, s6, 7\ns_add_u32 s5, s5, s6\ns_mul_i32 s5, s5, {72*128}")
    p("s_mov_b32 s54, s5")
    p(f"s_lshl_b32 s5, s{sBR}, 5\ns_lshl_b32 s6, s{sB}, 2\ns_add_u32 s5, s5, s6\ns_add_u32 s5, s5, s{sW}\ns_lshl_b32 s5, s5, 7")
    p(f"s_and_b32 s6, s{sHP}, 12\ns_lshl_b32 s6, s6, 3\ns_add_u32 s5, s5, s6\ns_lshl_b32 s5, s5, 12")
    p(f"s_add_u32 s{SOW}, s88, s5\ns_addc_u32 s{SOW+1}, s89, 0\ns_mov_b32 s{SOW+2}, {32*4096}\ns_mov_b32 s{SOW+3}, 0x20000")
    return p

def gen_prologue3():
    p = Asm()
    p("v_lshlrev_b32 v35, 12, v31\nv_lshl_add_u32 v35, v32, 8, v35\nv_lshl_add_u32 v35, v33, 3, v35")
    p("v_and_b32 v34, 1, v31\nv_lshl_add_u32 v36, v34, 2, v32\nv_lshl_add_u32 v35, v36, 5, v35")
    for d3 in range(8):
        p(f"v_xor_b32 v36, {d3*32}, v35\nv_add_u32 v{vWA+d3}, 32768, v36\nv_add_u32 v{vWA+8+d3}, 98304, v36")
    p(f"v_lshrrev_b32 v34, 1, v30\nv_xor_b32 v34, v34, v31\nv_lshlrev_b32 v34, 4, v34\nv_lshl_add_u32 v34, v30, 7, v34\nv_lshl_add_u32 v34, v29, 13, v34")
    p(f"v_add_u32 v{vXR}, {SP}, v34\nv_xor_b32 v{vXR+1}, 64, v{vXR}")
    p("v_lshl_add_u32 v34, v29, 4, v31\nv_lshlrev_b32 v34, 8, v34")
    p(f"v_xor_b32 v35, v30, v31\nv_lshl_add_u32 v{vKD}, v35, 4, v34")
    for n in range(1, 4): p(f"v_xor_b32 v{vKD+n}, {n<<6}, v{vKD}")
    p(f"v_lshlrev_b32 v35, 1, v31\nv_xor_b32 v35, v30, v35\nv_lshl_add_u32 v{vVD}, v35, 4, v34\nv_xor_b32 v{vVD+1}, 0x80, v{vVD}")
    return p

WAREA = [49152, 114688, 32768, 98304]
def slab_dma(H):
    ss, hh = H >> 1, H & 1
    r = [f"s_add_u32 m0, s{sW4K}, {WAREA[H % 4]}"]
    for i in range(4):
        kc, h = i >> 1, i & 1
        r.append(f"s_mov_b32 s{sT}, {(ss * 64 + 32 * kc + 4 * h) * 8192 + hh * 256 - i * 1024}")
        r.append(f"buffer_load_dwordx4 v{vWQ}, {srd(SWQ)}, s{sT} offen offset:{i*1024} {WAUX} lds ;W{H}")
    return r

def pf(pr):
    return [f"s_mov_b32 s{sT}, {pr * 128 * 8192}",
            f"buffer_load_dword v22, v37, {srd(SPW)}, s{sT} offen ;PF",
            f"buffer_load_dword v22, v38, {srd(SPX)}, 0 offen offset:{pr * 256} ;PF"]

xf = lambda ss, qb, kc: R("a", 64 + 32 * (ss % 2) + 8 * qb + 4 * kc)
def x_dma(ss, qb):
    r = [f"s_add_u32 m0, s{sW8K}, {SP + qb * 2048}"]
    need = f" need:a[{64+32*((ss-1)%2)+8*qb}:{64+32*((ss-1)%2)+8*qb+7}]" if ss > 0 else ""
    for e in range(2):
        r.append(f"s_add_u32 s{sT}, s{sXO+qb}, {e * 9216 + ss * 128 - e * 1024}")
        r.append(f"buffer_load_dwordx4 v{vX2 if e else vX}, {srd(SX)}, s{sT} offen offset:{e*1024} {XAUX} lds ;X{ss}_{qb}{need}")
    return r
def x_rd(ss, qb):
    return [f"ds_read_b128 {xf(ss, qb, kc)}, v{vXR+kc} offset:{qb*2048}" for kc in range(2)]

def wo_dma():
    r = []
    r.append(f"s_lshr_b32 s4, s{sW}, 1\ns_lshl_b32 s4, s4, 16\ns_and_b32 s5, s{sW}, 1\ns_mul_i32 s5, s5, 9216\ns_add_u32 s4, s4, s5")
    for i in range(9):
        if i % 4 == 0:
            r.append(f"s_add_u32 m0, s4, {(i >> 2) * 4096}")
            r.append(f"s_mov_b32 s{sT}, {(i >> 2) * 4096}")
        r.append(f"buffer_load_dwordx4 v{vWOD}, {srd(SWO)}, s{sT} offen offset:{(i&3)*1024} nt lds ;WO")
    return r

def early_item(it):
    k, n = it[0], int(it[1])
    if k == "W": return slab_dma(n)
    if k == "P": return pf(n)
    if k == "S": return [f"s_mov_b32 s{sT}, {n * 64 * 8192}", f"buffer_load_dword v22, v64, {srd(SPW)}, s{sT} offen ;PF", f"buffer_load_dword v22, v65, {srd(SPX)}, 0 offen offset:{n * 128} ;PF"]
    return sum((x_dma(n, qb) for qb in range(4)), [])

def qacc(dt, qb):
    return R("a", 128 + 16 * dt + 4 * qb) if dt < 8 else R("v", O_ + 32 * qb + 4 * (dt - 8))

def gen_qproj(O):
    D = 3
    NR = 6
    wfr = lambda G, kc: 80 + 8 * (G % NR) + 4 * kc
    def rd(G):
        H, d3 = G // 8, G % 8
        ar = WAREA[H % 4]
        base = vWA + (0 if ar < 65536 else 8) + d3
        extra = ar - (32768 if ar < 65536 else 98304)
        return [f"ds_read_b64_tr_b16 v[{wfr(G,kc)+2*h}:{wfr(G,kc)+2*h+1}], v{base} offset:{extra + 2048*kc + 1024*h}" for kc in range(2) for h in range(2)]
    mf = []
    for G in range(144):
        ss, dt = G // 16, G % 16
        for qb in range(4):
            for kc in range(2):
                c = "0" if (ss == 0 and kc == 0) else qacc(dt, qb)
                mf.append(mf16(qacc(dt, qb), R("v", wfr(G, kc)), xf(ss, qb, kc), c))
    g = Gaps(mf)
    head = ["WAITVM X0_3", "WAITVM W0", "s_barrier"]
    for G in range(D): head += rd(G)
    for qb in range(4): head += x_rd(0, qb)
    BAR = 8 * (7 - D) + 7
    for G in range(144):
        H, d3 = G // 8, G % 8
        g0 = 8 * G
        if G + D < 144:
            for i, t in enumerate(rd(G + D)): g.put(g0 + i, t)
        if d3 == 7 - D:
            if H < 17: g.put(g0 + 6, f"WAITVM W{H+1}")
            g.put(g0 + 7, "s_waitcnt lgkmcnt(0)"); g.put(g0 + 7, "s_barrier")
    ev = []
    for i, it in enumerate(O["ear"]): ev.append((i, early_item(it), 1))
    for pr, gp in O["gpf"].items(): ev.append((gp, pf(pr) if isinstance(pr, int) else early_item(pr), 1))
    ev.append((O["gcpf"], ["buffer_load_dword v22, v41, s[92:95], s90 offen ;PF"], 1))
    for H in range(4, 18):
        sd = slab_dma(H)
        for i in range(4): ev.append((64 * (H - 4) + BAR + 1 + O["st"] * i, [sd[0]] + sd[1 + 2 * i: 3 + 2 * i], 1))
    XP = O["xp"]
    for ss in range(1, 9):
        for qb in range(4):
            gg = 128 * (ss - 1) + XP + O["xs"] * qb
            g.place(f"WAITVM X{ss}_{qb}", gg - 1)
            gg = max(gg, max(i for i in range(len(g.pre)) if f"WAITVM X{ss}_{qb}" in g.pre[i]))
            for t in x_rd(ss, qb): gg = g.place(t, gg)
            if ss < 8: ev.append((gg + O['xd'], x_dma(ss + 1, qb), 1))
    win = lambda H: 64 * H + BAR + 1
    def thin(groups, g_lo, g_hi):
        n = len(groups)
        for i, gr in enumerate(groups):
            ev.append((g_lo + (g_hi - g_lo) * i // n, gr, 1))
    def kv_groups(slot, tile, which):
        r = []
        for ten, base, vo, sr in (("K", KR, lambda n: vKD + n, SK), ("V", VR, lambda n: vVD + (n & 1), SV)):
            if ten not in which: continue
            for n in range(4):
                r.append([f"s_add_u32 m0, s{sW4K}, {base + slot * 16384}", f"s_mov_b32 s{sT}, {tile * 16384}",
                          f"buffer_load_dwordx4 v{vo(n)}, {srd(sr)}, s{sT} offen offset:{n*1024} nt lds ;T{tile}"])
        return r
    thin(kv_groups(0, 0, "KV"), *O["t0"]); thin(kv_groups(1, 1, "KV"), *O["t1"])
    t2 = max(O["t1"][1], win(14))
    thin(kv_groups(2, 2, "K"), t2, t2 + 30)
    t2 = max(t2 + 30, win(15))
    thin(kv_groups(2, 2, "V"), t2, t2 + 30)
    t2 = max(t2 + 30, win(16))
    thin(kv_groups(3, 3, "K"), t2, min(t2 + 30, win(17) - 4))
    ev.append((win(17), kv_dma(3, f"s{sKOFF}", "T3", "V"), 1))
    for gp, gr in zip(O["wpf"], wopf()):
        if gp < 1152: ev.append((gp, gr, 1))
    ev.append((O["gzf"], ZF(), 1))
    if O["kw"]:
        n, L, kth, lo, hi = O["kw"]
        for i in range(n):
            sr = SK if (O["kwv"] == 0 or i % 2 == 0) else SV
            ii = i if O["kwv"] == 0 else i // 2
            ev.append((lo + (hi - lo) * i // n, [f"s_mov_b32 s{sT}, {65536 + ii * 4 * (L // 2) * kth * 256}", f"buffer_load_dword v22, v66, {srd(sr)}, s{sT} offen ;PF"], 1))
    ev.append((win(16) + 50, [f"s_mov_b32 s{sKOFF}, 49152"], 1))
    g.pre[64 * 17 + BAR - 1].insert(0, "WAITVM T0")
    ev.sort(key=lambda x: x[0])
    cur = 0
    for lo, items, stride in ev:
        gg = max(cur, lo + (1 if (lo + 1) % 64 == BAR + 1 else 0))
        for u in items:
            gg = g.place(u, gg)
            if u.startswith("s_add_u32 m0"): gg += 1
            if u.startswith("buffer"): gg += stride
        cur = gg
    rest = []
    gg = 0
    for ks in range(4):
        gg = max(gg, 1024 + 16 * (ks + 1) + 5)
        for t in conv_h0(ks):
            while gg < len(mf) and g.used[gg] >= O["ccap"]: gg += 1
            if gg < len(mf): g.put(gg, t)
            else: rest.append(t)
    if O.get("ssst"):
        for ss in range(9):
            g.pre[128 * ss + 127] += stamp(22 + ss)[:3]
            g.val[128 * ss + 127] += stamp(22 + ss)[3:]
    if O.get("nox"):
        for gg in range(len(g.pre)): g.pre[gg] = [t for t in g.pre[gg] if ";X" not in t and not t.startswith("WAITVM X")]
    if O.get("now"):
        for gg in range(len(g.pre)): g.pre[gg] = [t for t in g.pre[gg] if not re.search(r";W\d", t) and not re.match(r"WAITVM W\d", t)]
    if O.get("nopf"):
        for gg in range(len(g.pre)): g.pre[gg] = [t for t in g.pre[gg] if not re.search(r";PF", t)]
    if O.get("noslow"):
        for gg in range(len(g.pre)): g.pre[gg] = [t for t in g.pre[gg] if not re.search(r";(WO|WT|T\d|PF)", t) and not t.startswith(("WAITVM WO", "WAITVM T"))]
    return head + g.lines() + ["STAMP"] + rest

def gen_addr2():
    p = Asm()
    p("v_and_b32 v34, 1, v31\nv_lshrrev_b32 v35, 1, v31\nv_lshl_add_u32 v34, v34, 1, v35")
    p(f"v_xor_b32 v34, v34, v30\nv_lshlrev_b32 v34, 4, v34\nv_lshl_add_u32 v{vKA}, v30, 8, v34")
    for ks in range(1, 4): p(f"v_xor_b32 v{vKA+ks}, {ks<<6}, v{vKA}")
    p("v_lshl_add_u32 v34, v31, 2, v32\nv_and_b32 v35, 7, v34\nv_lshlrev_b32 v35, 5, v35\nv_lshl_add_u32 v35, v33, 3, v35")
    p(f"v_lshl_add_u32 v34, v34, 8, v35\nv_add_u32 v{vVA}, {VR}, v34")
    for dt in range(1, 8): p(f"v_xor_b32 v{vVA+dt}, {dt<<5}, v{vVA}")
    for i in range(4): p(f"v_mov_b32 v{ONES+i}, 0x3f803f80")
    if KW:
        L, kth = KW[1], KW[2]
        p(f"v_and_b32 v34, {L-1}, v0\nv_lshrrev_b32 v35, 1, v34\nv_mul_u32_u24 v36, {L//2}, v29\nv_add_u32 v35, v35, v36\nv_mul_u32_u24 v35, {kth*256}, v35\nv_and_b32 v34, 1, v34\nv_lshl_add_u32 v66, v34, 7, v35")
    p("v_min_u32 v29, 17, v0\nv_lshlrev_b32 v29, 7, v29\nv_add_u32 v29, s54, v29")
    return p

def conv8(t, dst, pk=False):
    return [[f"v_pk_mul_f32 v[{t+i}:{t+i+1}], v[{t+i}:{t+i+1}], s[{sC}:{sC+1}]" for i in range(0, 8, 2)] if pk else
            [f"v_mul_f32 v{t+i}, s{sC}, v{t+i}" for i in range(8)],
            [f"v_cvt_pk_bf16_f32 v{t+i}, v{t+2*i}, v{t+2*i+1}" for i in range(4)],
            [f"v_permlane16_swap_b32 v{t}, v{t+2}", f"v_permlane16_swap_b32 v{t+1}, v{t+3}"],
            [f"v_accvgpr_write_b32 a{dst+i}, v{t+i}" for i in range(4)]]
def conv_h0(ks):
    out = []
    for q2 in range(2):
        us = []
        for u in range(2):
            qb = 2 * q2 + u; t = 64 + 8 * u
            us.append([[f"v_accvgpr_read_b32 v{t+i}, a{128 + 16 * (2 * ks + (i >> 2)) + 4 * qb + (i & 3)}" for i in range(8)]] + conv8(t, 16 * qb + 4 * ks))
        for stA, stB in zip(*us): out += stA + stB
    return out
def conv_h1(qb):
    us = [conv8(O_ + 32 * qb + 8 * ks, 64 + 16 * qb + 4 * ks, qb == 0) for ks in range(4)]
    return [t for stg in zip(*us) for x in stg for t in x]

kf = lambda kt, ks: R("a", KF + 16 * kt + 4 * ks)
vf = lambda dt, kk: R("a", VF + 8 * dt + 4 * kk)
qf = lambda hh, qb, ks: R("a", 64 * hh + 16 * qb + 4 * ks)
def k_reads(slot):
    return [(kt, f"ds_read_b128 {kf(kt, ks)}, v{vKA+ks} offset:{KR + slot*16384 + kt*4096}") for kt in range(4) for ks in range(4)]
def v_reads(slot):
    return [(dt, f"ds_read_b64_tr_b16 a[{VF+8*dt+4*kk+2*h}:{VF+8*dt+4*kk+2*h+1}], v{vVA+dt} offset:{slot*16384 + kk*8192 + h*4096}") for dt in range(8) for kk in range(2) for h in range(2)]
def mf_qk(hh, qb):
    r = []
    for kt in range(4):
        s = R("v", S_ + 16 * (qb & 1) + 4 * kt)
        for ks in range(4):
            r.append(mf16(s, kf(kt, ks), qf(hh, qb, ks), R("v", NEGM + 4 * qb) if ks == 0 else s))
    return r
def mf_pv(qb, first=False):
    r = []
    for dt in range(8):
        o = R("v", O_ + 32 * qb + 4 * dt)
        for kk in range(2):
            r.append(mf16(o, vf(dt, kk), R("v", P_ + 8 * (qb & 1) + 4 * kk), "0" if (first and kk == 0) else o))
    l = R("v", L_ + 4 * qb)
    for kk in range(2):
        r.append(mf16(l, R("v", ONES), R("v", P_ + 8 * (qb & 1) + 4 * kk), "0" if (first and kk == 0) else l))
    return r
def put_sm(g, g0, n, qb):
    s = S_ + 16 * (qb & 1); pp = P_ + 8 * (qb & 1)
    if n >= 33:
        for i in range(16): g.put(g0 + 2 * i + 1, f"v_exp_f32 v{s+i}, v{s+i}", 2)
        for j in range(8): g.put(g0 + 4 * j + 4, f"v_cvt_pk_bf16_f32 v{pp+j}, v{s+2*j}, v{s+2*j+1}")
    else:
        for i in range(16): g.put(g0 + min(i, n - 1), f"v_exp_f32 v{s+i}, v{s+i}", 2)
        for j in range(8): g.put(g0 + min(2 * j + 2, n - 1), ("s_nop 0\n" if 2 * j + 2 > n - 1 else "") + f"v_cvt_pk_bf16_f32 v{pp+j}, v{s+2*j}, v{s+2*j+1}") if False else None
        for j in range(8):
            gg = min(2 * j + 2, n - 1)
            if 2 * j + 2 > n - 1: g.val[g0 + gg].append("s_nop 0")
            g.put(g0 + gg, f"v_cvt_pk_bf16_f32 v{pp+j}, v{s+2*j}, v{s+2*j+1}")

def pre_mf(hh):
    p = []
    for qb in range(4):
        s = R("v", S_ + 4 * qb)
        for ks in range(4): p.append(mf16(s, kf(0, ks), qf(hh, qb, ks), "0" if ks == 0 else s))
    return p
def pre_valu():
    p = []
    m = lambda qb: vTMP + 5 + qb
    t = lambda qb: S_ + 4 * qb
    for qb in range(4):
        s = S_ + 4 * qb
        p.append(f"v_max3_f32 v{m(qb)}, v{s}, v{s+1}, v{s+2}")
    for qb in range(4): p.append(f"v_max_f32 v{m(qb)}, v{m(qb)}, v{S_+4*qb+3}")
    for op in ("v_permlane16_swap_b32", "v_permlane32_swap_b32"):
        for qb in range(4): p.append(f"v_mov_b32 v{t(qb)}, v{m(qb)}")
        for qb in range(4): p.append(f"{op} v{m(qb)}, v{t(qb)}")
        for qb in range(4): p.append(f"v_max_f32 v{m(qb)}, v{m(qb)}, v{t(qb)}")
    for qb in range(4):
        for i in range(4): p.append(f"v_sub_f32 v{NEGM+4*qb+i}, 0, v{m(qb)}")
    return p
def gen_prepass0():
    cv = conv_h1(0)
    g = Gaps(pre_mf(0))
    for i, (_, t) in enumerate(v_reads(0)): g.put(i // 2, t)
    for i, t in enumerate(cv[16:48]): g.put(i // 2, t)
    return cv[:16] + g.lines() + cv[48:] + pre_valu() + ["s_nop 1"]
def pack_o0(qb):
    o = O_ + 32 * qb
    return [f"v_cvt_pk_bf16_f32 v{o+j}, v{o+2*j}, v{o+2*j+1}" for j in range(16)] + [f"v_accvgpr_write_b32 a{16*qb+j}, v{o+j}" for j in range(16)]

def kv_events(O):
    ev = []
    la = O["la"]
    def LA(x):
        for (x0, y0), (x1, y1) in zip(la, la[1:]):
            if x <= x1: return y0 + (y1 - y0) * (x - x0) / (x1 - x0)
        return la[-1][1]
    for n in range(224):
        tile, i = 4 + n // 8, n % 8
        x = tile + O["dsp"] * i / 8
        pos = int(66 + 136 * (x - LA(x))) + O["doff"]
        assert pos >= 66 + 136 * (tile - 4)
        it = []
        if i == 0: it.append(f"s_mov_b32 s{sKOFF}, {tile * 16384}" if not O.get("skipkv") else f"s_and_b32 s{sKOFF}, s100, {tile * 16384}")
        if i % 4 == 0 or tile >= 29: it.append(f"s_add_u32 m0, s{sW4K}, {(KR if i < 4 else VR) + (tile % 4) * 16384}")
        vo, sr = (vKD + i, SK) if i < 4 else (vVD + (i & 1), SV)
        it.append(f"buffer_load_dwordx4 v{vo}, {srd(sr)}, s{sKOFF} offen offset:{(i % 4) * 1024} nt lds ;T{tile}")
        ev.append((pos, it))
    return ev

def gen_head(hh, O, st):
    mf = mf_qk(hh, 0) + mf_qk(hh, 1) + mf_qk(hh, 2) + mf_pv(0, True)
    for t in range(15):
        f = t == 0
        mf += mf_qk(hh, 3) + mf_pv(1, f) + mf_pv(2, f) + mf_qk(hh, 0) + mf_pv(3, f) + mf_qk(hh, 1) + mf_qk(hh, 2) + mf_pv(0)
    mf += mf_qk(hh, 3) + mf_pv(1) + mf_pv(2) + (pre_mf(1) if hh == 0 else []) + mf_pv(3)
    g = Gaps(mf)
    put_sm(g, 16, 16, 0); put_sm(g, 32, 34, 1)
    for t in range(16):
        g0 = 66 + 136 * t; T = 16 * hh + t
        bar = ([f"WAITVM T{T+1}"] if T < 31 else ["WAITVM PW0"]) + ["s_barrier"]
        if T == 29: bar = ["WAITVM F1"] + flag_check("FC1", 0, 128) + bar
        g.val[g0 - 1] += bar; g.used[g0 - 1] += 2
        if hh == 1 and t >= 12: g.val[g0 - 1].insert(0, "STAMP")
        if t == 15 and hh == 0:
            put_sm(g, g0, 34, 2); put_sm(g, g0 + 34, 34, 3)
            gg = g0
            for kt, tx in k_reads(0): gg = g.place(tx, max(gg, g0 + 4 * kt + 3)) + 1
            g.put(g0 + 48, "s_waitcnt lgkmcnt(0)")
            for i, tx in enumerate(pre_valu()): g.put(min(g0 + 72 + i // 3, len(mf) - 1), tx)
            break
        if t == 15:
            put_sm(g, g0, 34, 2); put_sm(g, g0 + 34, 18, 3)
            g.val[g0 + 51].append("s_nop 1")
            break
        for i, qb in enumerate([2, 3, 0, 1]): put_sm(g, g0 + 34 * i, 34, qb)
        nslot = (t + 1) % 4
        gg = g0
        for kt, tx in k_reads(nslot): gg = g.place(tx, max(gg, g0 + 4 * kt + 3)) + 1
        g.put(g0 + 48, "s_waitcnt lgkmcnt(0)")
        gg = g0
        for dt, tx in v_reads(nslot): gg = g.place(tx, max(gg, g0 + 68 + 2 * dt + 1))
        assert gg < g0 + 110
        g.put(g0 + 116, "s_waitcnt lgkmcnt(0)")
    if hh == 0:
        for qb, (lo, hi, cap) in ((1, (0, 15, 5)), (2, (32, 90, 3)), (3, (66, 130, 3))):
            gg = lo
            for t in conv_h1(qb):
                while g.used[gg] >= cap: gg += 1
                assert gg <= hi, (qb, gg)
                g.put(gg, t)
        gg = 300
        for t in late_srds()[8:] + (["s_mov_b32 s49, 0"] if DIAG else []): gg = g.place(t, gg)
    else:
        for qb, (lo, hi, cap) in ((0, (0, 15, 4)), (1, (0, 15, 4)), (2, (32, 90, 3)), (3, (66, 130, 2))):
            gg = lo
            for t in pack_o0(qb):
                while g.used[gg] >= cap: gg += 1
                assert gg <= hi, (qb, gg)
                g.put(gg, t)
        gg = 700
        for t in late_srds()[:8]: gg = g.place(t, gg)
    ev = [(p_ - 2176 * hh, it) for p_, it in kv_events(O) if 2176 * hh <= p_ < 2176 * (hh + 1)]
    if hh == 1:
        B = lambda t: 66 + 136 * t
        for i, it in enumerate(o_stores(0)): ev.append((O["o0g"] + i * O["o0sp"], it))
        if O["touch"]:
            tz = []
            for j in range(4):
                tz.append([f"s_xor_b32 s4, s70, {j << 4}", "s_mul_i32 s4, s4, 15360", f"buffer_load_dword v{vFL}, v{vAD+1}, {srd(SXB)}, s4 offen nt ;PF"])
            tz.append(out_base(5) + [f"buffer_load_dword v{vFL}, v{vAD+1}, {srd(SOUT)}, s5 offen nt ;PF"])
            for i, it in enumerate(tz): ev.append((O["touch"] + 10 * i, it))
        ev.append((B(12), [poll("F1", "W")]))
        for k in range(3):
            d = dmw(k)
            for i, gr in enumerate([d[0:6], d[6:12], d[12:15]]): ev.append((B(13 + k) + (36 if k < 2 else 0) + 12 * i, gr))
        ev.append((B(15) + O["gp0"], [poll("P0", "O")]))
        g.val[O["gs0"]] += sig_c(0)
        if O["eo2"]:
            g.val[B(15) + O["e2g"] - 2] += chk_c(0)
            for i, ts in enumerate(ldo(2)[:O["e2n"]]): ev.append((B(15) + O["e2g"] + O["e2s"] * i, ts))
    if hh == 0:
        for gp, gr in zip(O["wpf"], wopf()):
            if gp >= 1152: ev.append((gp - 1152, gr))
    for gp in O["hcpf"]: ev.append((gp, [f"buffer_load_dword v{vFL}, v41, s[92:95], s90 offen ;PF"]))
    ev.sort(key=lambda x: x[0])
    cur = 0
    for lo, items in ev:
        gg = max(cur, lo)
        for u in items:
            gg = g.place(u, min(gg, len(mf) - 1), cap=3 if gg >= 66 + 136 * 15 + 32 else 2)
            if u.startswith(("s_add_u32 m0", "buffer")): gg += 1
        cur = gg
    if hh == 1:
        gg = 500
        for t in wd_setup(): gg = g.place(t, gg)
    out = g.lines()
    if O.get("dg") and hh == 1:
        k = out.index("STAMP")
        body = out[:k]
        if "b" in O["dg"]: body = [l for l in body if l != "s_barrier"]
        if "d" in O["dg"]: body = [l for l in body if not l.startswith(("buffer_load_dwordx4", "WAITVM T", "s_add_u32 m0", "s_mov_b32 s48"))]
        if "r" in O["dg"]: body = [l for l in body if not l.startswith("ds_read")]
        if "c" in O["dg"]: body = [l for l in body if not l.startswith("v_cvt")]
        if "e" in O["dg"]: body = [l for l in body if not l.startswith("v_exp")]
        rest = out[k:]
        if "d" in O["dg"]: rest = [l for l in rest if not l.startswith("WAITVM T") and ";T" not in l]
        out = body + rest
    return out

SW2, SOUT, SDBG, SFL, SXB = 20, 24, 60, 32, 56
FLAG_OFF = 0x2900000
XB_OFF = 0x2a00000
sNG, sKG, sWL = 91, 64, 65
sHW, sHO = 74, 78
vW2, vFL, vAO, vAD, vWR = 23, 24, 25, 26, 28
ACC = 112
OPK = 48
acc = lambda j, nt: R("v", ACC + 4 * (j * 9 + nt))
STG = [(0, 0), (0, 1), (1, 0), (2, 0), (3, 0), (1, 1), (2, 1), (3, 1)]
def of(s_, j, m_):
    if s_ == 1: return R("v", OPK + 16 * j + 4 * m_)
    return R("a", (0 if s_ == 0 else [128, 64, 0][(s_ - 2) % 3]) + 16 * j + 4 * m_)
wf = lambda G, k: R("a", 192 + 8 * (G % 4) + 4 * k)
WL = [144, 160, 176, 224, 240, 192, 208, 80, 96]
wl = lambda nt, m_: R("a", WL[nt] + 4 * m_)
def ldo(s_):
    x, hh = STG[s_]
    out = []
    for m_ in range(4):
        for j in range(4):
            out.append(([f"s_add_u32 s68, s{sHO+x}, {(hh * 4 + m_) * 4096}"] if j == 0 else []) +
                       [f"buffer_load_dwordx4 {of(s_, j, m_)}, v{vL16}, {srd(SOW)}, s68 offen offset:{j*1024} sc1 ;PO{s_}{'ab'[m_ >> 1]}"])
    return out
def wopf():
    return [[f"s_mov_b32 s{sT}, {i * 18 * 128}", f"buffer_load_dword v22, v29, {srd(SWO)}, s{sT} offen ;PF"] for i in range(4)]
VWD = [1, 2, 22, 29, 42, 37, 38, 39, 40]
def wd_setup():
    r = []
    for i in range(9):
        r += [f"v_add_u32 v34, {64*i}, v0", "v_mul_u32_u24 v35, 3641, v34", "v_lshrrev_b32 v35, 16, v35", "v_mul_u32_u24 v36, 864, v35",
              f"v_lshl_add_u32 v36, v34, 4, v36", f"v_add_u32 v{VWD[i]}, s66, v36", f"v_subrev_u32 v{VWD[i]}, {(i % 4) * 1024}, v{VWD[i]}"]
    return r
def dmw(s_):
    x, hh = STG[s_]
    out = []
    for i in range(9):
        if i % 4 == 0:
            out += [f"s_add_u32 m0, s{sWL}, {(s_ % 3) * 18432 + i * 1024}", f"s_add_u32 s{sT}, s{sHW+x}, {hh * 128 * 1152}"]
        out.append(f"buffer_load_dwordx4 v{VWD[i]}, {srd(SW2)}, s{sT} offen offset:{(i % 4) * 1024} lds ;PW{s_}")
    return out
def rdw1(dst, s_, m_, nt):
    t, lo = dst[0], int(dst[2:].split(":")[0])
    return [f"ds_read_b64_tr_b16 {t}[{lo+2*h}:{lo+2*h+1}], v{vWR if m_ >= 2 else vW2} offset:{(s_ % 3) * 18432 + (m_ & 1) * 9216 + h * 4608 + nt * 32}" for h in range(2)]
def poll(tag, which):
    sr, so = {"W": (SDBG, 83), "O": (SFL, 82), "X": (SFL, 67)}[which]
    return f"buffer_load_dword v{vFL}, v{vAD+1}, {srd(sr)}, s{so} offen sc1 ;{tag}"
nextpoll = "s_add_u32 s82, s82, 0x10000"
def signal(which):
    if which == "W": return [f"v_mov_b32 v{vAD}, 1", "s_nop 0", f"buffer_atomic_add v{vAD}, v{vAO}, {srd(SDBG)}, s71 offen sc1 ;SG"]
    return [f"buffer_atomic_add v{vAD}, v{vAO}, {srd(SFL)}, s69 offen sc1 ;SG", "s_add_u32 s69, s69, 0x10000"]

def gen_op_setup():
    p = Asm()
    p(f"s_lshr_b32 s{sKG}, s{sHP}, 2\ns_and_b32 s{sNG}, s{sHP}, 3")
    p(f"s_mul_i32 s4, s{sKG}, {1024*1152}\ns_mul_i32 s5, s{sNG}, 288\ns_add_u32 s4, s4, s5")
    p("s_add_u32 s50, s72, s4\ns_addc_u32 s51, s73, 0")
    for x in range(4):
        if x == 0: p(f"s_mov_b32 s4, s{sNG}")
        else: p(f"s_cmp_lt_u32 {x-1}, s{sNG}\ns_cselect_b32 s4, {x-1}, {x}")
        p(f"s_mul_i32 s{sHW+x}, s4, {256*1152}\ns_lshl_b32 s{sHO+x}, s4, 15")
    p(f"v_lshl_add_u32 v34, v31, 2, v32\nv_mul_u32_u24 v34, 288, v34\nv_lshl_add_u32 v{vW2}, v33, 3, v34\nv_add_u32 v{vWR}, 0x10000, v{vW2}")
    p(f"s_lshr_b32 s6, s{sW}, 1\ns_lshl_b32 s6, s6, 16\ns_and_b32 s7, s{sW}, 1\ns_mul_i32 s7, s7, 9216\ns_add_u32 s{sWL}, s6, s7\ns_mul_i32 s66, s{sW}, {32*1152}")
    p(f"s_add_u32 s{SFL}, s88, {FLAG_OFF}\ns_addc_u32 s{SFL+1}, s89, 0\ns_mov_b32 s{SFL+2}, 0x80000\ns_mov_b32 s{SFL+3}, 0x20000")
    p(f"s_add_u32 s72, s88, {XB_OFF}\ns_addc_u32 s73, s89, 0")
    p(f"v_mov_b32 v{vAD+1}, 0\nv_lshlrev_b32 v{vAO}, 19, v0\ns_lshl_b32 s83, s{sBR}, 7")
    p(f"s_lshl_b32 s4, s{sBR}, 3\ns_add_u32 s4, s4, s{sB}\ns_lshl_b32 s5, s4, 2\ns_add_u32 s5, s5, s{sW}\ns_lshl_b32 s5, s5, 2\ns_add_u32 s5, s5, s{sKG}\ns_lshl_b32 s69, s5, 8\ns_mov_b32 s82, s69")
    p(f"s_lshl_b32 s5, s{sNG}, 19\ns_add_u32 s5, s5, s69\nv_lshlrev_b32 v{vAD}, 16, v0\nv_lshrrev_b32 v34, 1, v0\nv_lshl_add_u32 v{vAD}, v34, 19, v{vAD}\nv_add_u32 v{vAD}, s5, v{vAD}")
    p(f"s_lshl_b32 s4, s4, 4\ns_add_u32 s4, s4, s{sHP}\ns_lshl_b32 s4, s4, 2\ns_add_u32 s70, s4, s{sW}")
    p("s_lshl_b32 s67, s70, 8\ns_add_u32 s67, s67, 0x40000")
    p(f"s_lshl_b32 s71, s{sW}, 8\ns_add_u32 s71, s71, s83")
    return p
ZF = lambda: [f"buffer_store_dword v{vAD+1}, v{vAD}, {srd(SFL)}, 0 offen sc1 ;ZF", f"buffer_store_dword v{vAD+1}, v{vAO}, {srd(SFL)}, s67 offen sc1 ;ZF"]
def late_srds():
    r = []
    for sr, lo, n in ((SW2, 50, 1023 * 1152 + 288), (SOUT, 84, 8 * 256 * 1152 * 2), (SDBG, 86, 256), (SXB, 72, 1024 * 15360)):
        r += [f"s_mov_b32 s{sr}, s{lo}", f"s_mov_b32 s{sr+1}, s{lo+1}", f"s_mov_b32 s{sr+2}, {n}", f"s_mov_b32 s{sr+3}, 0x20000"]
    return r

def flag_check(name, shift, want, bits=8):
    return [f"s_mov_b32 s55, 0x20000", f"{name}_RE:",
            f"v_readfirstlane_b32 s53, v{vFL}", "s_nop 0", f"s_bfe_u32 s53, s53, {shift | (bits << 16)}", f"s_cmp_ge_u32 s53, {want}",
            f"s_cbranch_scc0 {name}_SPIN", f"{name}_OK:"]
def flag_spin(name, which):
    cnt = {"FC1": 0, "FC4": 0}.get(name, 1 << (4 * int(name[2:])))
    return [f"{name}_SPIN:"] + ([f"s_add_u32 s49, s49, {cnt}"] if DIAG else []) + ["s_sub_u32 s55, s55, 1", f"s_cbranch_scc1 {name}_OK", f"s_sleep {1 if which == 'X' else 8}", poll("FS", which), "s_waitcnt vmcnt(0)", f"s_branch {name}_RE"]

SEL = 96
def gen_oproj(O):
    D = 2
    DF = O["defer"]
    mf = []; gs_ = []
    for r in range(14):
        s_, h = r >> 1, r & 1
        for nt in range(9):
            gs_.append(len(mf))
            for j in range(1 if s_ >= DF else 0, 4):
                for k in range(2):
                    mf.append(mf16(acc(j, nt), wf(9 * r + nt, k), of(s_, j, 2 * h + k), "0" if (r == 0 and k == 0) else acc(j, nt)))
    L7 = len(mf); gs_.append(L7)
    for j in (1, 2, 3, 0):
        for nt in range(9):
            for m_ in range(4):
                mf.append(mf16(acc(j, nt), wl(nt, m_), of(7, j, m_), acc(j, nt)))
    for s_ in range(DF, 7):
        for nt in range(9):
            for m_ in range(4):
                mf.append(mf16(acc(0, nt), wl(nt, m_), of(s_, 0, m_), acc(0, nt)))
    g = Gaps(mf)
    ST = lambda s_: gs_[18 * s_]
    def rdw(G):
        r, nt = G // 9, G % 9
        return sum((rdw1(wf(G, k), r >> 1, 2 * (r & 1) + k, nt) for k in range(2)), [])
    head = []
    for G in range(D): head += rdw(G)
    BARG = {}
    for G in range(126):
        g0 = gs_[G]; ge = gs_[G + 1] - 1
        if G + D < 126:
            for i, t in enumerate(rdw(G + D)): g.put(g0 + (i if ge - g0 == 7 or G % 18 != 17 - D else i // 2), t)
        if G % 18 == 17 - D:
            s_ = G // 18
            g.put(ge - 1, f"WAITVM PW{s_+1}")
            g.put(ge, "s_waitcnt lgkmcnt(0)"); g.put(ge, "s_barrier"); BARG[s_] = ge
        if G % 18 == 17 and G // 18 >= 1:
            g.put(ge, f"WAITVM PO{G // 18 + 1}{'b' if G // 18 == 6 else 'a'}")
        if G % 18 == 8 and G // 18 >= 2:
            g.put(ge, f"WAITVM PO{G // 18}b")
    gg = BARG[6] + 1
    for nt in range(9):
        for m_ in range(4):
            for t in rdw1(wl(nt, m_), 7, m_, nt): gg = g.place(t, max(gg, L7 if nt >= 5 else 0))
    assert gg < L7 + 30, gg - L7
    for i, s_ in enumerate(range(DF, 7)):
        p0 = L7 + 108 + 36 * i
        for nt in range(9):
            for m_ in range(4):
                for t in rdw1(wl(nt, m_), s_, m_, nt): g.put(p0 + 4 * nt + m_ + 4, t)
    ev = []
    for s_ in range(3, 8):
        d = dmw(s_)
        gs = [d[0:3], d[3:4], d[4:5], d[5:6], d[6:9], d[9:10], d[10:11], d[11:12], d[12:15]]
        ev += [(BARG[s_ - 3] + 1 + (O["wsp"] if s_ < 7 else O["wsp7"]) * i, gr, 1) for i, gr in enumerate(gs)]
    for i, ts in enumerate(o_stores(1)): ev.append((O["osg"] + i * O["ossp"], ts, 1))
    if O["eo2"]:
        for i, ts in enumerate(ldo(2)[O["e2n"]:]): ev.append((1 + 4 * i, ts, 1))
    if not O["eo2"]: ev.append((O["go"] - 2, chk_c(0), 0))
    ev.append((O["gs1"], sig_c(1), 0))
    ev.append((O["gp1"], [poll("P1", "O")], 1))
    ev.append((O["gc1"], chk_c(1), 0))
    n1 = 32 if O["eo2"] else 48
    osp1 = O.get("osp1", O["osp"])
    assert O["go"] + n1 * osp1 <= O["gc1"] + 2 and O["go"] + (n1 - 16) * osp1 >= 144 and O["gc1"] >= 432
    assert O["gc1"] + 2 + 16 * O["osp"] >= 576 and O["gc1"] + 2 + 32 * O["osp"] >= 720
    for g0, ss, sp in ((O["go"], (3, 4) if O["eo2"] else (2, 3, 4), osp1), (O["gc1"] + 2, (5, 6, 7), O["osp"])):
        for i, ts in enumerate(sum((ldo(s_) for s_ in ss), [])): ev.append((g0 + i * sp, ts, 1))
    su = Asm()
    su("v_lshlrev_b32 v34, 2, v31\nv_sub_u32 v34, v30, v34\nv_mov_b32 v35, 0x3f80\nv_mov_b32 v36, 0x3f800000")
    for i in range(2):
        su(f"v_cmp_eq_u32 vcc, {2*i}, v34\nv_mov_b32 v{SEL+2+i}, 0\nv_mov_b32 v{SEL+4+i}, 0\nv_cndmask_b32 v{SEL+i}, 0, v35, vcc")
        su(f"v_cmp_eq_u32 vcc, {2*i+1}, v34\nv_mov_b32 v37, 0\nv_mov_b32 v37, 0\nv_cndmask_b32 v{SEL+i}, v{SEL+i}, v36, vcc\nv_mov_b32 v{SEL+6+i}, v{SEL+i}")
    su(f"v_mul_u32_u24 v9, 304, v30\nv_lshl_add_u32 v9, v31, 3, v9\nv_add_u32 v9, s{sW8K}, v9\nv_add_u32 v9, {SP}, v9")
    for i in range(5):
        su(f"v_add_u32 v34, {64*i}, v0\nv_mul_u32_u24 v35, 3641, v34\nv_lshrrev_b32 v35, 16, v35\nv_mul_u32_u24 v36, 18, v35\nv_sub_u32 v36, v34, v36\nv_lshlrev_b32 v36, 4, v36")
        su(f"v_mul_u32_u24 v34, 304, v35\nv_add3_u32 v{10+i}, v34, v36, s{sW8K}\nv_add_u32 v{10+i}, {SP}, v{10+i}\nv_mul_u32_u24 v34, 2304, v35\nv_add_u32 v{15+i}, v34, v36")
    su("v_cmp_gt_u32 vcc, 32, v0\nv_mov_b32 v34, 0x7fff0000\nv_lshlrev_b32 v8, 3, v0\nv_cndmask_b32 v19, v34, v19, vcc")
    su_lines = su.lines
    for pi, j in enumerate((1, 2, 3)):
        gg = L7 + 36 * pi + 12
        first = True
        for n0 in range(0, 9, 2):
            d = ACC + 4 * (9 * j + n0)
            gg = max(gg, L7 + 36 * pi + 4 * min(n0 + 1, 8) + 3 + 5)
            cv = [f"v_cvt_pk_bf16_f32 v{d}, v{d}, v{d+1}", f"v_cvt_pk_bf16_f32 v{d+1}, v{d+2}, v{d+3}"]
            if n0 < 8: cv += [f"v_cvt_pk_bf16_f32 v{d+2}, v{d+4}, v{d+5}", f"v_cvt_pk_bf16_f32 v{d+3}, v{d+6}, v{d+7}"]
            for t in cv: gg = g.place(t, gg, cap=3 if gg >= L7 + 112 else 2)
            gg += 1
            if first:
                for t in (f"s_xor_b32 s71, s70, {j << 4}", "s_mul_i32 s71, s71, 15360", f"s_add_u32 s71, s71, {(j - 1) * 5120}"): gg = g.place(t, gg)
                first = False
            if n0 == 8:
                gg = g.place("s_add_u32 s71, s71, 4096", gg, cap=3)
                gg = g.place(f"buffer_store_dwordx2 v[{d}:{d+1}], v8, {srd(SXB)}, s71 offen sc1 ;XS{j}", gg, cap=3) + 1
            else:
                gg = g.place(f"buffer_store_dwordx4 v[{d}:{d+3}], v{vL16}, {srd(SXB)}, s71 offen offset:{(n0 // 2) * 1024} sc1 ;XS{j}", gg, cap=3 if gg >= L7 + 112 else 2) + 1
    ev.sort(key=lambda x: x[0])
    cur = 0
    for lo, items, stride in ev:
        gg = max(cur, lo)
        if stride == 0:
            g.val[gg] += items; gg += 1
        else:
            for u in items:
                gg = g.place(u, gg)
                if u.startswith("s_add_u32 m0"): gg += 1
                if u.startswith("buffer"): gg += stride
        cur = gg
    lastw = max(i for i in range(len(mf)) if any(";PW7" in u for u in g.pre[i]))
    gg = lastw + 1
    for t in su_lines: gg = g.place(t, gg)
    assert gg < L7 + 8, gg - L7
    for j, gp in zip((1, 2, 3), O["xsig"]):
        if gp is not None: g.val[L7 + gp] += xsig(j)
    for s_ in (0, 1, 2, 4, 6): g.val[ST(s_ + 1) - 1].append("STAMP2")
    return head + g.lines()

def xsig(j):
    return [f"s_xor_b32 s4, s70, {j << 4}", "s_lshl_b32 s4, s4, 8", "s_add_u32 s4, s4, 0x40000", f"WAITVM XS{j}",
            f"buffer_atomic_add v{vAD}, v{vAO}, {srd(SFL)}, s4 offen sc1 ;SG"]

def out_base(d):
    return [f"s_lshl_b32 s{d}, s{sB}, 4", f"s_lshl_b32 s6, s{sW}, 2", f"s_add_u32 s{d}, s{d}, s6", f"s_add_u32 s{d}, s{d}, s{sKG}", f"s_mul_i32 s{d}, s{d}, {16*2304}",
            f"s_mul_i32 s6, s{sBR}, 1152", f"s_add_u32 s{d}, s{d}, s6", f"s_mul_i32 s6, s{sNG}, 288", f"s_add_u32 s{d}, s{d}, s6"]
def gen_ored(O):
    e = Asm()
    for j, gp in zip((1, 2, 3), O["xsig"]):
        if gp is None: e.lines += xsig(j)
    e("STAMP2")
    e(poll("F4", "X"))
    e.lines += out_base(4) + ["s_mul_i32 s71, s70, 15360"]
    e("s_waitcnt vmcnt(0)")
    e.lines += flag_check("FC4", 0, 3) + ["STAMP2"]
    xr = lambda j, i: 20 * (j - 1) + 4 * i
    for i in range(5):
        for j in (1, 2, 3):
            e(f"s_add_u32 s{sT}, s71, {(j - 1) * 5120 + i * 1024}")
            if i < 4: e(f"buffer_load_dwordx4 {R('a', xr(j, i))}, v{vL16}, {srd(SXB)}, s{sT} offen sc1 ;XL{i}")
            else: e(f"buffer_load_dwordx2 a[{xr(j, i)}:{xr(j, i)+1}], v8, {srd(SXB)}, s{sT} offen sc1 ;XL{i}")
    for j in (1, 2, 3):
        e(f"v_accvgpr_write_b32 a{xr(j, 4)+2}, 0\nv_accvgpr_write_b32 a{xr(j, 4)+3}, 0")
    def fin(nt):
        d = ACC + 4 * nt
        e(f"v_cvt_pk_bf16_f32 v{d}, v{d}, v{d+1}\nv_cvt_pk_bf16_f32 v{d+1}, v{d+2}, v{d+3}")
        e(f"ds_write_b64 v9, v[{d}:{d+1}] offset:{nt*32}")
    for i in range(5):
        e(f"WAITVM XL{i}")
        for t in range(2 if i < 4 else 1):
            for j in (1, 2, 3):
                e(mf16(acc(0, 2 * i + t), R("v", SEL + 4 * t), R("a", xr(j, i)), acc(0, 2 * i + t)))
        if i >= 1:
            e("s_nop 1"); fin(2 * i - 2); fin(2 * i - 1)
    e("s_nop 1"); fin(8)
    e("s_waitcnt lgkmcnt(0)")
    for i in range(5): e(f"ds_read_b128 {R('v', 48+4*i)}, v{10+i}")
    for i in range(5): e(f"buffer_store_dwordx4 {R('v', 48+4*i)}, v{15+i}, {srd(SOUT)}, s4 offen {O['oaux']}")
    return e.lines

STAUX = 'sc1'
DIAG = False
def o_stores(hh):
    return [[f"s_add_u32 s72, s{sHO}, {(hh * 4 + m_) * 4096}",
             f"buffer_store_dwordx4 {of(hh, j, m_)}, v{vL16}, {srd(SOW)}, s72 offen offset:{j*1024} {STAUX} ;OC{hh}"] for m_ in range(4) for j in range(4)]
sig_c = lambda c: [f"WAITVM OC{c}"] + signal("O")
chk_c = lambda c: [f"WAITVM P{c}"] + flag_check(f"FO{c}", 0, 4) + [nextpoll]

def gen_fallback(hh):
    e = Asm(); n = f"FB{hh}"
    T0 = 10 if hh else 34
    e.label(n)
    e("s_waitcnt vmcnt(0) lgkmcnt(0)\ns_mov_b32 s7, m0")
    e("v_and_b32 v38, 1, v31\nv_lshrrev_b32 v39, 1, v31\nv_lshl_add_u32 v38, v38, 1, v39\nv_lshlrev_b32 v38, 4, v38\nv_lshl_add_u32 v38, v30, 8, v38".replace("v38", f"v{T0+4}").replace("v39", f"v{T0+5}"))
    e(f"v_lshl_add_u32 v39, v31, 2, v32\nv_lshlrev_b32 v39, 8, v39\nv_lshl_add_u32 v39, v33, 3, v39\nv_add_u32 v39, s{sW8K}, v39\nv_add_u32 v39, {SP}, v39".replace("v39", f"v{T0+5}"))
    for qb in range(4): e(f"v_mov_b32 v{T0+qb}, 0xff800000")
    kfr = lambda kt, ks: R("a", 192 + 16 * kt + 4 * ks)
    def kload():
        e("s_add_u32 s5, s4, 4096")
        for kt in range(2):
            for ks in range(4): e(f"buffer_load_dwordx4 {kfr(kt, ks)}, v{T0+4}, {srd(SK)}, s{4+kt} offen offset:{ks*64}")
    def qk(neg):
        for qb in range(4):
            for kt in range(2):
                d = R("v", S_ + 8 * qb + 4 * kt)
                for ks in range(4): e(mf16(d, kfr(kt, ks), qf(hh, qb, ks), (R("v", NEGM + 4 * qb) if neg else "0") if ks == 0 else d))
        e("s_nop 7")
    l1 = Asm(); l2 = Asm(); mid = Asm(); top = e
    e = l1
    kload(); e("s_waitcnt vmcnt(0)"); qk(False)
    for i in range(4):
        for qb in range(4): e(f"v_max3_f32 v{T0+qb}, v{T0+qb}, v{S_+8*qb+2*i}, v{S_+8*qb+2*i+1}")
    e = mid
    for op in ("v_permlane16_swap_b32", "v_permlane32_swap_b32"):
        for qb in range(4): e(f"v_mov_b32 v{S_+qb}, v{T0+qb}")
        e("s_nop 1")
        for qb in range(4): e(f"{op} v{T0+qb}, v{S_+qb}")
        for qb in range(4): e(f"v_max_f32 v{T0+qb}, v{T0+qb}, v{S_+qb}")
    for qb in range(4):
        for i in range(4): e(f"v_sub_f32 v{NEGM+4*qb+i}, 0, v{T0+qb}")
    for i in range(128): e(f"v_mov_b32 v{O_+i}, 0")
    for i in range(16): e(f"v_mov_b32 v{L_+i}, 0")
    e = l2
    kload()
    for hf in range(2):
        e(f"s_add_u32 m0, s{sW8K}, {SP + hf * 4096}\ns_nop 0")
        for i in range(4): e(f"buffer_load_dwordx4 v{vL16}, {srd(SV)}, s{4+hf} offen offset:{i*1024} lds")
    e("s_waitcnt vmcnt(0)")
    for dt in range(8):
        for h in range(2): e(f"ds_read_b64_tr_b16 a[{224+4*dt+2*h}:{225+4*dt+2*h}], v{T0+5} offset:{h*4096 + dt*32}")
    qk(True)
    for i in range(32): e(f"v_exp_f32 v{S_+i}, v{S_+i}")
    e("s_nop 0")
    for j in range(16): e(f"v_cvt_pk_bf16_f32 v{P_+j}, v{S_+2*j}, v{S_+2*j+1}")
    e("s_waitcnt lgkmcnt(0)\ns_nop 0")
    for qb in range(4):
        for dt in range(8):
            o = R("v", O_ + 32 * qb + 4 * dt)
            e(mf16(o, R("a", 224 + 4 * dt), R("v", P_ + 4 * qb), o))
        e(mf16(R("v", L_ + 4 * qb), R("v", ONES), R("v", P_ + 4 * qb), R("v", L_ + 4 * qb)))
    redo = (pre_mf(1) + ["s_nop 7"] + pre_valu()) if hh == 0 else []
    lo, hi = hh * 262144, (hh + 1) * 262144
    nxt = lambda lab: ["s_add_u32 s4, s4, 8192", f"s_cmp_lt_u32 s4, {hi}", f"s_cbranch_scc1 {lab}"]
    code = top.lines + [f"s_mov_b32 s4, {lo}", f"{n}_L1:"] + l1.lines + nxt(f"{n}_L1") + mid.lines + [f"s_mov_b32 s4, {lo}", f"{n}_L2:"] + l2.lines + nxt(f"{n}_L2") + redo + ["s_mov_b32 m0, s7", "s_nop 7", f"s_branch {n}_RET"]
    trace = top.lines + l1.lines + nxt("x") + l1.lines + nxt("x") + mid.lines + l2.lines + nxt("x") + l2.lines + nxt("x") + redo + ["s_nop 7"]
    return code, trace

def l_check(hh):
    r = [f"v_cmp_nge_f32 s[{4+2*(qb&1)}:{5+2*(qb&1)}], s{sTH}, v{L_+4*qb}" if qb < 2 else f"v_cmp_nge_f32 {'vcc' if qb == 2 else 's[100:101]'}, s{sTH}, v{L_+4*qb}" for qb in range(4)]
    r += ["s_nop 0", "s_or_b64 s[4:5], s[4:5], s[6:7]", "s_or_b64 vcc, vcc, s[100:101]", "s_or_b64 s[4:5], s[4:5], vcc", f"s_cbranch_scc1 FB{hh}", f"FB{hh}_RET:"]
    return r

def gen_epi(O, last):
    p = Asm()
    p("s_nop 7")
    p.lines += l_check(1 if last else 0)
    rl = lambda qb: 112 + 2 * qb
    for qb in range(4): p(f"v_rcp_f32 v{rl(qb)}, v{L_+4*qb}")
    if not last:
        p.lines += signal("W")
        p.lines += [t for _, t in v_reads(0)]
    for qb in range(4):
        o = O_ + 32 * qb
        for i in range(0, 32, 2):
            p(f"v_pk_mul_f32 v[{o+i}:{o+i+1}], v[{o+i}:{o+i+1}], v[{rl(qb)}:{rl(qb)+1}] op_sel_hi:[1,0]")
        if last:
            for j in range(16): p(f"v_cvt_pk_bf16_f32 v{OPK + 16 * qb + j}, v{o+2*j}, v{o+2*j+1}")
    return p

def stamp(i):
    return [f"s_memtime s[96:97]", "s_memrealtime s[98:99]", "s_waitcnt lgkmcnt(0)", f"v_writelane_b32 v43, s96, {i}", f"v_writelane_b32 v43, s98, {32+i}"]

def gen_kf(stamps=False, **opt):
    st = (lambda i: stamp(i)) if stamps else (lambda i: [])
    O = dict(kw=None, kwv=0, defer=5, wsp7=9, xsig=(130, 160, 190), touch=0, oaux='', eo2=1, e2g=32, e2s=4, e2n=8, osg=34, la=[(4, 2.6), (18, 2.6), (19, 2.9), (24, 2.9), (32, 3.6)], dsp=1.0, doff=0, cp2=1, wdv=0, o0g=66+136*11+20, wpf=(1140, 1141, 1142, 1143), o0sp=20, gs0=66+136*14+30, ossp=14, gp0=-20, go=230, gs1=330, gp1=440, gc1=520, osp=8, wsp=14, xd=6, cpf=1, pro=('W0', 'X0', 'W1', 'S1'), ear=('S2', 'W2', 'X1', 'W3'), gpf={'S3': 60, 'S4': 136, 'S5': 264, 3: 392, 'S8': 520}, gcpf=521, gzf=1100, ccap=4, hcpf=(1200,), xaux='', waux='', st=8, xp=92, xs=9, t0=(600, 760), t1=(760, 930))
    O.update(opt)
    global DIAG, XAUX, WAUX, VMLOOK, KW
    KW = O['kw']
    VMLOOK = O.get("vml", 6)
    DIAG = stamps; XAUX = O["xaux"]; WAUX = O["waux"]
    pro = gen_prologue().lines
    for it in O["pro"]: pro += early_item(it)
    if O.get("skipkv"):
        pro2 = gen_prologue2(O).lines + ["s_lshr_b32 s4, s2, 3", f"s_mul_i32 s4, s4, {O['skipkv'][0]}", "s_and_b32 s4, s4, 31", f"s_cmp_lt_u32 s4, {O['skipkv'][1]}",
                                         "s_cselect_b32 s100, 0, -1"]
        pro += pro2 + gen_prologue3().lines + gen_addr2().lines + gen_op_setup().lines
    else: pro += gen_prologue2(O).lines + gen_prologue3().lines + gen_addr2().lines + gen_op_setup().lines
    if stamps:
        if O.get("pst"):
            i1 = pro.index("s_waitcnt lgkmcnt(0)")
            i2 = next(i for i, l in enumerate(pro) if l.startswith("buffer_"))
            i3 = next(i for i, l in enumerate(pro) if l.startswith("s_getpc"))
            pro = pro[:i1 + 1] + st(23) + pro[i1 + 1:i2] + st(24) + pro[i2:i3] + st(25) + pro[i3:] + st(26)
        pro = pro[:4] + ["v_mov_b32 v43, 0"] + st(0) + pro[4:]
    qp = gen_qproj(O)
    S_T = ["STAMP"]
    h0 = gen_head(0, O, st); h1 = gen_head(1, O, st)
    epi0 = gen_epi(O, False).lines
    prog = pro + qp[:3] + S_T + qp[3:] + [t for _, t in k_reads(0)] + ["s_nop 1"] + gen_prepass0() + S_T + h0 + S_T + epi0 + S_T + h1 + S_T + \
        gen_epi(O, True).lines + S_T + gen_oproj(O) + S_T + gen_ored(O) + S_T
    nb = []; si = 1
    for l in prog:
        if l == "STAMP": nb += st(si); si += 1
        elif l == "STAMP2":
            if O.get("fine"): nb += st(si); si += 1
        else: nb.append(l)
    if O.get("skipkv"): nb = [l.replace(" nt lds ;T0", " lds ;T0").replace("s[100:101]", "s[6:7]") for l in nb]
    prog = resolve_vm(nb)
    prog, _ = auto_lgkm(prog)
    a = Asm()
    cold = []
    for n, w_ in [("FC1", "W"), ("FC4", "X")] + [(f"FO{c}", "O") for c in range(2)]: cold += flag_spin(n, w_)
    k0 = prog.index("FB0_RET:")
    fb = []
    for hh in range(2):
        code, tr = gen_fallback(hh)
        fb.append(code)
        k = prog.index(f"FB{hh}_RET:")
        assert not chk.check(prog[k - 200:k] + tr + prog[k:k + 300], verbose=False)
    a.lines += prog
    if stamps:
        a("s_waitcnt vmcnt(0)")
        a.lines += st(si)
        print('stamps', si + 1)
        a('v_writelane_b32 v43, s49, 31')
        a(f"s_lshl_b32 s4, s2, 2\ns_add_u32 s4, s4, s{sW}\ns_lshl_b32 s4, s4, 8\ns_add_u32 s4, s4, 0x8000000")
        a("s_mov_b32 s8, s88\ns_mov_b32 s9, s89\ns_mov_b32 s10, 0x10000000\ns_mov_b32 s11, 0x20000\nv_lshlrev_b32 v41, 2, v0")
        a("buffer_store_dword v43, v41, s[8:11], s4 offen")
    a("s_endpgm")
    a.label("K1_COLD")
    a.lines += cold + fb[0] + fb[1]
    a.label("K1_END")
    trace = prog
    errs = chk.check(trace, maxerr=8)
    assert not errs or O.get('diag')
    return a.text()

if __name__ == "__main__":
    import sys
    for name, kw in eval(sys.argv[1] if len(sys.argv) > 1 else "[('kf', {})]"):
        kw.setdefault("stamps", True)
        body = gen_kf(**kw)
        open(name + ".s", "w").write(single_kernel_file(body, 256, 256, 160 * 1024, vgpr=512, accum=256))
```

```python
from g import *
import chk, re
from k2 import WOT_OFF, mf16, R

KR, VR, SP = 0, 65536, 131072
SL = [32768, 98304, 131072]
C_SCALE = 0x3e0293ee
THRESH = 0x53800000

sW = 3
SK, SV, SX, SWQ, SWO, SOW, SWT = 8, 12, 16, 20, 24, 28, 32
SPW, SPX = 56, 60
sWOB = 54
sBR, sB, sHP, sW4K, sW8K, sT, sC, sXO, sKOFF, sIT, sHD, sOO, sTH = 36, 37, 38, 39, 40, 41, 42, 44, 48, 49, 50, 51, 52
srd = lambda s: f"s[{s}:{s+3}]"
vX2, vXR = 42, 39
vX, vWQ, vL16, vKD, vVD, vWA, vKA, vVA, vTMP = 1, 2, 3, 4, 8, 48, 10, 14, 29
ONES, L_, NEGM, P_, S_, O_ = 44, 48, 64, 80, 96, 128
Q_, Q2_, KF, VF = 0, 64, 128, 192

VMLOOK = 6
class Gaps:
    def __init__(self, mf):
        self.mf = mf
        self.pre = [[] for _ in mf]
        self.val = [[] for _ in mf]
        self.used = [0] * len(mf)
    def put(self, g, txt, cost=1):
        (self.val if txt.startswith("v_") else self.pre)[g].append(txt)
        self.used[g] += cost
    def place(self, txt, lo, hi=None, cost=1, cap=2):
        hi = len(self.mf) - 1 if hi is None else hi
        vm = txt.startswith("buffer"); va = txt.startswith("v_")
        for look in ((VMLOOK, 1 << 30) if not va else (1 << 30,)):
            for g in range(lo, min(hi, lo + look) + 1):
                if self.used[g] + cost > cap: continue
                if look == VMLOOK:
                    if vm and self.pre[g]: continue
                    if not vm and any(u.startswith("buffer") for u in self.pre[g]): continue
                self.put(g, txt, cost); return g
        g = min(range(lo, hi + 1), key=lambda x: self.used[x])
        self.put(g, txt, cost)
        return g
    def lines(self):
        out = []
        for m, p, v in zip(self.mf, self.pre, self.val):
            out.append(m); out += p; out += v
        return out

def auto_lgkm(lines, pend=None, age=16):
    out = []
    pend = [] if pend is None else pend
    pos = pend[-1][1] + 1000 if pend else 0
    for l in lines:
        if l.endswith(":") or l.startswith("."):
            out.append(l); continue
        x = chk.I(l)
        if x.kind == "wait" and x.lg is not None:
            pend = pend[len(pend) - x.lg:] if 0 < x.lg < len(pend) else ([] if x.lg == 0 else pend)
        touched = set(x.r + x.w)
        mm = re.search(r'need:(\S+)', l)
        if mm: touched |= set(chk.regs_of(mm.group(1)))
        need = -1
        for i, (rs, _) in enumerate(pend):
            if touched & rs: need = i
        if need >= 0:
            for i, (rs, p) in enumerate(pend):
                if pos - p >= age: need = max(need, i)
            n = len(pend) - 1 - need
            n = min(n, 15)
            out.append(f"s_waitcnt lgkmcnt({n})")
            pend = pend[len(pend) - n:] if n > 0 else []
        out.append(l)
        if x.kind in ("dsr", "dsw"):
            pend.append((set(x.w), pos))
        pos += 1
    return out, pend

def resolve_vm(lines):
    out = []; ops = []; done = -1
    totals = {}
    for u in lines:
        if u.startswith(("buffer_", "global_")) and ";" in u:
            for t in u.split(";")[1].split(): totals[t] = totals.get(t, 0) + 1
    for l in lines:
        if l.startswith("WAITVM"):
            tag = l.split()[1]
            idx = max(i for i, t in enumerate(ops) if tag in t)
            assert totals[tag] == sum(1 for t in ops if tag in t), tag
            if idx <= done: continue
            n = len(ops) - 1 - idx
            assert n <= 63
            done = idx
            out.append(f"s_waitcnt vmcnt({n})")
            continue
        mw = re.match(r"s_waitcnt vmcnt\((\d+)\)", l)
        if mw: done = max(done, len(ops) - 1 - int(mw.group(1)))
        if l.startswith(("buffer_", "global_")):
            if len(ops) - 1 - done >= 63:
                out.append("s_waitcnt vmcnt(54)"); done = len(ops) - 1 - 54
            ops.append(l.split(";")[1].split() if ";" in l else [])
        out.append(l)
    return out

def koff_set(tile):
    return [f"s_mov_b32 s{sKOFF}, {tile * 16384}", f"s_add_u32 s{sKOFF}, s{sROT}, {tile * 16384}", f"s_and_b32 s{sKOFF}, s{sKOFF}, 0x3ffff"]
def koff_next():
    return [f"s_add_u32 s{sKOFF}, s{sKOFF}, 16384"]
def kv_dma(tile_slot, soff, tag, which="KV"):
    r = []
    if "K" in which:
        r.append(f"s_add_u32 m0, s{sW4K}, {KR + tile_slot * 16384}")
        for n in range(4):
            r.append(f"buffer_load_dwordx4 v{vKD+n}, {srd(SK)}, {soff} offen offset:{n*1024} nt lds ;{tag}")
    if "V" in which:
        r.append(f"s_add_u32 m0, s{sW4K}, {VR + tile_slot * 16384}")
        for n in range(4):
            r.append(f"buffer_load_dwordx4 v{vVD+(n&1)}, {srd(SV)}, {soff} offen offset:{n*1024} nt lds ;{tag}")
    return r

def gen_prologue():
    p = Asm()
    p("s_cmp_lt_u32 s2, 256\ns_cbranch_scc1 K1_GO\ns_endpgm\nK1_GO:")
    p("s_load_dwordx16 s[64:79], s[0:1], 0\ns_load_dwordx8 s[80:87], s[0:1], 64\ns_load_dwordx2 s[88:89], s[0:1], 96")
    p("s_getpc_b64 s[92:93]\nK1_PC:\ns_mov_b32 s94, K1_COLD-K1_PC\ns_mov_b32 s95, 0x20000\ns_lshr_b32 s90, s2, 3\ns_lshl_b32 s90, s90, 12")
    p("v_lshrrev_b32 v29, 6, v0\nv_and_b32 v41, 7, v0\nv_lshl_add_u32 v41, v29, 3, v41\nv_lshlrev_b32 v41, 7, v41")
    p("buffer_load_dword v22, v41, s[92:95], s90 offen ;PF")
    p(f"v_and_b32 v0, 63, v0\nv_readfirstlane_b32 s{sW}, v29")
    p("s_and_b32 s4, s2, 7\ns_lshr_b32 s5, s2, 3")
    p(f"s_lshr_b32 s{sBR}, s4, 2")
    p(f"s_and_b32 s6, s4, 1\ns_lshl_b32 s6, s6, 2\ns_and_b32 s7, s5, 3\ns_add_u32 s{sB}, s6, s7")
    p(f"s_and_b32 s6, s4, 2\ns_lshl_b32 s6, s6, 2\ns_lshr_b32 s7, s5, 2\ns_add_u32 s{sHP}, s6, s7")
    p(f"s_lshl_b32 s{sW4K}, s{sW}, 12\ns_lshl_b32 s{sW8K}, s{sW}, 13")
    p(f"s_mov_b32 s{sC}, {C_SCALE}\ns_mov_b32 s{sC+1}, {C_SCALE}\ns_mov_b32 s{sTH}, {THRESH}")
    p(f"s_lshr_b32 s6, s{sHP}, 2")
    for qb in range(4): p(f"s_xor_b32 s{sXO+qb}, s6, {qb}\ns_mul_i32 s{sXO+qb}, s{sXO+qb}, 18432")
    p("v_and_b32 v30, 15, v0\nv_lshrrev_b32 v31, 4, v0\nv_bfe_u32 v32, v0, 2, 2\nv_and_b32 v33, 3, v0")
    p(f"v_lshlrev_b32 v{vL16}, 4, v0")
    p("v_and_b32 v34, 1, v29\nv_lshl_add_u32 v34, v34, 2, v31\nv_lshlrev_b32 v34, 1, v34\nv_xor_b32 v34, v34, v30\nv_lshlrev_b32 v34, 4, v34")
    p(f"v_lshl_add_u32 v35, v29, 3, v31\nv_lshl_add_u32 v{vWQ}, v35, 13, v34")
    p("v_lshrrev_b32 v34, 3, v0\nv_lshl_add_u32 v35, v29, 6, v34\nv_mul_u32_u24 v35, 1152, v35")
    p(f"v_and_b32 v36, 7, v0\nv_xor_b32 v36, v36, v31\nv_lshlrev_b32 v36, 4, v36\nv_add_u32 v{vX}, v35, v36\nv_xor_b32 v36, 64, v36\nv_add_u32 v{vX2}, v35, v36")
    p(f"s_lshl_b32 s6, s5, 2\ns_add_u32 s6, s6, s{sW}")
    p(f"s_lshl_b32 s7, s6, 13\ns_and_b32 s53, s{sHP}, 8\ns_lshl_b32 s53, s53, 9\ns_add_u32 s7, s7, s53")
    p("v_and_b32 v37, 31, v0\nv_lshlrev_b32 v37, 7, v37\nv_add_u32 v37, s7, v37")
    p(f"s_and_b32 s53, s{sB}, 4\ns_lshl_b32 s53, s53, 8\ns_lshl_b32 s7, s6, 3\ns_add_u32 s7, s7, s53\ns_mul_i32 s7, s7, 1152")
    p("v_and_b32 v38, 7, v0\nv_mul_u32_u24 v38, 1152, v38\nv_bfe_u32 v36, v0, 3, 1\nv_lshl_add_u32 v38, v36, 7, v38\nv_add_u32 v38, s7, v38")
    p("v_and_b32 v65, 7, v0\nv_mul_u32_u24 v65, 1152, v65\nv_add_u32 v65, s7, v65")
    p(f"s_lshr_b32 s7, s6, 1\ns_lshl_b32 s7, s7, 13\ns_and_b32 s53, s6, 1\ns_lshl_b32 s53, s53, 11\ns_add_u32 s7, s7, s53\ns_and_b32 s53, s{sHP}, 8\ns_lshl_b32 s53, s53, 9\ns_add_u32 s7, s7, s53")
    p("v_lshlrev_b32 v64, 7, v30\nv_add_u32 v64, s7, v64")
    p("s_waitcnt lgkmcnt(0)")
    p(f"s_cmp_eq_u32 s{sBR}, 0")
    for i in range(10): p(f"s_cselect_b32 s{64+i}, s{64+i}, s{74+i}")
    p(f"s_lshl_b32 s4, s{sHP}, 9")
    p(f"s_add_u32 s{SWQ}, s70, s4\ns_addc_u32 s{SWQ+1}, s71, 0\ns_sub_u32 s{SWQ+2}, {576*8192}, s4\ns_mov_b32 s{SWQ+3}, 0x20000")
    p(f"s_mul_i32 s4, s{sB}, 294912")
    p(f"s_add_u32 s{SX}, s64, s4\ns_addc_u32 s{SX+1}, s65, 0\ns_mov_b32 s{SX+2}, 294912\ns_mov_b32 s{SX+3}, 0x20000")
    p(f"s_mov_b32 s{SPW}, s70\ns_mov_b32 s{SPW+1}, s71\ns_mov_b32 s{SPW+2}, {576*8192}\ns_mov_b32 s{SPW+3}, 0x20000")
    p(f"s_mov_b32 s{SPX}, s64\ns_mov_b32 s{SPX+1}, s65\ns_mov_b32 s{SPX+2}, {8*294912}\ns_mov_b32 s{SPX+3}, 0x20000")
    return p

def gen_prologue2(O):
    p = Asm()
    p(f"s_lshl_b32 s4, s{sB}, 4\ns_add_u32 s4, s4, s{sHP}")
    p("s_lshl_b32 s5, s4, 19")
    p(f"s_add_u32 s{SK}, s66, s5\ns_addc_u32 s{SK+1}, s67, 0\ns_mov_b32 s{SK+2}, 0x80000\ns_mov_b32 s{SK+3}, 0x20000")
    p(f"s_add_u32 s{SV}, s68, s5\ns_addc_u32 s{SV+1}, s69, 0\ns_mov_b32 s{SV+2}, 0x80000\ns_mov_b32 s{SV+3}, 0x20000")
    p(f"s_lshr_b32 s5, s{sHP}, 3\ns_mul_i32 s5, s5, {2048*1152}\ns_add_u32 s{SWO}, s72, s5\ns_addc_u32 s{SWO+1}, s73, 0\ns_mov_b32 s{SWO+2}, {2048*1152}\ns_mov_b32 s{SWO+3}, 0x20000")
    p(f"s_lshr_b32 s5, s2, 3\ns_lshl_b32 s5, s5, 2\ns_add_u32 s5, s5, s{sW}\ns_and_b32 s6, s2, 1\ns_lshl_b32 s6, s6, 7\ns_add_u32 s5, s5, s6\ns_mul_i32 s5, s5, {72*128}")
    p("s_mov_b32 s54, s5")
    p(f"s_lshl_b32 s5, s{sBR}, 5\ns_lshl_b32 s6, s{sB}, 2\ns_add_u32 s5, s5, s6\ns_add_u32 s5, s5, s{sW}\ns_lshl_b32 s5, s5, 7")
    p(f"s_and_b32 s6, s{sHP}, 12\ns_lshl_b32 s6, s6, 3\ns_add_u32 s5, s5, s6\ns_lshl_b32 s5, s5, 12")
    p(f"s_add_u32 s{SOW}, s88, s5\ns_addc_u32 s{SOW+1}, s89, 0\ns_mov_b32 s{SOW+2}, {32*4096}\ns_mov_b32 s{SOW+3}, 0x20000")
    return p

def gen_prologue3():
    p = Asm()
    p("v_lshlrev_b32 v35, 12, v31\nv_lshl_add_u32 v35, v32, 8, v35\nv_lshl_add_u32 v35, v33, 3, v35")
    p("v_and_b32 v34, 1, v31\nv_lshl_add_u32 v36, v34, 2, v32\nv_lshl_add_u32 v35, v36, 5, v35")
    for d3 in range(8):
        p(f"v_xor_b32 v36, {d3*32}, v35\nv_add_u32 v{vWA+d3}, {WAREA[2]}, v36\nv_add_u32 v{vWA+8+d3}, {WAREA[3]}, v36")
    p(f"v_lshrrev_b32 v34, 1, v30\nv_xor_b32 v34, v34, v31\nv_lshlrev_b32 v34, 4, v34\nv_lshl_add_u32 v34, v30, 7, v34\nv_lshl_add_u32 v34, v29, 13, v34")
    p(f"v_add_u32 v{vXR}, {SP}, v34\nv_xor_b32 v{vXR+1}, 64, v{vXR}")
    p("v_lshl_add_u32 v34, v29, 4, v31\nv_lshlrev_b32 v34, 8, v34")
    p(f"v_xor_b32 v35, v30, v31\nv_lshl_add_u32 v{vKD}, v35, 4, v34")
    for n in range(1, 4): p(f"v_xor_b32 v{vKD+n}, {n<<6}, v{vKD}")
    p(f"v_lshlrev_b32 v35, 1, v31\nv_xor_b32 v35, v30, v35\nv_lshl_add_u32 v{vVD}, v35, 4, v34\nv_xor_b32 v{vVD+1}, 0x80, v{vVD}")
    return p

RSV = False
slot_of = lambda t: (3 if t == 31 else (t + 2) % 3) if RSV else t % 4
WAREA = [49152, 114688, 32768, 98304]
def slab_dma(H):
    ss, hh = H >> 1, H & 1
    r = [f"s_add_u32 m0, s{sW4K}, {WAREA[H % 4]}"]
    for i in range(4):
        kc, h = i >> 1, i & 1
        r.append(f"s_mov_b32 s{sT}, {(ss * 64 + 32 * kc + 4 * h) * 8192 + hh * 256 - i * 1024}")
        r.append(f"buffer_load_dwordx4 v{vWQ}, {srd(SWQ)}, s{sT} offen offset:{i*1024} {WAUX} lds ;W{H}")
    return r

def pf(pr):
    return [f"s_mov_b32 s{sT}, {pr * 128 * 8192}",
            f"buffer_load_dword v22, v37, {srd(SPW)}, s{sT} offen ;PF",
            f"buffer_load_dword v22, v38, {srd(SPX)}, 0 offen offset:{pr * 256} ;PF"]

xf = lambda ss, qb, kc: R("a", 64 + 32 * (ss % 2) + 8 * qb + 4 * kc)
def x_dma(ss, qb):
    r = [f"s_add_u32 m0, s{sW8K}, {SP + qb * 2048}"]
    need = f" need:a[{64+32*((ss-1)%2)+8*qb}:{64+32*((ss-1)%2)+8*qb+7}]" if ss > 0 else ""
    for e in range(2):
        r.append(f"s_add_u32 s{sT}, s{sXO+qb}, {e * 9216 + ss * 128 - e * 1024}")
        r.append(f"buffer_load_dwordx4 v{vX2 if e else vX}, {srd(SX)}, s{sT} offen offset:{e*1024} {XAUX} lds ;X{ss}_{qb}{need}")
    return r
def x_rd(ss, qb):
    return [f"ds_read_b128 {xf(ss, qb, kc)}, v{vXR+kc} offset:{qb*2048}" for kc in range(2)]

def wo_dma():
    r = []
    r.append(f"s_lshr_b32 s4, s{sW}, 1\ns_lshl_b32 s4, s4, 16\ns_and_b32 s5, s{sW}, 1\ns_mul_i32 s5, s5, 9216\ns_add_u32 s4, s4, s5")
    for i in range(9):
        if i % 4 == 0:
            r.append(f"s_add_u32 m0, s4, {(i >> 2) * 4096}")
            r.append(f"s_mov_b32 s{sT}, {(i >> 2) * 4096}")
        r.append(f"buffer_load_dwordx4 v{vWOD}, {srd(SWO)}, s{sT} offen offset:{(i&3)*1024} nt lds ;WO")
    return r

def early_item(it):
    k, n = it[0], int(it[1])
    if k == "W": return slab_dma(n)
    if k == "P": return pf(n)
    if k == "S": return [f"s_mov_b32 s{sT}, {n * 64 * 8192}", f"buffer_load_dword v22, v64, {srd(SPW)}, s{sT} offen ;PF", f"buffer_load_dword v22, v65, {srd(SPX)}, 0 offen offset:{n * 128} ;PF"]
    return sum((x_dma(n, qb) for qb in range(4)), [])

def qacc(dt, qb):
    return R("a", 128 + 16 * dt + 4 * qb) if dt < 8 else R("v", O_ + 32 * qb + 4 * (dt - 8))

def gen_qproj(O):
    D = 3
    NR = 6
    wfr = lambda G, kc: 80 + 8 * (G % NR) + 4 * kc
    def rd(G):
        H, d3 = G // 8, G % 8
        ar = WAREA[H % 4]
        base = vWA + (0 if ar < 65536 else 8) + d3
        extra = ar - (WAREA[2] if ar < 65536 else WAREA[3])
        return [f"ds_read_b64_tr_b16 v[{wfr(G,kc)+2*h}:{wfr(G,kc)+2*h+1}], v{base} offset:{extra + 2048*kc + 1024*h}" for kc in range(2) for h in range(2)]
    mf = []
    for G in range(144):
        ss, dt = G // 16, G % 16
        for qb in range(4):
            for kc in range(2):
                c = "0" if (ss == 0 and kc == 0) else qacc(dt, qb)
                mf.append(mf16(qacc(dt, qb), R("v", wfr(G, kc)), xf(ss, qb, kc), c))
    g = Gaps(mf)
    head = ["WAITVM X0_3", "WAITVM W0", "s_barrier"]
    for G in range(D): head += rd(G)
    for qb in range(4): head += x_rd(0, qb)
    BAR = 8 * (7 - D) + 7
    for G in range(144):
        H, d3 = G // 8, G % 8
        g0 = 8 * G
        if G + D < 144:
            for i, t in enumerate(rd(G + D)): g.put(g0 + i, t)
        if d3 == 7 - D:
            if H < 17: g.put(g0 + 6, f"WAITVM W{H+1}")
            g.put(g0 + 7, "s_waitcnt lgkmcnt(0)"); g.put(g0 + 7, "s_barrier")
    ev = []
    for i, it in enumerate(O["ear"]): ev.append((i, early_item(it), 1))
    for pr, gp in O["gpf"].items(): ev.append((gp, pf(pr) if isinstance(pr, int) else early_item(pr), 1))
    ev.append((O["gcpf"], ["buffer_load_dword v22, v41, s[92:95], s90 offen ;PF"], 1))
    for H in range(4, 18):
        sd = slab_dma(H)
        for i in range(4): ev.append((64 * (H - 4) + BAR + 1 + O["st"] * i, [sd[0]] + sd[1 + 2 * i: 3 + 2 * i], 1))
    XP = O["xp"]
    for ss in range(1, 9):
        for qb in range(4):
            gg = 128 * (ss - 1) + XP + O["xs"] * qb
            g.place(f"WAITVM X{ss}_{qb}", gg - 1)
            gg = max(gg, max(i for i in range(len(g.pre)) if f"WAITVM X{ss}_{qb}" in g.pre[i]))
            for t in x_rd(ss, qb): gg = g.place(t, gg)
            if ss < 8: ev.append((gg + O['xd'], x_dma(ss + 1, qb), 1))
    win = lambda H: 64 * H + BAR + 1
    def thin(groups, g_lo, g_hi):
        n = len(groups)
        for i, gr in enumerate(groups):
            ev.append((g_lo + (g_hi - g_lo) * i // n, gr, 1))
    def kv_groups(slot, tile, which):
        r = []
        for ten, base, vo, sr in (("K", KR, lambda n: vKD + n, SK), ("V", VR, lambda n: vVD + (n & 1), SV)):
            if ten not in which: continue
            for n in range(4):
                r.append([f"s_add_u32 m0, s{sW4K}, {base + slot * 16384}", f"s_mov_b32 s{sT}, {tile * 16384}",
                          f"buffer_load_dwordx4 v{vo(n)}, {srd(sr)}, s{sT} offen offset:{n*1024} nt lds ;T{tile}"])
        return r
    pt = (0, 31, 1, 2) if RSV else (0, 1, 2, 3)
    kg = lambda i, w: kv_groups(slot_of(pt[i]), pt[i], w)
    thin(kg(0, "KV"), *O["t0"]); thin(kg(1, "KV"), *O["t1"])
    t2 = max(O["t1"][1], win(14), O["t2"])
    thin(kg(2, "K"), t2, t2 + 30)
    t2 = max(t2 + 30, win(15))
    thin(kg(2, "V"), t2, t2 + 30)
    if O["npre"] == 4:
        t2 = max(t2 + 30, win(16))
        thin(kg(3, "K"), t2, min(t2 + 30, win(17) - 4))
        ev.append((win(17), [f"s_mov_b32 s{sKOFF}, {pt[3] * 16384}"] + kv_dma(slot_of(pt[3]), f"s{sKOFF}", f"T{pt[3]}", "V"), 1))
    for gp, gr in zip(O["wpf"], wopf()):
        if gp < 1152: ev.append((gp, gr, 1))
    if O["tlb"] is not None:
        ev.append((O["tlb"], [f"buffer_load_dword v22, v{vAD+1}, {srd(sr)}, {so} offen nt ;PF" for sr, so in ((SK, 0), (SV, 0), (SWO, "s54"))], 1))
    ev.append((O["gzf"], ZF(), 1))
    if O["kw"]:
        n, L, kth, lo, hi = O["kw"]
        for i in range(n):
            sr = SK if (O["kwv"] == 0 or i % 2 == 0) else SV
            ii = i if O["kwv"] == 0 else i // 2
            ev.append((lo + (hi - lo) * i // n, [f"s_mov_b32 s{sT}, {65536 + ii * 4 * (L // 2) * kth * 256}", f"buffer_load_dword v22, v66, {srd(sr)}, s{sT} offen ;PF"], 1))
    g.pre[64 * 17 + BAR - 1].insert(0, "WAITVM T0")
    ev.sort(key=lambda x: x[0])
    cur = 0
    for lo, items, stride in ev:
        gg = max(cur, lo + (1 if (lo + 1) % 64 == BAR + 1 else 0))
        for u in items:
            gg = g.place(u, gg)
            if u.startswith("s_add_u32 m0"): gg += 1
            if u.startswith("buffer"): gg += stride
        cur = gg
    rest = []
    gg = 0
    for ks in range(4):
        gg = max(gg, 1024 + 16 * (ks + 1) + 5)
        for t in conv_h0(ks):
            while gg < len(mf) and g.used[gg] >= O["ccap"]: gg += 1
            if gg < len(mf): g.put(gg, t)
            else: rest.append(t)
    if O.get("ssst"):
        for ss in range(9):
            g.pre[128 * ss + 127] += stamp(22 + ss)[:3]
            g.val[128 * ss + 127] += stamp(22 + ss)[3:]
    if O.get("nox"):
        for gg in range(len(g.pre)): g.pre[gg] = [t for t in g.pre[gg] if ";X" not in t and not t.startswith("WAITVM X")]
    if O.get("now"):
        for gg in range(len(g.pre)): g.pre[gg] = [t for t in g.pre[gg] if not re.search(r";W\d", t) and not re.match(r"WAITVM W\d", t)]
    if O.get("nopf"):
        for gg in range(len(g.pre)): g.pre[gg] = [t for t in g.pre[gg] if not re.search(r";PF", t)]
    if O.get("noslow"):
        for gg in range(len(g.pre)): g.pre[gg] = [t for t in g.pre[gg] if not re.search(r";(WO|WT|T\d|PF)", t) and not t.startswith(("WAITVM WO", "WAITVM T"))]
    return head + g.lines() + ["STAMP"] + rest

def gen_addr2():
    p = Asm()
    p("v_and_b32 v34, 1, v31\nv_lshrrev_b32 v35, 1, v31\nv_lshl_add_u32 v34, v34, 1, v35")
    p(f"v_xor_b32 v34, v34, v30\nv_lshlrev_b32 v34, 4, v34\nv_lshl_add_u32 v{vKA}, v30, 8, v34")
    for ks in range(1, 4): p(f"v_xor_b32 v{vKA+ks}, {ks<<6}, v{vKA}")
    p("v_lshl_add_u32 v34, v31, 2, v32\nv_and_b32 v35, 7, v34\nv_lshlrev_b32 v35, 5, v35\nv_lshl_add_u32 v35, v33, 3, v35")
    p(f"v_lshl_add_u32 v34, v34, 8, v35\nv_add_u32 v{vVA}, {VR}, v34")
    for dt in range(1, 8): p(f"v_xor_b32 v{vVA+dt}, {dt<<5}, v{vVA}")
    for i in range(4): p(f"v_mov_b32 v{ONES+i}, 0x3f803f80")
    if KW:
        L, kth = KW[1], KW[2]
        p(f"v_and_b32 v34, {L-1}, v0\nv_lshrrev_b32 v35, 1, v34\nv_mul_u32_u24 v36, {L//2}, v29\nv_add_u32 v35, v35, v36\nv_mul_u32_u24 v35, {kth*256}, v35\nv_and_b32 v34, 1, v34\nv_lshl_add_u32 v66, v34, 7, v35")
    p("v_min_u32 v29, 17, v0\nv_lshlrev_b32 v29, 7, v29\nv_add_u32 v29, s54, v29")
    return p

def conv8(t, dst, pk=False):
    return [[f"v_pk_mul_f32 v[{t+i}:{t+i+1}], v[{t+i}:{t+i+1}], s[{sC}:{sC+1}]" for i in range(0, 8, 2)] if pk else
            [f"v_mul_f32 v{t+i}, s{sC}, v{t+i}" for i in range(8)],
            [f"v_cvt_pk_bf16_f32 v{t+i}, v{t+2*i}, v{t+2*i+1}" for i in range(4)],
            [f"v_permlane16_swap_b32 v{t}, v{t+2}", f"v_permlane16_swap_b32 v{t+1}, v{t+3}"],
            [f"v_accvgpr_write_b32 a{dst+i}, v{t+i}" for i in range(4)]]
def conv_h0(ks):
    out = []
    for q2 in range(2):
        us = []
        for u in range(2):
            qb = 2 * q2 + u; t = 64 + 8 * u
            us.append([[f"v_accvgpr_read_b32 v{t+i}, a{128 + 16 * (2 * ks + (i >> 2)) + 4 * qb + (i & 3)}" for i in range(8)]] + conv8(t, 16 * qb + 4 * ks))
        for stA, stB in zip(*us): out += stA + stB
    return out
def conv_h1(qb):
    us = [conv8(O_ + 32 * qb + 8 * ks, 64 + 16 * qb + 4 * ks, qb == 0) for ks in range(4)]
    return [t for stg in zip(*us) for x in stg for t in x]

kf = lambda kt, ks: R("a", KF + 16 * kt + 4 * ks)
vf = lambda dt, kk: R("a", VF + 8 * dt + 4 * kk)
qf = lambda hh, qb, ks: R("a", 64 * hh + 16 * qb + 4 * ks)
def k_reads(slot):
    return [(kt, f"ds_read_b128 {kf(kt, ks)}, v{vKA+ks} offset:{KR + slot*16384 + kt*4096}") for kt in range(4) for ks in range(4)]
def v_reads(slot):
    return [(dt, f"ds_read_b64_tr_b16 a[{VF+8*dt+4*kk+2*h}:{VF+8*dt+4*kk+2*h+1}], v{vVA+dt} offset:{slot*16384 + kk*8192 + h*4096}") for dt in range(8) for kk in range(2) for h in range(2)]
def mf_qk(hh, qb):
    r = []
    for kt in range(4):
        s = R("v", S_ + 16 * (qb & 1) + 4 * kt)
        for ks in range(4):
            r.append(mf16(s, kf(kt, ks), qf(hh, qb, ks), R("v", NEGM + 4 * qb) if ks == 0 else s))
    return r
def mf_pv(qb, first=False):
    r = []
    for dt in range(8):
        o = R("v", O_ + 32 * qb + 4 * dt)
        for kk in range(2):
            r.append(mf16(o, vf(dt, kk), R("v", P_ + 8 * (qb & 1) + 4 * kk), "0" if (first and kk == 0) else o))
    l = R("v", L_ + 4 * qb)
    for kk in range(2):
        r.append(mf16(l, R("v", ONES), R("v", P_ + 8 * (qb & 1) + 4 * kk), "0" if (first and kk == 0) else l))
    return r
def put_sm(g, g0, n, qb):
    s = S_ + 16 * (qb & 1); pp = P_ + 8 * (qb & 1)
    if n >= 33:
        for i in range(16): g.put(g0 + 2 * i + 1, f"v_exp_f32 v{s+i}, v{s+i}", 2)
        for j in range(8): g.put(g0 + 4 * j + 4, f"v_cvt_pk_bf16_f32 v{pp+j}, v{s+2*j}, v{s+2*j+1}")
    else:
        for i in range(16): g.put(g0 + min(i, n - 1), f"v_exp_f32 v{s+i}, v{s+i}", 2)
        for j in range(8): g.put(g0 + min(2 * j + 2, n - 1), ("s_nop 0\n" if 2 * j + 2 > n - 1 else "") + f"v_cvt_pk_bf16_f32 v{pp+j}, v{s+2*j}, v{s+2*j+1}") if False else None
        for j in range(8):
            gg = min(2 * j + 2, n - 1)
            if 2 * j + 2 > n - 1: g.val[g0 + gg].append("s_nop 0")
            g.put(g0 + gg, f"v_cvt_pk_bf16_f32 v{pp+j}, v{s+2*j}, v{s+2*j+1}")

def pre_mf(hh):
    p = []
    for qb in range(4):
        s = R("v", S_ + 4 * qb)
        for ks in range(4): p.append(mf16(s, kf(0, ks), qf(hh, qb, ks), "0" if ks == 0 else s))
    return p
def pre_valu():
    p = []
    m = lambda qb: vTMP + 5 + qb
    t = lambda qb: S_ + 4 * qb
    for qb in range(4):
        s = S_ + 4 * qb
        p.append(f"v_max3_f32 v{m(qb)}, v{s}, v{s+1}, v{s+2}")
    for qb in range(4): p.append(f"v_max_f32 v{m(qb)}, v{m(qb)}, v{S_+4*qb+3}")
    for op in ("v_permlane16_swap_b32", "v_permlane32_swap_b32"):
        for qb in range(4): p.append(f"v_mov_b32 v{t(qb)}, v{m(qb)}")
        for qb in range(4): p.append(f"{op} v{m(qb)}, v{t(qb)}")
        for qb in range(4): p.append(f"v_max_f32 v{m(qb)}, v{m(qb)}, v{t(qb)}")
    for qb in range(4):
        for i in range(4): p.append(f"v_sub_f32 v{NEGM+4*qb+i}, 0, v{m(qb)}")
    return p
def gen_prepass0():
    cv = conv_h1(0)
    g = Gaps(pre_mf(0))
    for i, (_, t) in enumerate(v_reads(slot_of(0))): g.put(i // 2, t)
    for i, t in enumerate(cv[16:48]): g.put(i // 2, t)
    return cv[:16] + g.lines() + cv[48:] + pre_valu() + ["s_nop 1"]
def pack_o0(qb):
    o = O_ + 32 * qb
    return [f"v_cvt_pk_bf16_f32 v{o+j}, v{o+2*j}, v{o+2*j+1}" for j in range(16)] + [f"v_accvgpr_write_b32 a{16*qb+j}, v{o+j}" for j in range(16)]

def kv_events(O):
    ev = []
    la = O["la"]
    def LA(x):
        for (x0, y0), (x1, y1) in zip(la, la[1:]):
            if x <= x1: return y0 + (y1 - y0) * (x - x0) / (x1 - x0)
        return la[-1][1]
    for n in (range(24, 248) if RSV else range(8 * O["npre"], 256)):
        tile, i = n // 8, n % 8
        x = tile + O["dsp"] * i / 8
        pos = int(66 + 136 * (x - LA(x))) + O["doff"]
        assert pos >= max(0, 66 + 136 * (tile - (3 if RSV else 4)))
        it = []
        if i == 0: it.append(f"s_mov_b32 s{sKOFF}, {tile * 16384}" if not O.get("skipkv") else f"s_and_b32 s{sKOFF}, s100, {tile * 16384}")
        if i % 4 == 0 or tile >= 29: it.append(f"s_add_u32 m0, s{sW4K}, {(KR if i < 4 else VR) + slot_of(tile) * 16384}")
        vo, sr = (vKD + i, SK) if i < 4 else (vVD + (i & 1), SV)
        it.append(f"buffer_load_dwordx4 v{vo}, {srd(sr)}, s{sKOFF} offen offset:{(i % 4) * 1024} nt lds ;T{tile} U{n}")
        ev.append((pos, it))
    return ev

def gen_head(hh, O, st):
    mf = mf_qk(hh, 0) + mf_qk(hh, 1) + mf_qk(hh, 2) + mf_pv(0, True)
    for t in range(15):
        f = t == 0
        mf += mf_qk(hh, 3) + mf_pv(1, f) + mf_pv(2, f) + mf_qk(hh, 0) + mf_pv(3, f) + mf_qk(hh, 1) + mf_qk(hh, 2) + mf_pv(0)
    mf += mf_qk(hh, 3) + mf_pv(1) + mf_pv(2) + (pre_mf(1) if hh == 0 else []) + mf_pv(3)
    g = Gaps(mf)
    put_sm(g, 16, 16, 0); put_sm(g, 32, 34, 1)
    for t in range(16):
        g0 = 66 + 136 * t; T = 16 * hh + t
        bar = ([f"WAITVM T{T+1}"] if T < 31 else ["WAITVM PW0"]) + ["s_barrier"]
        if T == 29: bar = ["WAITVM F1"] + flag_check("FC1", 0, 128) + bar
        g.val[g0 - 1] += bar; g.used[g0 - 1] += 2
        if hh == 1 and t >= 12: g.val[g0 - 1].insert(0, "STAMP")
        if t == 15 and hh == 0:
            put_sm(g, g0, 34, 2); put_sm(g, g0 + 34, 34, 3)
            gg = g0
            for kt, tx in k_reads(slot_of(16)): gg = g.place(tx, max(gg, g0 + 4 * kt + 3)) + 1
            g.put(g0 + 48, "s_waitcnt lgkmcnt(0)")
            for i, tx in enumerate(pre_valu()): g.put(min(g0 + 72 + i // 3, len(mf) - 1), tx)
            break
        if t == 15:
            put_sm(g, g0, 34, 2); put_sm(g, g0 + 34, 18, 3)
            g.val[g0 + 51].append("s_nop 1")
            break
        for i, qb in enumerate([2, 3, 0, 1]): put_sm(g, g0 + 34 * i, 34, qb)
        nslot = slot_of(T + 1)
        gg = g0
        for kt, tx in k_reads(nslot): gg = g.place(tx, max(gg, g0 + 4 * kt + 3)) + 1
        g.put(g0 + 48, "s_waitcnt lgkmcnt(0)")
        gg = g0
        for dt, tx in v_reads(nslot): gg = g.place(tx, max(gg, g0 + 68 + 2 * dt + 1))
        assert gg < g0 + 110
        g.put(g0 + 116, "s_waitcnt lgkmcnt(0)")
    if hh == 0:
        for qb, (lo, hi, cap) in ((1, (0, 15, 5)), (2, (32, 90, 3)), (3, (66, 130, 3))):
            gg = lo
            for t in conv_h1(qb):
                while g.used[gg] >= cap: gg += 1
                assert gg <= hi, (qb, gg)
                g.put(gg, t)
        gg = 300
        for t in late_srds()[8:] + (["s_mov_b32 s49, 0"] if DIAG else []): gg = g.place(t, gg)
    else:
        for qb, (lo, hi, cap) in ((0, (0, 15, 4)), (1, (0, 15, 4)), (2, (32, 90, 3)), (3, (66, 130, 2))):
            gg = lo
            for t in pack_o0(qb):
                while g.used[gg] >= cap: gg += 1
                assert gg <= hi, (qb, gg)
                g.put(gg, t)
        gg = 700
        for t in late_srds()[:8]: gg = g.place(t, gg)
    ev = [(p_ - 2176 * hh, it) for p_, it in kv_events(O) if 2176 * hh <= p_ < 2176 * (hh + 1)]
    if hh == 1:
        B = lambda t: 66 + 136 * t
        for i, it in enumerate(o_stores(0)): ev.append((O["o0g"] + i * O["o0sp"], it))
        if O["touch"]:
            tz = []
            for j in range(4):
                tz.append([f"s_xor_b32 s4, s70, {j << 4}", "s_mul_i32 s4, s4, 15360", f"buffer_load_dword v{vFL}, v{vAD+1}, {srd(SXB)}, s4 offen nt ;PF"])
            tz.append(out_base(5) + [f"buffer_load_dword v{vFL}, v{vAD+1}, {srd(SOUT)}, s5 offen nt ;PF"])
            for i, it in enumerate(tz): ev.append((O["touch"] + 10 * i, it))
        ev.append((B(12), [poll("F1", "W")]))
        for k in range(3):
            d = dmw(k)
            for i, gr in enumerate([d[0:6], d[6:12], d[12:15]]): ev.append((B(13 + k) + (36 if k < 2 else 0) + 12 * i, gr))
        ev.append((B(15) + O["gp0"], [poll("P0", "O")]))
        g.val[O["gs0"]] += sig_c(0)
        if O["eo2"]:
            g.val[B(15) + O["e2g"] - 2] += chk_c(0)
            for i, ts in enumerate(ldo(2)[:O["e2n"]]): ev.append((B(15) + O["e2g"] + O["e2s"] * i, ts))
    if hh == 0:
        for gp, gr in zip(O["wpf"], wopf()):
            if gp >= 1152: ev.append((gp - 1152, gr))
    for gp in O["hcpf"]: ev.append((gp, [f"buffer_load_dword v{vFL}, v41, s[92:95], s90 offen ;PF"]))
    ev.sort(key=lambda x: x[0])
    cur = 0
    for lo, items in ev:
        gg = max(cur, lo)
        for u in items:
            gg = g.place(u, min(gg, len(mf) - 1), cap=3 if gg >= 66 + 136 * 15 + 32 else O['dcap'])
            if u.startswith(("s_add_u32 m0", "buffer")): gg += 1
        cur = gg
    if hh == 1:
        gg = 500
        for t in wd_setup(): gg = g.place(t, gg)
    if O["wm"]:
        for t in range(16):
            T = 16 * hh + t; gb = 66 + 136 * t - 1
            if not (O["wm0"] <= T <= O["wm1"]): continue
            cand = [u for i in range(max(0, gb - O["wm"] - 60), gb - O["wm"] + 1) for u in g.pre[i] if " U" in u]
            if cand:
                k = g.val[gb].index("s_barrier")
                g.val[gb].insert(k - 1, "WAITVM " + cand[-1].split()[-1])
    out = g.lines()
    if O.get("dg") and hh == 1:
        k = out.index("STAMP")
        body = out[:k]
        if "b" in O["dg"]: body = [l for l in body if l != "s_barrier"]
        if "d" in O["dg"]: body = [l for l in body if not l.startswith(("buffer_load_dwordx4", "WAITVM T", "s_add_u32 m0", "s_mov_b32 s48"))]
        if "r" in O["dg"]: body = [l for l in body if not l.startswith("ds_read")]
        if "c" in O["dg"]: body = [l for l in body if not l.startswith("v_cvt")]
        if "e" in O["dg"]: body = [l for l in body if not l.startswith("v_exp")]
        rest = out[k:]
        if "d" in O["dg"]: rest = [l for l in rest if not l.startswith("WAITVM T") and ";T" not in l]
        out = body + rest
    return out

SW2, SOUT, SDBG, SFL, SXB = 20, 24, 60, 32, 56
FLAG_OFF = 0x2900000
XB_OFF = 0x2a00000
sNG, sKG, sWL = 91, 64, 65
sHW, sHO = 74, 78
vW2, vFL, vAO, vAD, vWR = 23, 24, 25, 26, 28
ACC = 112
OPK = 48
acc = lambda j, nt: R("v", ACC + 4 * (j * 9 + nt))
STG = [(0, 0), (0, 1), (1, 0), (2, 0), (3, 0), (1, 1), (2, 1), (3, 1)]
def of(s_, j, m_):
    if s_ == 1: return R("v", OPK + 16 * j + 4 * m_)
    return R("a", (0 if s_ == 0 else [128, 64, 0][(s_ - 2) % 3]) + 16 * j + 4 * m_)
wf = lambda G, k: R("a", 192 + 8 * (G % 4) + 4 * k)
WL = [144, 160, 176, 224, 240, 192, 208, 80, 96]
wl = lambda nt, m_: R("a", WL[nt] + 4 * m_)
def ldo(s_):
    x, hh = STG[s_]
    out = []
    for m_ in range(4):
        for j in range(4):
            out.append(([f"s_add_u32 s68, s{sHO+x}, {(hh * 4 + m_) * 4096}"] if j == 0 else []) +
                       [f"buffer_load_dwordx4 {of(s_, j, m_)}, v{vL16}, {srd(SOW)}, s68 offen offset:{j*1024} sc1 ;PO{s_}{'ab'[m_ >> 1]}"])
    return out
def wopf():
    return [[f"s_mov_b32 s{sT}, {i * 18 * 128}", f"buffer_load_dword v22, v29, {srd(SWO)}, s{sT} offen ;PF"] for i in range(4)]
VWD = [1, 2, 22, 29, 42, 37, 38, 39, 40]
def wd_setup():
    r = []
    for i in range(9):
        r += [f"v_add_u32 v34, {64*i}, v0", "v_mul_u32_u24 v35, 3641, v34", "v_lshrrev_b32 v35, 16, v35", "v_mul_u32_u24 v36, 864, v35",
              f"v_lshl_add_u32 v36, v34, 4, v36", f"v_add_u32 v{VWD[i]}, s66, v36", f"v_subrev_u32 v{VWD[i]}, {(i % 4) * 1024}, v{VWD[i]}"]
    return r
def dmw(s_):
    x, hh = STG[s_]
    out = []
    for i in range(9):
        if i % 4 == 0:
            out += [f"s_add_u32 m0, s{sWL}, {(s_ % 3) * 18432 + i * 1024}", f"s_add_u32 s{sT}, s{sHW+x}, {hh * 128 * 1152}"]
        out.append(f"buffer_load_dwordx4 v{VWD[i]}, {srd(SW2)}, s{sT} offen offset:{(i % 4) * 1024} lds ;PW{s_}")
    return out
def rdw1(dst, s_, m_, nt):
    t, lo = dst[0], int(dst[2:].split(":")[0])
    return [f"ds_read_b64_tr_b16 {t}[{lo+2*h}:{lo+2*h+1}], v{vWR if m_ >= 2 else vW2} offset:{(s_ % 3) * 18432 + (m_ & 1) * 9216 + h * 4608 + nt * 32}" for h in range(2)]
def poll(tag, which):
    sr, so = {"W": (SDBG, 83), "O": (SFL, 82), "X": (SFL, 67)}[which]
    return f"buffer_load_dword v{vFL}, v{vAD+1}, {srd(sr)}, s{so} offen sc1 ;{tag}"
nextpoll = "s_add_u32 s82, s82, 0x10000"
def signal(which):
    if which == "W": return [f"v_mov_b32 v{vAD}, 1", "s_nop 0", f"buffer_atomic_add v{vAD}, v{vAO}, {srd(SDBG)}, s71 offen sc1 ;SG"]
    return [f"buffer_atomic_add v{vAD}, v{vAO}, {srd(SFL)}, s69 offen sc1 ;SG", "s_add_u32 s69, s69, 0x10000"]

def gen_op_setup():
    p = Asm()
    p(f"s_lshr_b32 s{sKG}, s{sHP}, 2\ns_and_b32 s{sNG}, s{sHP}, 3")
    p(f"s_mul_i32 s4, s{sKG}, {1024*1152}\ns_mul_i32 s5, s{sNG}, 288\ns_add_u32 s4, s4, s5")
    p("s_add_u32 s50, s72, s4\ns_addc_u32 s51, s73, 0")
    for x in range(4):
        if x == 0: p(f"s_mov_b32 s4, s{sNG}")
        else: p(f"s_cmp_lt_u32 {x-1}, s{sNG}\ns_cselect_b32 s4, {x-1}, {x}")
        p(f"s_mul_i32 s{sHW+x}, s4, {256*1152}\ns_lshl_b32 s{sHO+x}, s4, 15")
    p(f"v_lshl_add_u32 v34, v31, 2, v32\nv_mul_u32_u24 v34, 288, v34\nv_lshl_add_u32 v{vW2}, v33, 3, v34\nv_add_u32 v{vWR}, 0x10000, v{vW2}")
    p(f"s_lshr_b32 s6, s{sW}, 1\ns_lshl_b32 s6, s6, 16\ns_and_b32 s7, s{sW}, 1\ns_mul_i32 s7, s7, 9216\ns_add_u32 s{sWL}, s6, s7\ns_mul_i32 s66, s{sW}, {32*1152}")
    p(f"s_add_u32 s{SFL}, s88, {FLAG_OFF}\ns_addc_u32 s{SFL+1}, s89, 0\ns_mov_b32 s{SFL+2}, 0x80000\ns_mov_b32 s{SFL+3}, 0x20000")
    p(f"s_add_u32 s72, s88, {XB_OFF}\ns_addc_u32 s73, s89, 0")
    p(f"v_mov_b32 v{vAD+1}, 0\nv_lshlrev_b32 v{vAO}, 19, v0\ns_lshl_b32 s83, s{sBR}, 7")
    p(f"s_lshl_b32 s4, s{sBR}, 3\ns_add_u32 s4, s4, s{sB}\ns_lshl_b32 s5, s4, 2\ns_add_u32 s5, s5, s{sW}\ns_lshl_b32 s5, s5, 2\ns_add_u32 s5, s5, s{sKG}\ns_lshl_b32 s69, s5, 8\ns_mov_b32 s82, s69")
    p(f"s_lshl_b32 s5, s{sNG}, 19\ns_add_u32 s5, s5, s69\nv_lshlrev_b32 v{vAD}, 16, v0\nv_lshrrev_b32 v34, 1, v0\nv_lshl_add_u32 v{vAD}, v34, 19, v{vAD}\nv_add_u32 v{vAD}, s5, v{vAD}")
    p(f"s_lshl_b32 s4, s4, 4\ns_add_u32 s4, s4, s{sHP}\ns_lshl_b32 s4, s4, 2\ns_add_u32 s70, s4, s{sW}")
    p("s_lshl_b32 s67, s70, 8\ns_add_u32 s67, s67, 0x40000")
    p(f"s_lshl_b32 s71, s{sW}, 8\ns_add_u32 s71, s71, s83")
    return p
ZF = lambda: [f"buffer_store_dword v{vAD+1}, v{vAD}, {srd(SFL)}, 0 offen sc1 ;ZF", f"buffer_store_dword v{vAD+1}, v{vAO}, {srd(SFL)}, s67 offen sc1 ;ZF"]
def late_srds():
    r = []
    for sr, lo, n in ((SW2, 50, 1023 * 1152 + 288), (SOUT, 84, 8 * 256 * 1152 * 2), (SDBG, 86, 256), (SXB, 72, 1024 * 15360)):
        r += [f"s_mov_b32 s{sr}, s{lo}", f"s_mov_b32 s{sr+1}, s{lo+1}", f"s_mov_b32 s{sr+2}, {n}", f"s_mov_b32 s{sr+3}, 0x20000"]
    return r

def flag_check(name, shift, want, bits=8):
    return [f"s_mov_b32 s55, 0x20000", f"{name}_RE:",
            f"v_readfirstlane_b32 s53, v{vFL}", "s_nop 0", f"s_bfe_u32 s53, s53, {shift | (bits << 16)}", f"s_cmp_ge_u32 s53, {want}",
            f"s_cbranch_scc0 {name}_SPIN", f"{name}_OK:"]
def flag_spin(name, which):
    cnt = {"FC1": 0, "FC4": 0}.get(name, 1 << (4 * int(name[2:])))
    return [f"{name}_SPIN:"] + ([f"s_add_u32 s49, s49, {cnt}"] if DIAG else []) + ["s_sub_u32 s55, s55, 1", f"s_cbranch_scc1 {name}_OK", f"s_sleep {1 if which == 'X' else 8}", poll("FS", which), "s_waitcnt vmcnt(0)", f"s_branch {name}_RE"]

SEL = 96
def gen_oproj(O):
    D = 2
    DF = O["defer"]
    mf = []; gs_ = []
    for r in range(14):
        s_, h = r >> 1, r & 1
        for nt in range(9):
            gs_.append(len(mf))
            for j in range(1 if s_ >= DF else 0, 4):
                for k in range(2):
                    mf.append(mf16(acc(j, nt), wf(9 * r + nt, k), of(s_, j, 2 * h + k), "0" if (r == 0 and k == 0) else acc(j, nt)))
    L7 = len(mf); gs_.append(L7)
    for j in (1, 2, 3, 0):
        for nt in range(9):
            for m_ in range(4):
                mf.append(mf16(acc(j, nt), wl(nt, m_), of(7, j, m_), acc(j, nt)))
    for s_ in range(DF, 7):
        for nt in range(9):
            for m_ in range(4):
                mf.append(mf16(acc(0, nt), wl(nt, m_), of(s_, 0, m_), acc(0, nt)))
    g = Gaps(mf)
    ST = lambda s_: gs_[18 * s_]
    def rdw(G):
        r, nt = G // 9, G % 9
        return sum((rdw1(wf(G, k), r >> 1, 2 * (r & 1) + k, nt) for k in range(2)), [])
    head = []
    for G in range(D): head += rdw(G)
    BARG = {}
    for G in range(126):
        g0 = gs_[G]; ge = gs_[G + 1] - 1
        if G + D < 126:
            for i, t in enumerate(rdw(G + D)): g.put(g0 + (i if ge - g0 == 7 or G % 18 != 17 - D else i // 2), t)
        if G % 18 == 17 - D:
            s_ = G // 18
            g.put(ge - 1, f"WAITVM PW{s_+1}")
            g.put(ge, "s_waitcnt lgkmcnt(0)"); g.put(ge, "s_barrier"); BARG[s_] = ge
        if G % 18 == 17 and G // 18 >= 1:
            g.put(ge, f"WAITVM PO{G // 18 + 1}{'b' if G // 18 == 6 else 'a'}")
        if G % 18 == 8 and G // 18 >= 2:
            g.put(ge, f"WAITVM PO{G // 18}b")
    gg = BARG[6] + 1
    for nt in range(9):
        for m_ in range(4):
            for t in rdw1(wl(nt, m_), 7, m_, nt): gg = g.place(t, max(gg, L7 if nt >= 5 else 0))
    assert gg < L7 + 30, gg - L7
    for i, s_ in enumerate(range(DF, 7)):
        p0 = L7 + 108 + 36 * i
        for nt in range(9):
            for m_ in range(4):
                for t in rdw1(wl(nt, m_), s_, m_, nt): g.put(p0 + 4 * nt + m_ + 4, t)
    ev = []
    for s_ in range(3, 8):
        d = dmw(s_)
        gs = [d[0:3], d[3:4], d[4:5], d[5:6], d[6:9], d[9:10], d[10:11], d[11:12], d[12:15]]
        ev += [(BARG[s_ - 3] + 1 + (O["wsp"] if s_ < 7 else O["wsp7"]) * i, gr, 1) for i, gr in enumerate(gs)]
    for i, ts in enumerate(o_stores(1)): ev.append((O["osg"] + i * O["ossp"], ts, 1))
    if O["eo2"]:
        for i, ts in enumerate(ldo(2)[O["e2n"]:]): ev.append((1 + 4 * i, ts, 1))
    if not O["eo2"]: ev.append((O["go"] - 2, chk_c(0), 0))
    ev.append((O["gs1"], sig_c(1), 0))
    ev.append((O["gp1"], [poll("P1", "O")], 1))
    ev.append((O["gc1"], chk_c(1), 0))
    n1 = 32 if O["eo2"] else 48
    osp1 = O.get("osp1", O["osp"])
    assert O["go"] + n1 * osp1 <= O["gc1"] + 2 and O["go"] + (n1 - 16) * osp1 >= 144 and O["gc1"] >= 432
    assert O["gc1"] + 2 + 16 * O["osp"] >= 576 and O["gc1"] + 2 + 32 * O["osp"] >= 720
    for g0, ss, sp in ((O["go"], (3, 4) if O["eo2"] else (2, 3, 4), osp1), (O["gc1"] + 2, (5, 6, 7), O["osp"])):
        for i, ts in enumerate(sum((ldo(s_) for s_ in ss), [])): ev.append((g0 + i * sp, ts, 1))
    su = Asm()
    su("v_lshlrev_b32 v34, 2, v31\nv_sub_u32 v34, v30, v34\nv_mov_b32 v35, 0x3f80\nv_mov_b32 v36, 0x3f800000")
    for i in range(2):
        su(f"v_cmp_eq_u32 vcc, {2*i}, v34\nv_mov_b32 v{SEL+2+i}, 0\nv_mov_b32 v{SEL+4+i}, 0\nv_cndmask_b32 v{SEL+i}, 0, v35, vcc")
        su(f"v_cmp_eq_u32 vcc, {2*i+1}, v34\nv_mov_b32 v37, 0\nv_mov_b32 v37, 0\nv_cndmask_b32 v{SEL+i}, v{SEL+i}, v36, vcc\nv_mov_b32 v{SEL+6+i}, v{SEL+i}")
    su(f"v_mul_u32_u24 v9, 304, v30\nv_lshl_add_u32 v9, v31, 3, v9\nv_add_u32 v9, s{sW8K}, v9\nv_add_u32 v9, {SP}, v9")
    for i in range(5):
        su(f"v_add_u32 v34, {64*i}, v0\nv_mul_u32_u24 v35, 3641, v34\nv_lshrrev_b32 v35, 16, v35\nv_mul_u32_u24 v36, 18, v35\nv_sub_u32 v36, v34, v36\nv_lshlrev_b32 v36, 4, v36")
        su(f"v_mul_u32_u24 v34, 304, v35\nv_add3_u32 v{10+i}, v34, v36, s{sW8K}\nv_add_u32 v{10+i}, {SP}, v{10+i}\nv_mul_u32_u24 v34, 2304, v35\nv_add_u32 v{15+i}, v34, v36")
    su("v_cmp_gt_u32 vcc, 32, v0\nv_mov_b32 v34, 0x7fff0000\nv_lshlrev_b32 v8, 3, v0\nv_cndmask_b32 v19, v34, v19, vcc")
    su_lines = su.lines
    for pi, j in enumerate((1, 2, 3)):
        gg = L7 + 36 * pi + 12
        first = True
        for n0 in range(0, 9, 2):
            d = ACC + 4 * (9 * j + n0)
            gg = max(gg, L7 + 36 * pi + 4 * min(n0 + 1, 8) + 3 + 5)
            cv = [f"v_cvt_pk_bf16_f32 v{d}, v{d}, v{d+1}", f"v_cvt_pk_bf16_f32 v{d+1}, v{d+2}, v{d+3}"]
            if n0 < 8: cv += [f"v_cvt_pk_bf16_f32 v{d+2}, v{d+4}, v{d+5}", f"v_cvt_pk_bf16_f32 v{d+3}, v{d+6}, v{d+7}"]
            for t in cv: gg = g.place(t, gg, cap=3 if gg >= L7 + 112 else 2)
            gg += 1
            if first:
                for t in (f"s_xor_b32 s71, s70, {j << 4}", "s_mul_i32 s71, s71, 15360", f"s_add_u32 s71, s71, {(j - 1) * 5120}"): gg = g.place(t, gg)
                first = False
            if n0 == 8:
                gg = g.place("s_add_u32 s71, s71, 4096", gg, cap=3)
                gg = g.place(f"buffer_store_dwordx2 v[{d}:{d+1}], v8, {srd(SXB)}, s71 offen sc1 ;XS{j}", gg, cap=3) + 1
            else:
                gg = g.place(f"buffer_store_dwordx4 v[{d}:{d+3}], v{vL16}, {srd(SXB)}, s71 offen offset:{(n0 // 2) * 1024} sc1 ;XS{j}", gg, cap=3 if gg >= L7 + 112 else 2) + 1
    ev.sort(key=lambda x: x[0])
    cur = 0
    for lo, items, stride in ev:
        gg = max(cur, lo)
        if stride == 0:
            g.val[gg] += items; gg += 1
        else:
            for u in items:
                gg = g.place(u, gg)
                if u.startswith("s_add_u32 m0"): gg += 1
                if u.startswith("buffer"): gg += stride
        cur = gg
    lastw = max(i for i in range(len(mf)) if any(";PW7" in u for u in g.pre[i]))
    gg = lastw + 1
    for t in su_lines: gg = g.place(t, gg)
    assert gg < L7 + 8, gg - L7
    for j, gp in zip((1, 2, 3), O["xsig"]):
        if gp is not None: g.val[L7 + gp] += xsig(j)
    for s_ in (0, 1, 2, 4, 6): g.val[ST(s_ + 1) - 1].append("STAMP2")
    return head + g.lines()

def xsig(j):
    return [f"s_xor_b32 s4, s70, {j << 4}", "s_lshl_b32 s4, s4, 8", "s_add_u32 s4, s4, 0x40000", f"WAITVM XS{j}",
            f"buffer_atomic_add v{vAD}, v{vAO}, {srd(SFL)}, s4 offen sc1 ;SG"]

def out_base(d):
    return [f"s_lshl_b32 s{d}, s{sB}, 4", f"s_lshl_b32 s6, s{sW}, 2", f"s_add_u32 s{d}, s{d}, s6", f"s_add_u32 s{d}, s{d}, s{sKG}", f"s_mul_i32 s{d}, s{d}, {16*2304}",
            f"s_mul_i32 s6, s{sBR}, 1152", f"s_add_u32 s{d}, s{d}, s6", f"s_mul_i32 s6, s{sNG}, 288", f"s_add_u32 s{d}, s{d}, s6"]
def gen_ored(O):
    e = Asm()
    for j, gp in zip((1, 2, 3), O["xsig"]):
        if gp is None: e.lines += xsig(j)
    e("STAMP2")
    e(poll("F4", "X"))
    e.lines += out_base(4) + ["s_mul_i32 s71, s70, 15360"]
    e("s_waitcnt vmcnt(0)")
    e.lines += flag_check("FC4", 0, 3) + ["STAMP2"]
    xr = lambda j, i: 20 * (j - 1) + 4 * i
    for i in range(5):
        for j in (1, 2, 3):
            e(f"s_add_u32 s{sT}, s71, {(j - 1) * 5120 + i * 1024}")
            if i < 4: e(f"buffer_load_dwordx4 {R('a', xr(j, i))}, v{vL16}, {srd(SXB)}, s{sT} offen sc1 ;XL{i}")
            else: e(f"buffer_load_dwordx2 a[{xr(j, i)}:{xr(j, i)+1}], v8, {srd(SXB)}, s{sT} offen sc1 ;XL{i}")
    for j in (1, 2, 3):
        e(f"v_accvgpr_write_b32 a{xr(j, 4)+2}, 0\nv_accvgpr_write_b32 a{xr(j, 4)+3}, 0")
    def fin(nt):
        d = ACC + 4 * nt
        e(f"v_cvt_pk_bf16_f32 v{d}, v{d}, v{d+1}\nv_cvt_pk_bf16_f32 v{d+1}, v{d+2}, v{d+3}")
        e(f"ds_write_b64 v9, v[{d}:{d+1}] offset:{nt*32}")
    for i in range(5):
        e(f"WAITVM XL{i}")
        for t in range(2 if i < 4 else 1):
            for j in (1, 2, 3):
                e(mf16(acc(0, 2 * i + t), R("v", SEL + 4 * t), R("a", xr(j, i)), acc(0, 2 * i + t)))
        if i >= 1:
            e("s_nop 1"); fin(2 * i - 2); fin(2 * i - 1)
    e("s_nop 1"); fin(8)
    e("s_waitcnt lgkmcnt(0)")
    for i in range(5): e(f"ds_read_b128 {R('v', 48+4*i)}, v{10+i}")
    for i in range(5): e(f"buffer_store_dwordx4 {R('v', 48+4*i)}, v{15+i}, {srd(SOUT)}, s4 offen {O['oaux']}")
    return e.lines

STAUX = 'sc1'
DIAG = False
def o_stores(hh):
    return [[f"s_add_u32 s72, s{sHO}, {(hh * 4 + m_) * 4096}",
             f"buffer_store_dwordx4 {of(hh, j, m_)}, v{vL16}, {srd(SOW)}, s72 offen offset:{j*1024} {STAUX} ;OC{hh}"] for m_ in range(4) for j in range(4)]
sig_c = lambda c: [f"WAITVM OC{c}"] + signal("O")
chk_c = lambda c: [f"WAITVM P{c}"] + flag_check(f"FO{c}", 0, 4) + [nextpoll]

def gen_fallback(hh):
    e = Asm(); n = f"FB{hh}"
    T0 = 10 if hh else 34
    e.label(n)
    e("s_waitcnt vmcnt(0) lgkmcnt(0)\ns_mov_b32 s7, m0")
    e("v_and_b32 v38, 1, v31\nv_lshrrev_b32 v39, 1, v31\nv_lshl_add_u32 v38, v38, 1, v39\nv_lshlrev_b32 v38, 4, v38\nv_lshl_add_u32 v38, v30, 8, v38".replace("v38", f"v{T0+4}").replace("v39", f"v{T0+5}"))
    e(f"v_lshl_add_u32 v39, v31, 2, v32\nv_lshlrev_b32 v39, 8, v39\nv_lshl_add_u32 v39, v33, 3, v39\nv_add_u32 v39, s{sW8K}, v39\nv_add_u32 v39, {SP}, v39".replace("v39", f"v{T0+5}"))
    for qb in range(4): e(f"v_mov_b32 v{T0+qb}, 0xff800000")
    kfr = lambda kt, ks: R("a", 192 + 16 * kt + 4 * ks)
    def kload():
        e("s_add_u32 s5, s4, 4096")
        for kt in range(2):
            for ks in range(4): e(f"buffer_load_dwordx4 {kfr(kt, ks)}, v{T0+4}, {srd(SK)}, s{4+kt} offen offset:{ks*64}")
    def qk(neg):
        for qb in range(4):
            for kt in range(2):
                d = R("v", S_ + 8 * qb + 4 * kt)
                for ks in range(4): e(mf16(d, kfr(kt, ks), qf(hh, qb, ks), (R("v", NEGM + 4 * qb) if neg else "0") if ks == 0 else d))
        e("s_nop 7")
    l1 = Asm(); l2 = Asm(); mid = Asm(); top = e
    e = l1
    kload(); e("s_waitcnt vmcnt(0)"); qk(False)
    for i in range(4):
        for qb in range(4): e(f"v_max3_f32 v{T0+qb}, v{T0+qb}, v{S_+8*qb+2*i}, v{S_+8*qb+2*i+1}")
    e = mid
    for op in ("v_permlane16_swap_b32", "v_permlane32_swap_b32"):
        for qb in range(4): e(f"v_mov_b32 v{S_+qb}, v{T0+qb}")
        e("s_nop 1")
        for qb in range(4): e(f"{op} v{T0+qb}, v{S_+qb}")
        for qb in range(4): e(f"v_max_f32 v{T0+qb}, v{T0+qb}, v{S_+qb}")
    for qb in range(4):
        for i in range(4): e(f"v_sub_f32 v{NEGM+4*qb+i}, 0, v{T0+qb}")
    for i in range(128): e(f"v_mov_b32 v{O_+i}, 0")
    for i in range(16): e(f"v_mov_b32 v{L_+i}, 0")
    e = l2
    kload()
    for hf in range(2):
        e(f"s_add_u32 m0, s{sW8K}, {SP + hf * 4096}\ns_nop 0")
        for i in range(4): e(f"buffer_load_dwordx4 v{vL16}, {srd(SV)}, s{4+hf} offen offset:{i*1024} lds")
    e("s_waitcnt vmcnt(0)")
    for dt in range(8):
        for h in range(2): e(f"ds_read_b64_tr_b16 a[{224+4*dt+2*h}:{225+4*dt+2*h}], v{T0+5} offset:{h*4096 + dt*32}")
    qk(True)
    for i in range(32): e(f"v_exp_f32 v{S_+i}, v{S_+i}")
    e("s_nop 0")
    for j in range(16): e(f"v_cvt_pk_bf16_f32 v{P_+j}, v{S_+2*j}, v{S_+2*j+1}")
    e("s_waitcnt lgkmcnt(0)\ns_nop 0")
    for qb in range(4):
        for dt in range(8):
            o = R("v", O_ + 32 * qb + 4 * dt)
            e(mf16(o, R("a", 224 + 4 * dt), R("v", P_ + 4 * qb), o))
        e(mf16(R("v", L_ + 4 * qb), R("v", ONES), R("v", P_ + 4 * qb), R("v", L_ + 4 * qb)))
    redo = (pre_mf(1) + ["s_nop 7"] + pre_valu()) if hh == 0 else []
    lo, hi = hh * 262144, (hh + 1) * 262144
    nxt = lambda lab: ["s_add_u32 s4, s4, 8192", f"s_cmp_lt_u32 s4, {hi}", f"s_cbranch_scc1 {lab}"]
    code = top.lines + [f"s_mov_b32 s4, {lo}", f"{n}_L1:"] + l1.lines + nxt(f"{n}_L1") + mid.lines + [f"s_mov_b32 s4, {lo}", f"{n}_L2:"] + l2.lines + nxt(f"{n}_L2") + redo + ["s_mov_b32 m0, s7", "s_nop 7", f"s_branch {n}_RET"]
    trace = top.lines + l1.lines + nxt("x") + l1.lines + nxt("x") + mid.lines + l2.lines + nxt("x") + l2.lines + nxt("x") + redo + ["s_nop 7"]
    return code, trace

def l_check(hh):
    r = [f"v_cmp_nge_f32 s[{4+2*(qb&1)}:{5+2*(qb&1)}], s{sTH}, v{L_+4*qb}" if qb < 2 else f"v_cmp_nge_f32 {'vcc' if qb == 2 else 's[100:101]'}, s{sTH}, v{L_+4*qb}" for qb in range(4)]
    r += ["s_nop 0", "s_or_b64 s[4:5], s[4:5], s[6:7]", "s_or_b64 vcc, vcc, s[100:101]", "s_or_b64 s[4:5], s[4:5], vcc", f"s_cbranch_scc1 FB{hh}", f"FB{hh}_RET:"]
    return r

def gen_epi(O, last):
    p = Asm()
    p("s_nop 7")
    p.lines += l_check(1 if last else 0)
    rl = lambda qb: 112 + 2 * qb
    for qb in range(4): p(f"v_rcp_f32 v{rl(qb)}, v{L_+4*qb}")
    if not last:
        p.lines += signal("W")
        p.lines += [t for _, t in v_reads(slot_of(16))]
    for qb in range(4):
        o = O_ + 32 * qb
        for i in range(0, 32, 2):
            p(f"v_pk_mul_f32 v[{o+i}:{o+i+1}], v[{o+i}:{o+i+1}], v[{rl(qb)}:{rl(qb)+1}] op_sel_hi:[1,0]")
        if last:
            for j in range(16): p(f"v_cvt_pk_bf16_f32 v{OPK + 16 * qb + j}, v{o+2*j}, v{o+2*j+1}")
    return p

def stamp(i):
    return [f"s_memtime s[96:97]", "s_memrealtime s[98:99]", "s_waitcnt lgkmcnt(0)", f"v_writelane_b32 v43, s96, {i}", f"v_writelane_b32 v43, s98, {32+i}"]

def gen_kf(stamps=False, **opt):
    st = (lambda i: stamp(i)) if stamps else (lambda i: [])
    O = dict(tlb=None, rsv=0, npre=4, t2=0, wm=0, wm0=3, wm1=28, dcap=3, kw=None, kwv=0, defer=5, wsp7=9, xsig=(130, 160, 190), touch=0, oaux='', eo2=1, e2g=44, e2s=4, e2n=4, osg=50, la=[(2, 2.28), (25, 2.28), (32, 3.4)], dsp=1.0, doff=0, cp2=1, wdv=0, o0g=66+136*12+20, wpf=(1140, 1141, 1142, 1143), o0sp=15, gs0=66+136*14+70, ossp=14, gp0=5, go=230, gs1=330, gp1=440, gc1=520, osp=8, wsp=14, xd=6, cpf=1, pro=('W0', 'X0', 'W1', 'S1'), ear=('S2', 'W2', 'X1', 'W3'), gpf={'S3': 60, 'S4': 136, 'S5': 264, 3: 392, 'S8': 520}, gcpf=521, gzf=1100, ccap=4, hcpf=(1200,), xaux='', waux='', st=8, xp=92, xs=9, t0=(600, 760), t1=(760, 930))
    O.update(opt)
    global DIAG, XAUX, WAUX, VMLOOK, KW, RSV, WAREA
    RSV = O['rsv']; WAREA = [16384, 81920, 0, 65536] if RSV else [49152, 114688, 32768, 98304]
    KW = O['kw']
    VMLOOK = O.get("vml", 6)
    DIAG = stamps; XAUX = O["xaux"]; WAUX = O["waux"]
    pro = gen_prologue().lines
    for it in O["pro"]: pro += early_item(it)
    if O.get("skipkv"):
        pro2 = gen_prologue2(O).lines + ["s_lshr_b32 s4, s2, 3", f"s_mul_i32 s4, s4, {O['skipkv'][0]}", "s_and_b32 s4, s4, 31", f"s_cmp_lt_u32 s4, {O['skipkv'][1]}",
                                         "s_cselect_b32 s100, 0, -1"]
        pro += pro2 + gen_prologue3().lines + gen_addr2().lines + gen_op_setup().lines
    else: pro += gen_prologue2(O).lines + gen_prologue3().lines + gen_addr2().lines + gen_op_setup().lines
    if stamps:
        if O.get("pst"):
            i1 = pro.index("s_waitcnt lgkmcnt(0)")
            i2 = next(i for i, l in enumerate(pro) if l.startswith("buffer_"))
            i3 = next(i for i, l in enumerate(pro) if l.startswith("s_getpc"))
            pro = pro[:i1 + 1] + st(23) + pro[i1 + 1:i2] + st(24) + pro[i2:i3] + st(25) + pro[i3:] + st(26)
        pro = pro[:4] + ["v_mov_b32 v43, 0"] + st(0) + pro[4:]
    qp = gen_qproj(O)
    S_T = ["STAMP"]
    h0 = gen_head(0, O, st); h1 = gen_head(1, O, st)
    epi0 = gen_epi(O, False).lines
    prog = pro + qp[:3] + S_T + qp[3:] + [t for _, t in k_reads(slot_of(0))] + ["s_nop 1"] + gen_prepass0() + S_T + h0 + S_T + epi0 + S_T + h1 + S_T + \
        gen_epi(O, True).lines + S_T + gen_oproj(O) + S_T + gen_ored(O) + S_T
    nb = []; si = 1
    for l in prog:
        if l == "STAMP": nb += st(si); si += 1
        elif l == "STAMP2":
            if O.get("fine"): nb += st(si); si += 1
        else: nb.append(l)
    if O.get("skipkv"): nb = [l.replace(" nt lds ;T0", " lds ;T0").replace("s[100:101]", "s[6:7]") for l in nb]
    prog = resolve_vm(nb)
    prog, _ = auto_lgkm(prog)
    a = Asm()
    cold = []
    for n, w_ in [("FC1", "W"), ("FC4", "X")] + [(f"FO{c}", "O") for c in range(2)]: cold += flag_spin(n, w_)
    k0 = prog.index("FB0_RET:")
    fb = []
    for hh in range(2):
        code, tr = gen_fallback(hh)
        fb.append(code)
        k = prog.index(f"FB{hh}_RET:")
        assert not chk.check(prog[k - 200:k] + tr + prog[k:k + 300], verbose=False)
    a.lines += prog
    if stamps:
        a("s_waitcnt vmcnt(0)")
        a.lines += st(si)
        print('stamps', si + 1)
        a('v_writelane_b32 v43, s49, 31')
        a(f"s_lshl_b32 s4, s2, 2\ns_add_u32 s4, s4, s{sW}\ns_lshl_b32 s4, s4, 8\ns_add_u32 s4, s4, 0x8000000")
        a("s_mov_b32 s8, s88\ns_mov_b32 s9, s89\ns_mov_b32 s10, 0x10000000\ns_mov_b32 s11, 0x20000\nv_lshlrev_b32 v41, 2, v0")
        a("buffer_store_dword v43, v41, s[8:11], s4 offen")
    a("s_endpgm")
    a.label("K1_COLD")
    a.lines += cold + fb[0] + fb[1]
    a.label("K1_END")
    trace = prog
    errs = chk.check(trace, maxerr=8)
    assert not errs or O.get('diag')
    return a.text()

if __name__ == "__main__":
    import sys
    for name, kw in eval(sys.argv[1] if len(sys.argv) > 1 else "[('kf', {})]"):
        kw.setdefault("stamps", True)
        body = gen_kf(**kw)
        open(name + ".s", "w").write(single_kernel_file(body, 256, 256, 160 * 1024, vgpr=512, accum=256))
```

```python
from g import *
import chk, re
from k2 import WOT_OFF, mf16, R

KR, VR, SP = 0, 65536, 131072
SL = [32768, 98304, 131072]
C_SCALE = 0x3e0293ee
THRESH = 0x53800000

sW = 3
SK, SV, SX, SWQ, SWO, SOW, SWT = 8, 12, 16, 20, 24, 28, 32
SPW, SPX = 56, 60
sWOB = 54
sBR, sB, sHP, sW4K, sW8K, sT, sC, sXO, sKOFF, sIT, sHD, sOO, sTH = 36, 37, 38, 39, 40, 41, 42, 44, 48, 49, 50, 51, 52
srd = lambda s: f"s[{s}:{s+3}]"
vX2, vXR = 42, 39
vX, vWQ, vL16, vKD, vVD, vWA, vKA, vVA, vTMP = 1, 2, 3, 4, 8, 48, 10, 14, 29
ONES, L_, NEGM, P_, S_, O_ = 44, 48, 64, 80, 96, 128
Q_, Q2_, KF, VF = 0, 64, 128, 192

VMLOOK = 6
class Gaps:
    def __init__(self, mf):
        self.mf = mf
        self.pre = [[] for _ in mf]
        self.val = [[] for _ in mf]
        self.used = [0] * len(mf)
    def put(self, g, txt, cost=1):
        (self.val if txt.startswith("v_") else self.pre)[g].append(txt)
        self.used[g] += cost
    def place(self, txt, lo, hi=None, cost=1, cap=2):
        hi = len(self.mf) - 1 if hi is None else hi
        vm = txt.startswith("buffer"); va = txt.startswith("v_")
        for look in ((VMLOOK, 1 << 30) if not va else (1 << 30,)):
            for g in range(lo, min(hi, lo + look) + 1):
                if self.used[g] + cost > cap: continue
                if look == VMLOOK:
                    if vm and self.pre[g]: continue
                    if not vm and any(u.startswith("buffer") for u in self.pre[g]): continue
                self.put(g, txt, cost); return g
        g = min(range(lo, hi + 1), key=lambda x: self.used[x])
        self.put(g, txt, cost)
        return g
    def lines(self):
        out = []
        for m, p, v in zip(self.mf, self.pre, self.val):
            out.append(m); out += p; out += v
        return out

def auto_lgkm(lines, pend=None, age=16):
    out = []
    pend = [] if pend is None else pend
    pos = pend[-1][1] + 1000 if pend else 0
    for l in lines:
        if l.endswith(":") or l.startswith("."):
            out.append(l); continue
        x = chk.I(l)
        if x.kind == "wait" and x.lg is not None:
            pend = pend[len(pend) - x.lg:] if 0 < x.lg < len(pend) else ([] if x.lg == 0 else pend)
        touched = set(x.r + x.w)
        mm = re.search(r'need:(\S+)', l)
        if mm: touched |= set(chk.regs_of(mm.group(1)))
        need = -1
        for i, (rs, _) in enumerate(pend):
            if touched & rs: need = i
        if need >= 0:
            for i, (rs, p) in enumerate(pend):
                if pos - p >= age: need = max(need, i)
            n = len(pend) - 1 - need
            n = min(n, 15)
            out.append(f"s_waitcnt lgkmcnt({n})")
            pend = pend[len(pend) - n:] if n > 0 else []
        out.append(l)
        if x.kind in ("dsr", "dsw"):
            pend.append((set(x.w), pos))
        pos += 1
    return out, pend

def resolve_vm(lines):
    out = []; ops = []; done = -1
    totals = {}
    for u in lines:
        if u.startswith(("buffer_", "global_")) and ";" in u:
            for t in u.split(";")[1].split(): totals[t] = totals.get(t, 0) + 1
    for l in lines:
        if l.startswith("WAITVM"):
            tag = l.split()[1]
            idx = max(i for i, t in enumerate(ops) if tag in t)
            assert totals[tag] == sum(1 for t in ops if tag in t), tag
            if idx <= done: continue
            n = len(ops) - 1 - idx
            assert n <= 63
            done = idx
            out.append(f"s_waitcnt vmcnt({n})")
            continue
        mw = re.match(r"s_waitcnt vmcnt\((\d+)\)", l)
        if mw: done = max(done, len(ops) - 1 - int(mw.group(1)))
        if l.startswith(("buffer_", "global_")):
            if len(ops) - 1 - done >= 63:
                out.append("s_waitcnt vmcnt(54)"); done = len(ops) - 1 - 54
            ops.append(l.split(";")[1].split() if ";" in l else [])
        out.append(l)
    return out

def koff_set(tile):
    return [f"s_mov_b32 s{sKOFF}, {tile * 16384}", f"s_add_u32 s{sKOFF}, s{sROT}, {tile * 16384}", f"s_and_b32 s{sKOFF}, s{sKOFF}, 0x3ffff"]
def koff_next():
    return [f"s_add_u32 s{sKOFF}, s{sKOFF}, 16384"]
def kv_dma(tile_slot, soff, tag, which="KV"):
    r = []
    if "K" in which:
        r.append(f"s_add_u32 m0, s{sW4K}, {KR + tile_slot * 16384}")
        for n in range(4):
            r.append(f"buffer_load_dwordx4 v{vKD+n}, {srd(SK)}, {soff} offen offset:{n*1024} nt lds ;{tag}")
    if "V" in which:
        r.append(f"s_add_u32 m0, s{sW4K}, {VR + tile_slot * 16384}")
        for n in range(4):
            r.append(f"buffer_load_dwordx4 v{vVD+(n&1)}, {srd(SV)}, {soff} offen offset:{n*1024} nt lds ;{tag}")
    return r

def gen_prologue():
    p = Asm()
    p("s_cmp_lt_u32 s2, 256\ns_cbranch_scc1 K1_GO\ns_endpgm\nK1_GO:")
    p("s_load_dwordx16 s[64:79], s[0:1], 0\ns_load_dwordx8 s[80:87], s[0:1], 64\ns_load_dwordx2 s[88:89], s[0:1], 96")
    p("s_getpc_b64 s[92:93]\nK1_PC:\ns_mov_b32 s94, K1_COLD-K1_PC\ns_mov_b32 s95, 0x20000\ns_lshr_b32 s90, s2, 3\ns_lshl_b32 s90, s90, 12")
    p("v_lshrrev_b32 v29, 6, v0\nv_and_b32 v41, 7, v0\nv_lshl_add_u32 v41, v29, 3, v41\nv_lshlrev_b32 v41, 7, v41")
    p("buffer_load_dword v22, v41, s[92:95], s90 offen ;PF")
    p(f"v_and_b32 v0, 63, v0\nv_readfirstlane_b32 s{sW}, v29")
    p("s_and_b32 s4, s2, 7\ns_lshr_b32 s5, s2, 3")
    p(f"s_lshr_b32 s{sBR}, s4, 2")
    p(f"s_and_b32 s6, s4, 1\ns_lshl_b32 s6, s6, 2\ns_and_b32 s7, s5, 3\ns_add_u32 s{sB}, s6, s7")
    p(f"s_and_b32 s6, s4, 2\ns_lshl_b32 s6, s6, 2\ns_lshr_b32 s7, s5, 2\ns_add_u32 s{sHP}, s6, s7")
    p(f"s_lshl_b32 s{sW4K}, s{sW}, 12\ns_lshl_b32 s{sW8K}, s{sW}, 13")
    p(f"s_mov_b32 s{sC}, {C_SCALE}\ns_mov_b32 s{sC+1}, {C_SCALE}\ns_mov_b32 s{sTH}, {THRESH}")
    p(f"s_lshr_b32 s6, s{sHP}, 2")
    for qb in range(4): p(f"s_xor_b32 s{sXO+qb}, s6, {qb}\ns_mul_i32 s{sXO+qb}, s{sXO+qb}, 18432")
    p("v_and_b32 v30, 15, v0\nv_lshrrev_b32 v31, 4, v0\nv_bfe_u32 v32, v0, 2, 2\nv_and_b32 v33, 3, v0")
    p(f"v_lshlrev_b32 v{vL16}, 4, v0")
    p("v_and_b32 v34, 1, v29\nv_lshl_add_u32 v34, v34, 2, v31\nv_lshlrev_b32 v34, 1, v34\nv_xor_b32 v34, v34, v30\nv_lshlrev_b32 v34, 4, v34")
    p(f"v_lshl_add_u32 v35, v29, 3, v31\nv_lshl_add_u32 v{vWQ}, v35, 13, v34")
    p("v_lshrrev_b32 v34, 3, v0\nv_lshl_add_u32 v35, v29, 6, v34\nv_mul_u32_u24 v35, 1152, v35")
    p(f"v_and_b32 v36, 7, v0\nv_xor_b32 v36, v36, v31\nv_lshlrev_b32 v36, 4, v36\nv_add_u32 v{vX}, v35, v36\nv_xor_b32 v36, 64, v36\nv_add_u32 v{vX2}, v35, v36")
    p(f"s_lshl_b32 s6, s5, 2\ns_add_u32 s6, s6, s{sW}")
    p(f"s_lshl_b32 s7, s6, 13\ns_and_b32 s53, s{sHP}, 8\ns_lshl_b32 s53, s53, 9\ns_add_u32 s7, s7, s53")
    p("v_and_b32 v37, 31, v0\nv_lshlrev_b32 v37, 7, v37\nv_add_u32 v37, s7, v37")
    p(f"s_and_b32 s53, s{sB}, 4\ns_lshl_b32 s53, s53, 8\ns_lshl_b32 s7, s6, 3\ns_add_u32 s7, s7, s53\ns_mul_i32 s7, s7, 1152")
    p("v_and_b32 v38, 7, v0\nv_mul_u32_u24 v38, 1152, v38\nv_bfe_u32 v36, v0, 3, 1\nv_lshl_add_u32 v38, v36, 7, v38\nv_add_u32 v38, s7, v38")
    p("v_and_b32 v65, 7, v0\nv_mul_u32_u24 v65, 1152, v65\nv_add_u32 v65, s7, v65")
    p(f"s_lshr_b32 s7, s6, 1\ns_lshl_b32 s7, s7, 13\ns_and_b32 s53, s6, 1\ns_lshl_b32 s53, s53, 11\ns_add_u32 s7, s7, s53\ns_and_b32 s53, s{sHP}, 8\ns_lshl_b32 s53, s53, 9\ns_add_u32 s7, s7, s53")
    p("v_lshlrev_b32 v64, 7, v30\nv_add_u32 v64, s7, v64")
    p("s_waitcnt lgkmcnt(0)")
    p(f"s_cmp_eq_u32 s{sBR}, 0")
    for i in range(10): p(f"s_cselect_b32 s{64+i}, s{64+i}, s{74+i}")
    p(f"s_lshl_b32 s4, s{sHP}, 9")
    p(f"s_add_u32 s{SWQ}, s70, s4\ns_addc_u32 s{SWQ+1}, s71, 0\ns_sub_u32 s{SWQ+2}, {576*8192}, s4\ns_mov_b32 s{SWQ+3}, 0x20000")
    p(f"s_mul_i32 s4, s{sB}, 294912")
    p(f"s_add_u32 s{SX}, s64, s4\ns_addc_u32 s{SX+1}, s65, 0\ns_mov_b32 s{SX+2}, 294912\ns_mov_b32 s{SX+3}, 0x20000")
    p(f"s_mov_b32 s{SPW}, s70\ns_mov_b32 s{SPW+1}, s71\ns_mov_b32 s{SPW+2}, {576*8192}\ns_mov_b32 s{SPW+3}, 0x20000")
    p(f"s_mov_b32 s{SPX}, s64\ns_mov_b32 s{SPX+1}, s65\ns_mov_b32 s{SPX+2}, {8*294912}\ns_mov_b32 s{SPX+3}, 0x20000")
    return p

def gen_prologue2(O):
    p = Asm()
    p(f"s_lshl_b32 s4, s{sB}, 4\ns_add_u32 s4, s4, s{sHP}")
    p("s_lshl_b32 s5, s4, 19")
    p(f"s_add_u32 s{SK}, s66, s5\ns_addc_u32 s{SK+1}, s67, 0\ns_mov_b32 s{SK+2}, 0x80000\ns_mov_b32 s{SK+3}, 0x20000")
    p(f"s_add_u32 s{SV}, s68, s5\ns_addc_u32 s{SV+1}, s69, 0\ns_mov_b32 s{SV+2}, 0x80000\ns_mov_b32 s{SV+3}, 0x20000")
    p(f"s_lshr_b32 s5, s{sHP}, 3\ns_mul_i32 s5, s5, {2048*1152}\ns_add_u32 s{SWO}, s72, s5\ns_addc_u32 s{SWO+1}, s73, 0\ns_mov_b32 s{SWO+2}, {2048*1152}\ns_mov_b32 s{SWO+3}, 0x20000")
    p(f"s_lshr_b32 s5, s2, 3\ns_lshl_b32 s5, s5, 2\ns_add_u32 s5, s5, s{sW}\ns_and_b32 s6, s2, 1\ns_lshl_b32 s6, s6, 7\ns_add_u32 s5, s5, s6\ns_mul_i32 s5, s5, {72*128}")
    p("s_mov_b32 s54, s5")
    p(f"s_lshl_b32 s5, s{sBR}, 5\ns_lshl_b32 s6, s{sB}, 2\ns_add_u32 s5, s5, s6\ns_add_u32 s5, s5, s{sW}\ns_lshl_b32 s5, s5, 7")
    p(f"s_and_b32 s6, s{sHP}, 12\ns_lshl_b32 s6, s6, 3\ns_add_u32 s5, s5, s6\ns_lshl_b32 s5, s5, 12")
    p(f"s_add_u32 s{SOW}, s88, s5\ns_addc_u32 s{SOW+1}, s89, 0\ns_mov_b32 s{SOW+2}, {32*4096}\ns_mov_b32 s{SOW+3}, 0x20000")
    return p

def gen_prologue3():
    p = Asm()
    p("v_lshlrev_b32 v35, 12, v31\nv_lshl_add_u32 v35, v32, 8, v35\nv_lshl_add_u32 v35, v33, 3, v35")
    p("v_and_b32 v34, 1, v31\nv_lshl_add_u32 v36, v34, 2, v32\nv_lshl_add_u32 v35, v36, 5, v35")
    for d3 in range(8):
        p(f"v_xor_b32 v36, {d3*32}, v35\nv_add_u32 v{vWA+d3}, {WAREA[2]}, v36\nv_add_u32 v{vWA+8+d3}, {WAREA[3]}, v36")
    p(f"v_lshrrev_b32 v34, 1, v30\nv_xor_b32 v34, v34, v31\nv_lshlrev_b32 v34, 4, v34\nv_lshl_add_u32 v34, v30, 7, v34\nv_lshl_add_u32 v34, v29, 13, v34")
    p(f"v_add_u32 v{vXR}, {SP}, v34\nv_xor_b32 v{vXR+1}, 64, v{vXR}")
    p("v_lshl_add_u32 v34, v29, 4, v31\nv_lshlrev_b32 v34, 8, v34")
    p(f"v_xor_b32 v35, v30, v31\nv_lshl_add_u32 v{vKD}, v35, 4, v34")
    for n in range(1, 4): p(f"v_xor_b32 v{vKD+n}, {n<<6}, v{vKD}")
    p(f"v_lshlrev_b32 v35, 1, v31\nv_xor_b32 v35, v30, v35\nv_lshl_add_u32 v{vVD}, v35, 4, v34\nv_xor_b32 v{vVD+1}, 0x80, v{vVD}")
    return p

RSV = False
slot_of = lambda t: (3 if (t == 31 or (t == 3 and RSV == 2)) else (t + 2) % 3) if RSV else t % 4
WAREA = [49152, 114688, 32768, 98304]
def slab_dma(H):
    ss, hh = H >> 1, H & 1
    r = [f"s_add_u32 m0, s{sW4K}, {WAREA[H % 4]}"]
    for i in range(4):
        kc, h = i >> 1, i & 1
        r.append(f"s_mov_b32 s{sT}, {(ss * 64 + 32 * kc + 4 * h) * 8192 + hh * 256 - i * 1024}")
        r.append(f"buffer_load_dwordx4 v{vWQ}, {srd(SWQ)}, s{sT} offen offset:{i*1024} {WAUX} lds ;W{H}")
    return r

def pf(pr):
    return [f"s_mov_b32 s{sT}, {pr * 128 * 8192}",
            f"buffer_load_dword v22, v37, {srd(SPW)}, s{sT} offen ;PF",
            f"buffer_load_dword v22, v38, {srd(SPX)}, 0 offen offset:{pr * 256} ;PF"]

xf = lambda ss, qb, kc: R("a", 64 + 32 * (ss % 2) + 8 * qb + 4 * kc)
def x_dma(ss, qb):
    r = [f"s_add_u32 m0, s{sW8K}, {SP + qb * 2048}"]
    need = f" need:a[{64+32*((ss-1)%2)+8*qb}:{64+32*((ss-1)%2)+8*qb+7}]" if ss > 0 else ""
    for e in range(2):
        r.append(f"s_add_u32 s{sT}, s{sXO+qb}, {e * 9216 + ss * 128 - e * 1024}")
        r.append(f"buffer_load_dwordx4 v{vX2 if e else vX}, {srd(SX)}, s{sT} offen offset:{e*1024} {XAUX} lds ;X{ss}_{qb}{need}")
    return r
def x_rd(ss, qb):
    return [f"ds_read_b128 {xf(ss, qb, kc)}, v{vXR+kc} offset:{qb*2048}" for kc in range(2)]

def wo_dma():
    r = []
    r.append(f"s_lshr_b32 s4, s{sW}, 1\ns_lshl_b32 s4, s4, 16\ns_and_b32 s5, s{sW}, 1\ns_mul_i32 s5, s5, 9216\ns_add_u32 s4, s4, s5")
    for i in range(9):
        if i % 4 == 0:
            r.append(f"s_add_u32 m0, s4, {(i >> 2) * 4096}")
            r.append(f"s_mov_b32 s{sT}, {(i >> 2) * 4096}")
        r.append(f"buffer_load_dwordx4 v{vWOD}, {srd(SWO)}, s{sT} offen offset:{(i&3)*1024} nt lds ;WO")
    return r

def early_item(it):
    k, n = it[0], int(it[1])
    if k == "W": return slab_dma(n)
    if k == "P": return pf(n)
    if k == "S": return [f"s_mov_b32 s{sT}, {n * 64 * 8192}", f"buffer_load_dword v22, v64, {srd(SPW)}, s{sT} offen ;PF", f"buffer_load_dword v22, v65, {srd(SPX)}, 0 offen offset:{n * 128} ;PF"]
    return sum((x_dma(n, qb) for qb in range(4)), [])

def qacc(dt, qb):
    return R("a", 128 + 16 * dt + 4 * qb) if dt < 8 else R("v", O_ + 32 * qb + 4 * (dt - 8))

def gen_qproj(O):
    D = 3
    NR = 6
    wfr = lambda G, kc: 80 + 8 * (G % NR) + 4 * kc
    def rd(G):
        H, d3 = G // 8, G % 8
        ar = WAREA[H % 4]
        base = vWA + (0 if ar < 65536 else 8) + d3
        extra = ar - (WAREA[2] if ar < 65536 else WAREA[3])
        return [f"ds_read_b64_tr_b16 v[{wfr(G,kc)+2*h}:{wfr(G,kc)+2*h+1}], v{base} offset:{extra + 2048*kc + 1024*h}" for kc in range(2) for h in range(2)]
    mf = []
    for G in range(144):
        ss, dt = G // 16, G % 16
        for qb in range(4):
            for kc in range(2):
                c = "0" if (ss == 0 and kc == 0) else qacc(dt, qb)
                mf.append(mf16(qacc(dt, qb), R("v", wfr(G, kc)), xf(ss, qb, kc), c))
    g = Gaps(mf)
    head = ["WAITVM X0_3", "WAITVM W0", "s_barrier"]
    for G in range(D): head += rd(G)
    for qb in range(4): head += x_rd(0, qb)
    BAR = 8 * (7 - D) + 7
    for G in range(144):
        H, d3 = G // 8, G % 8
        g0 = 8 * G
        if G + D < 144:
            for i, t in enumerate(rd(G + D)): g.put(g0 + i, t)
        if d3 == 7 - D:
            if H < 17: g.put(g0 + 6, f"WAITVM W{H+1}")
            g.put(g0 + 7, "s_waitcnt lgkmcnt(0)"); g.put(g0 + 7, "s_barrier")
    ev = []
    for i, it in enumerate(O["ear"]): ev.append((i, early_item(it), 1))
    for pr, gp in O["gpf"].items(): ev.append((gp, pf(pr) if isinstance(pr, int) else early_item(pr), 1))
    ev.append((O["gcpf"], ["buffer_load_dword v22, v41, s[92:95], s90 offen ;PF"], 1))
    for H in range(4, 18):
        sd = slab_dma(H)
        for i in range(4): ev.append((64 * (H - 4) + BAR + 1 + O["st"] * i, [sd[0]] + sd[1 + 2 * i: 3 + 2 * i], 1))
    XP = O["xp"]
    for ss in range(1, 9):
        for qb in range(4):
            gg = 128 * (ss - 1) + XP + O["xs"] * qb
            g.place(f"WAITVM X{ss}_{qb}", gg - 1)
            gg = max(gg, max(i for i in range(len(g.pre)) if f"WAITVM X{ss}_{qb}" in g.pre[i]))
            for t in x_rd(ss, qb): gg = g.place(t, gg)
            if ss < 8: ev.append((gg + O['xd'], x_dma(ss + 1, qb), 1))
    win = lambda H: 64 * H + BAR + 1
    def thin(groups, g_lo, g_hi):
        n = len(groups)
        for i, gr in enumerate(groups):
            ev.append((g_lo + (g_hi - g_lo) * i // n, gr, 1))
    def kv_groups(slot, tile, which):
        r = []
        for ten, base, vo, sr in (("K", KR, lambda n: vKD + n, SK), ("V", VR, lambda n: vVD + (n & 1), SV)):
            if ten not in which: continue
            for n in range(4):
                r.append([f"s_add_u32 m0, s{sW4K}, {base + slot * 16384}", f"s_mov_b32 s{sT}, {tile * 16384}",
                          f"buffer_load_dwordx4 v{vo(n)}, {srd(sr)}, s{sT} offen offset:{n*1024} nt lds ;T{tile}"])
        return r
    pt = (0, 31, 1, 2) if RSV == 1 else (0, 1, 2, 3)
    kg = lambda i, w: kv_groups(slot_of(pt[i]), pt[i], w)
    thin(kg(0, "KV"), *O["t0"]); thin(kg(1, "KV"), *O["t1"])
    t2 = max(O["t1"][1], win(14), O["t2"])
    thin(kg(2, "K"), t2, t2 + 30)
    t2 = max(t2 + 30, win(15))
    thin(kg(2, "V"), t2, t2 + 30)
    if O["npre"] == 4:
        t2 = max(t2 + 30, win(16))
        thin(kg(3, "K"), t2, min(t2 + 30, win(17) - 4))
        ev.append((win(17), [f"s_mov_b32 s{sKOFF}, {pt[3] * 16384}"] + kv_dma(slot_of(pt[3]), f"s{sKOFF}", f"T{pt[3]}", "V"), 1))
    for gp, gr in zip(O["wpf"], wopf()):
        if gp < 1152: ev.append((gp, gr, 1))
    if O["tlb"] is not None:
        ev.append((O["tlb"], [f"buffer_load_dword v22, v{vAD+1}, {srd(sr)}, {so} offen nt ;PF" for sr, so in ((SK, 0), (SV, 0), (SWO, "s54"))], 1))
    ev.append((O["gzf"], ZF(), 1))
    if O["kw"]:
        n, L, kth, lo, hi = O["kw"]
        for i in range(n):
            sr = SK if (O["kwv"] == 0 or i % 2 == 0) else SV
            ii = i if O["kwv"] == 0 else i // 2
            ev.append((lo + (hi - lo) * i // n, [f"s_mov_b32 s{sT}, {65536 + ii * 4 * (L // 2) * kth * 256}", f"buffer_load_dword v22, v66, {srd(sr)}, s{sT} offen ;PF"], 1))
    g.pre[64 * 17 + BAR - 1].insert(0, "WAITVM T0")
    ev.sort(key=lambda x: x[0])
    cur = 0
    for lo, items, stride in ev:
        gg = max(cur, lo + (1 if (lo + 1) % 64 == BAR + 1 else 0))
        for u in items:
            gg = g.place(u, gg)
            if u.startswith("s_add_u32 m0"): gg += 1
            if u.startswith("buffer"): gg += stride
        cur = gg
    rest = []
    gg = 0
    for ks in range(4):
        gg = max(gg, 1024 + 16 * (ks + 1) + 5)
        for t in conv_h0(ks):
            while gg < len(mf) and g.used[gg] >= O["ccap"]: gg += 1
            if gg < len(mf): g.put(gg, t)
            else: rest.append(t)
    if O.get("ssst"):
        for ss in range(9):
            g.pre[128 * ss + 127] += stamp(22 + ss)[:3]
            g.val[128 * ss + 127] += stamp(22 + ss)[3:]
    if O.get("nox"):
        for gg in range(len(g.pre)): g.pre[gg] = [t for t in g.pre[gg] if ";X" not in t and not t.startswith("WAITVM X")]
    if O.get("now"):
        for gg in range(len(g.pre)): g.pre[gg] = [t for t in g.pre[gg] if not re.search(r";W\d", t) and not re.match(r"WAITVM W\d", t)]
    if O.get("nopf"):
        for gg in range(len(g.pre)): g.pre[gg] = [t for t in g.pre[gg] if not re.search(r";PF", t)]
    if O.get("noslow"):
        for gg in range(len(g.pre)): g.pre[gg] = [t for t in g.pre[gg] if not re.search(r";(WO|WT|T\d|PF)", t) and not t.startswith(("WAITVM WO", "WAITVM T"))]
    return head + g.lines() + ["STAMP"] + rest

def gen_addr2():
    p = Asm()
    p("v_and_b32 v34, 1, v31\nv_lshrrev_b32 v35, 1, v31\nv_lshl_add_u32 v34, v34, 1, v35")
    p(f"v_xor_b32 v34, v34, v30\nv_lshlrev_b32 v34, 4, v34\nv_lshl_add_u32 v{vKA}, v30, 8, v34")
    for ks in range(1, 4): p(f"v_xor_b32 v{vKA+ks}, {ks<<6}, v{vKA}")
    p("v_lshl_add_u32 v34, v31, 2, v32\nv_and_b32 v35, 7, v34\nv_lshlrev_b32 v35, 5, v35\nv_lshl_add_u32 v35, v33, 3, v35")
    p(f"v_lshl_add_u32 v34, v34, 8, v35\nv_add_u32 v{vVA}, {VR}, v34")
    for dt in range(1, 8): p(f"v_xor_b32 v{vVA+dt}, {dt<<5}, v{vVA}")
    for i in range(4): p(f"v_mov_b32 v{ONES+i}, 0x3f803f80")
    if KW:
        L, kth = KW[1], KW[2]
        p(f"v_and_b32 v34, {L-1}, v0\nv_lshrrev_b32 v35, 1, v34\nv_mul_u32_u24 v36, {L//2}, v29\nv_add_u32 v35, v35, v36\nv_mul_u32_u24 v35, {kth*256}, v35\nv_and_b32 v34, 1, v34\nv_lshl_add_u32 v66, v34, 7, v35")
    p("v_min_u32 v29, 17, v0\nv_lshlrev_b32 v29, 7, v29\nv_add_u32 v29, s54, v29")
    return p

def conv8(t, dst, pk=False):
    return [[f"v_pk_mul_f32 v[{t+i}:{t+i+1}], v[{t+i}:{t+i+1}], s[{sC}:{sC+1}]" for i in range(0, 8, 2)] if pk else
            [f"v_mul_f32 v{t+i}, s{sC}, v{t+i}" for i in range(8)],
            [f"v_cvt_pk_bf16_f32 v{t+i}, v{t+2*i}, v{t+2*i+1}" for i in range(4)],
            [f"v_permlane16_swap_b32 v{t}, v{t+2}", f"v_permlane16_swap_b32 v{t+1}, v{t+3}"],
            [f"v_accvgpr_write_b32 a{dst+i}, v{t+i}" for i in range(4)]]
def conv_h0(ks):
    out = []
    for q2 in range(2):
        us = []
        for u in range(2):
            qb = 2 * q2 + u; t = 64 + 8 * u
            us.append([[f"v_accvgpr_read_b32 v{t+i}, a{128 + 16 * (2 * ks + (i >> 2)) + 4 * qb + (i & 3)}" for i in range(8)]] + conv8(t, 16 * qb + 4 * ks))
        for stA, stB in zip(*us): out += stA + stB
    return out
def conv_h1(qb):
    us = [conv8(O_ + 32 * qb + 8 * ks, 64 + 16 * qb + 4 * ks, qb == 0) for ks in range(4)]
    return [t for stg in zip(*us) for x in stg for t in x]

kf = lambda kt, ks: R("a", KF + 16 * kt + 4 * ks)
vf = lambda dt, kk: R("a", VF + 8 * dt + 4 * kk)
qf = lambda hh, qb, ks: R("a", 64 * hh + 16 * qb + 4 * ks)
def k_reads(slot):
    return [(kt, f"ds_read_b128 {kf(kt, ks)}, v{vKA+ks} offset:{KR + slot*16384 + kt*4096}") for kt in range(4) for ks in range(4)]
def v_reads(slot):
    return [(dt, f"ds_read_b64_tr_b16 a[{VF+8*dt+4*kk+2*h}:{VF+8*dt+4*kk+2*h+1}], v{vVA+dt} offset:{slot*16384 + kk*8192 + h*4096}") for dt in range(8) for kk in range(2) for h in range(2)]
def mf_qk(hh, qb):
    r = []
    for kt in range(4):
        s = R("v", S_ + 16 * (qb & 1) + 4 * kt)
        for ks in range(4):
            r.append(mf16(s, kf(kt, ks), qf(hh, qb, ks), R("v", NEGM + 4 * qb) if ks == 0 else s))
    return r
def mf_pv(qb, first=False):
    r = []
    for dt in range(8):
        o = R("v", O_ + 32 * qb + 4 * dt)
        for kk in range(2):
            r.append(mf16(o, vf(dt, kk), R("v", P_ + 8 * (qb & 1) + 4 * kk), "0" if (first and kk == 0) else o))
    l = R("v", L_ + 4 * qb)
    for kk in range(2):
        r.append(mf16(l, R("v", ONES), R("v", P_ + 8 * (qb & 1) + 4 * kk), "0" if (first and kk == 0) else l))
    return r
def put_sm(g, g0, n, qb):
    s = S_ + 16 * (qb & 1); pp = P_ + 8 * (qb & 1)
    if n >= 33:
        for i in range(16): g.put(g0 + 2 * i + 1, f"v_exp_f32 v{s+i}, v{s+i}", 2)
        for j in range(8): g.put(g0 + 4 * j + 4, f"v_cvt_pk_bf16_f32 v{pp+j}, v{s+2*j}, v{s+2*j+1}")
    else:
        for i in range(16): g.put(g0 + min(i, n - 1), f"v_exp_f32 v{s+i}, v{s+i}", 2)
        for j in range(8): g.put(g0 + min(2 * j + 2, n - 1), ("s_nop 0\n" if 2 * j + 2 > n - 1 else "") + f"v_cvt_pk_bf16_f32 v{pp+j}, v{s+2*j}, v{s+2*j+1}") if False else None
        for j in range(8):
            gg = min(2 * j + 2, n - 1)
            if 2 * j + 2 > n - 1: g.val[g0 + gg].append("s_nop 0")
            g.put(g0 + gg, f"v_cvt_pk_bf16_f32 v{pp+j}, v{s+2*j}, v{s+2*j+1}")

def pre_mf(hh):
    p = []
    for qb in range(4):
        s = R("v", S_ + 4 * qb)
        for ks in range(4): p.append(mf16(s, kf(0, ks), qf(hh, qb, ks), "0" if ks == 0 else s))
    return p
def pre_valu():
    p = []
    m = lambda qb: vTMP + 5 + qb
    t = lambda qb: S_ + 4 * qb
    for qb in range(4):
        s = S_ + 4 * qb
        p.append(f"v_max3_f32 v{m(qb)}, v{s}, v{s+1}, v{s+2}")
    for qb in range(4): p.append(f"v_max_f32 v{m(qb)}, v{m(qb)}, v{S_+4*qb+3}")
    for op in ("v_permlane16_swap_b32", "v_permlane32_swap_b32"):
        for qb in range(4): p.append(f"v_mov_b32 v{t(qb)}, v{m(qb)}")
        for qb in range(4): p.append(f"{op} v{m(qb)}, v{t(qb)}")
        for qb in range(4): p.append(f"v_max_f32 v{m(qb)}, v{m(qb)}, v{t(qb)}")
    for qb in range(4):
        for i in range(4): p.append(f"v_sub_f32 v{NEGM+4*qb+i}, 0, v{m(qb)}")
    return p
def gen_prepass0():
    cv = conv_h1(0)
    g = Gaps(pre_mf(0))
    for i, (_, t) in enumerate(v_reads(slot_of(0))): g.put(i // 2, t)
    for i, t in enumerate(cv[16:48]): g.put(i // 2, t)
    return cv[:16] + g.lines() + cv[48:] + pre_valu() + ["s_nop 1"]
def pack_o0(qb):
    o = O_ + 32 * qb
    return [f"v_cvt_pk_bf16_f32 v{o+j}, v{o+2*j}, v{o+2*j+1}" for j in range(16)] + [f"v_accvgpr_write_b32 a{16*qb+j}, v{o+j}" for j in range(16)]

def kv_events(O):
    ev = []
    la = O["la"]
    def LA(x):
        for (x0, y0), (x1, y1) in zip(la, la[1:]):
            if x <= x1: return y0 + (y1 - y0) * (x - x0) / (x1 - x0)
        return la[-1][1]
    if RSV == 2:
        b0, db = O["r31"]
        for i in range(8):
            vo, sr = (vKD + i, SK) if i < 4 else (vVD + (i & 1), SV)
            ev.append((66 + 136 * (b0 + db * i) + O["r31o"], [f"s_mov_b32 s{sT}, {31 * 16384}", f"s_add_u32 m0, s{sW4K}, {(KR if i < 4 else VR) + 3 * 16384}",
                       f"buffer_load_dwordx4 v{vo}, {srd(sr)}, s{sT} offen offset:{(i % 4) * 1024} nt lds ;T31"]))
    for n in (range(24, 248) if RSV == 1 else range(32, 248) if RSV == 2 else range(8 * O["npre"], 256)):
        tile, i = n // 8, n % 8
        x = tile + O["dsp"] * i / 8
        pos = int(66 + 136 * (x - LA(x))) + O["doff"]
        assert pos >= max(0, 66 + 136 * (tile - (3 if RSV else 4)))
        it = []
        if i == 0: it.append(f"s_mov_b32 s{sKOFF}, {tile * 16384}" if not O.get("skipkv") else f"s_and_b32 s{sKOFF}, s100, {tile * 16384}")
        if i % 4 == 0 or tile >= 29 or RSV == 2: it.append(f"s_add_u32 m0, s{sW4K}, {(KR if i < 4 else VR) + slot_of(tile) * 16384}")
        vo, sr = (vKD + i, SK) if i < 4 else (vVD + (i & 1), SV)
        it.append(f"buffer_load_dwordx4 v{vo}, {srd(sr)}, s{sKOFF} offen offset:{(i % 4) * 1024} nt lds ;T{tile} U{n}")
        ev.append((pos, it))
    return ev

def gen_head(hh, O, st):
    mf = mf_qk(hh, 0) + mf_qk(hh, 1) + mf_qk(hh, 2) + mf_pv(0, True)
    for t in range(15):
        f = t == 0
        mf += mf_qk(hh, 3) + mf_pv(1, f) + mf_pv(2, f) + mf_qk(hh, 0) + mf_pv(3, f) + mf_qk(hh, 1) + mf_qk(hh, 2) + mf_pv(0)
    mf += mf_qk(hh, 3) + mf_pv(1) + mf_pv(2) + (pre_mf(1) if hh == 0 else []) + mf_pv(3)
    g = Gaps(mf)
    put_sm(g, 16, 16, 0); put_sm(g, 32, 34, 1)
    for t in range(16):
        g0 = 66 + 136 * t; T = 16 * hh + t
        bar = ([f"WAITVM T{T+1}"] if T < 31 else ["WAITVM PW0"]) + ["s_barrier"]
        if T == 29: bar = ["WAITVM F1"] + flag_check("FC1", 0, 128) + bar
        g.val[g0 - 1] += bar; g.used[g0 - 1] += 2
        if hh == 1 and t >= 12: g.val[g0 - 1].insert(0, "STAMP")
        if t == 15 and hh == 0:
            put_sm(g, g0, 34, 2); put_sm(g, g0 + 34, 34, 3)
            gg = g0
            for kt, tx in k_reads(slot_of(16)): gg = g.place(tx, max(gg, g0 + 4 * kt + 3)) + 1
            g.put(g0 + 48, "s_waitcnt lgkmcnt(0)")
            for i, tx in enumerate(pre_valu()): g.put(min(g0 + 72 + i // 3, len(mf) - 1), tx)
            break
        if t == 15:
            put_sm(g, g0, 34, 2); put_sm(g, g0 + 34, 18, 3)
            g.val[g0 + 51].append("s_nop 1")
            break
        for i, qb in enumerate([2, 3, 0, 1]): put_sm(g, g0 + 34 * i, 34, qb)
        nslot = slot_of(T + 1)
        jit = T in O["jits"]
        kx = O["kx"] if jit else None; vx = O["vx"] if jit else None
        gg = g0
        for kt, tx in k_reads(nslot):
            if kt == 0 and kx is not None: g.put(g0 + 51 - kx, tx)
            else: gg = g.place(tx, max(gg, g0 + 4 * kt + 3)) + 1
        if kx is None: g.put(g0 + 48, "s_waitcnt lgkmcnt(0)")
        else: g.val[g0 + 51].append("s_waitcnt lgkmcnt(0)")
        gg = g0
        for dt, tx in v_reads(nslot):
            if dt == 0 and vx is not None: g.put(g0 + 117 - vx, tx)
            else: gg = g.place(tx, max(gg, g0 + 68 + 2 * dt + 1))
        assert gg < g0 + 110
        if vx is None: g.put(g0 + 116, "s_waitcnt lgkmcnt(0)")
        else: g.val[g0 + 117].append("s_waitcnt lgkmcnt(0)")
    if hh == 0:
        for qb, (lo, hi, cap) in ((1, (0, 15, 5)), (2, (32, 90, 3)), (3, (66, 130, 3))):
            gg = lo
            for t in conv_h1(qb):
                while g.used[gg] >= cap: gg += 1
                assert gg <= hi, (qb, gg)
                g.put(gg, t)
        gg = 300
        for t in late_srds()[8:] + (["s_mov_b32 s49, 0"] if DIAG else []): gg = g.place(t, gg)
    else:
        for qb, (lo, hi, cap) in ((0, (0, 15, 4)), (1, (0, 15, 4)), (2, (32, 90, 3)), (3, (66, 130, 2))):
            gg = lo
            for t in pack_o0(qb):
                while g.used[gg] >= cap: gg += 1
                assert gg <= hi, (qb, gg)
                g.put(gg, t)
        gg = 700
        for t in late_srds()[:8]: gg = g.place(t, gg)
    ev = [(p_ - 2176 * hh, it) for p_, it in kv_events(O) if 2176 * hh <= p_ < 2176 * (hh + 1)]
    if hh == 1:
        B = lambda t: 66 + 136 * t
        for i, it in enumerate(o_stores(0)): ev.append((O["o0g"] + i * O["o0sp"], it))
        if O["touch"]:
            tz = []
            for j in range(4):
                tz.append([f"s_xor_b32 s4, s70, {j << 4}", "s_mul_i32 s4, s4, 15360", f"buffer_load_dword v{vFL}, v{vAD+1}, {srd(SXB)}, s4 offen nt ;PF"])
            tz.append(out_base(5) + [f"buffer_load_dword v{vFL}, v{vAD+1}, {srd(SOUT)}, s5 offen nt ;PF"])
            for i, it in enumerate(tz): ev.append((O["touch"] + 10 * i, it))
        ev.append((B(12), [poll("F1", "W")]))
        for k in range(3):
            d = dmw(k)
            for i, gr in enumerate([d[0:6], d[6:12], d[12:15]]): ev.append((B(13 + k) + (36 if k < 2 else 0) + 12 * i, gr))
        ev.append((B(15) + O["gp0"], [poll("P0", "O")]))
        g.val[O["gs0"]] += sig_c(0)
        if O["eo2"]:
            if O["c0g"] is None: g.val[B(15) + O["e2g"] - 2] += chk_c(0)
            for i, ts in enumerate(ldo(2)[:O["e2n"]]): ev.append((B(15) + O["e2g"] + O["e2s"] * i, ts))
    if hh == 0:
        for gp, gr in zip(O["wpf"], wopf()):
            if gp >= 1152: ev.append((gp - 1152, gr))
    for gp in O["hcpf"]: ev.append((gp, [f"buffer_load_dword v{vFL}, v41, s[92:95], s90 offen ;PF"]))
    ev.sort(key=lambda x: x[0])
    cur = 0
    for lo, items in ev:
        gg = max(cur, lo)
        for u in items:
            gg = g.place(u, min(gg, len(mf) - 1), cap=3 if gg >= 66 + 136 * 15 + 32 else O['dcap'])
            if u.startswith(("s_add_u32 m0", "buffer")): gg += 1
        cur = gg
    if hh == 1:
        gg = 500
        for t in wd_setup(): gg = g.place(t, gg)
    if O["wm"]:
        for t in range(16):
            T = 16 * hh + t; gb = 66 + 136 * t - 1
            if not (O["wm0"] <= T <= O["wm1"]): continue
            cand = [u for i in range(max(0, gb - O["wm"] - 60), gb - O["wm"] + 1) for u in g.pre[i] if " U" in u]
            if cand:
                k = g.val[gb].index("s_barrier")
                g.val[gb].insert(k - 1, "WAITVM " + cand[-1].split()[-1])
    out = g.lines()
    if O.get("dg") and hh == 1:
        k = out.index("STAMP")
        body = out[:k]
        if "b" in O["dg"]: body = [l for l in body if l != "s_barrier"]
        if "d" in O["dg"]: body = [l for l in body if not l.startswith(("buffer_load_dwordx4", "WAITVM T", "s_add_u32 m0", "s_mov_b32 s48"))]
        if "r" in O["dg"]: body = [l for l in body if not l.startswith("ds_read")]
        if "c" in O["dg"]: body = [l for l in body if not l.startswith("v_cvt")]
        if "e" in O["dg"]: body = [l for l in body if not l.startswith("v_exp")]
        rest = out[k:]
        if "d" in O["dg"]: rest = [l for l in rest if not l.startswith("WAITVM T") and ";T" not in l]
        out = body + rest
    return out

SW2, SOUT, SDBG, SFL, SXB = 20, 24, 60, 32, 56
FLAG_OFF = 0x2900000
XB_OFF = 0x2a00000
sNG, sKG, sWL = 91, 64, 65
sHW, sHO = 74, 78
vW2, vFL, vAO, vAD, vWR = 23, 24, 25, 26, 28
ACC = 112
OPK = 48
acc = lambda j, nt: R("v", ACC + 4 * (j * 9 + nt))
STG = [(0, 0), (0, 1), (1, 0), (2, 0), (3, 0), (1, 1), (2, 1), (3, 1)]
def of(s_, j, m_):
    if s_ == 1: return R("v", OPK + 16 * j + 4 * m_)
    return R("a", (0 if s_ == 0 else [128, 64, 0][(s_ - 2) % 3]) + 16 * j + 4 * m_)
wf = lambda G, k: R("a", 192 + 8 * (G % 4) + 4 * k)
WL = [144, 160, 176, 224, 240, 192, 208, 80, 96]
wl = lambda nt, m_: R("a", WL[nt] + 4 * m_)
def ldo(s_):
    x, hh = STG[s_]
    out = []
    for m_ in range(4):
        for j in range(4):
            out.append(([f"s_add_u32 s68, s{sHO+x}, {(hh * 4 + m_) * 4096}"] if j == 0 else []) +
                       [f"buffer_load_dwordx4 {of(s_, j, m_)}, v{vL16}, {srd(SOW)}, s68 offen offset:{j*1024} sc1 ;PO{s_}{'ab'[m_ >> 1]}"])
    return out
def wopf():
    return [[f"s_mov_b32 s{sT}, {i * 18 * 128}", f"buffer_load_dword v22, v29, {srd(SWO)}, s{sT} offen ;PF"] for i in range(4)]
VWD = [1, 2, 22, 29, 42, 37, 38, 39, 40]
def wd_setup():
    r = []
    for i in range(9):
        r += [f"v_add_u32 v34, {64*i}, v0", "v_mul_u32_u24 v35, 3641, v34", "v_lshrrev_b32 v35, 16, v35", "v_mul_u32_u24 v36, 864, v35",
              f"v_lshl_add_u32 v36, v34, 4, v36", f"v_add_u32 v{VWD[i]}, s66, v36", f"v_subrev_u32 v{VWD[i]}, {(i % 4) * 1024}, v{VWD[i]}"]
    return r
def dmw(s_):
    x, hh = STG[s_]
    out = []
    for i in range(9):
        if i % 4 == 0:
            out += [f"s_add_u32 m0, s{sWL}, {(s_ % 3) * 18432 + i * 1024}", f"s_add_u32 s{sT}, s{sHW+x}, {hh * 128 * 1152}"]
        out.append(f"buffer_load_dwordx4 v{VWD[i]}, {srd(SW2)}, s{sT} offen offset:{(i % 4) * 1024} lds ;PW{s_}")
    return out
def rdw1(dst, s_, m_, nt):
    t, lo = dst[0], int(dst[2:].split(":")[0])
    return [f"ds_read_b64_tr_b16 {t}[{lo+2*h}:{lo+2*h+1}], v{vWR if m_ >= 2 else vW2} offset:{(s_ % 3) * 18432 + (m_ & 1) * 9216 + h * 4608 + nt * 32}" for h in range(2)]
def poll(tag, which):
    sr, so = {"W": (SDBG, 83), "O": (SFL, 82), "X": (SFL, 67)}[which]
    return f"buffer_load_dword v{vFL}, v{vAD+1}, {srd(sr)}, s{so} offen sc1 ;{tag}"
nextpoll = "s_add_u32 s82, s82, 0x10000"
def signal(which):
    if which == "W": return [f"v_mov_b32 v{vAD}, 1", "s_nop 0", f"buffer_atomic_add v{vAD}, v{vAO}, {srd(SDBG)}, s71 offen sc1 ;SG"]
    return [f"buffer_atomic_add v{vAD}, v{vAO}, {srd(SFL)}, s69 offen sc1 ;SG", "s_add_u32 s69, s69, 0x10000"]

def gen_op_setup():
    p = Asm()
    p(f"s_lshr_b32 s{sKG}, s{sHP}, 2\ns_and_b32 s{sNG}, s{sHP}, 3")
    p(f"s_mul_i32 s4, s{sKG}, {1024*1152}\ns_mul_i32 s5, s{sNG}, 288\ns_add_u32 s4, s4, s5")
    p("s_add_u32 s50, s72, s4\ns_addc_u32 s51, s73, 0")
    for x in range(4):
        if x == 0: p(f"s_mov_b32 s4, s{sNG}")
        else: p(f"s_cmp_lt_u32 {x-1}, s{sNG}\ns_cselect_b32 s4, {x-1}, {x}")
        p(f"s_mul_i32 s{sHW+x}, s4, {256*1152}\ns_lshl_b32 s{sHO+x}, s4, 15")
    p(f"v_lshl_add_u32 v34, v31, 2, v32\nv_mul_u32_u24 v34, 288, v34\nv_lshl_add_u32 v{vW2}, v33, 3, v34\nv_add_u32 v{vWR}, 0x10000, v{vW2}")
    p(f"s_lshr_b32 s6, s{sW}, 1\ns_lshl_b32 s6, s6, 16\ns_and_b32 s7, s{sW}, 1\ns_mul_i32 s7, s7, 9216\ns_add_u32 s{sWL}, s6, s7\ns_mul_i32 s66, s{sW}, {32*1152}")
    p(f"s_add_u32 s{SFL}, s88, {FLAG_OFF}\ns_addc_u32 s{SFL+1}, s89, 0\ns_mov_b32 s{SFL+2}, 0x80000\ns_mov_b32 s{SFL+3}, 0x20000")
    p(f"s_add_u32 s72, s88, {XB_OFF}\ns_addc_u32 s73, s89, 0")
    p(f"v_mov_b32 v{vAD+1}, 0\nv_lshlrev_b32 v{vAO}, 19, v0\ns_lshl_b32 s83, s{sBR}, 7")
    p(f"s_lshl_b32 s4, s{sBR}, 3\ns_add_u32 s4, s4, s{sB}\ns_lshl_b32 s5, s4, 2\ns_add_u32 s5, s5, s{sW}\ns_lshl_b32 s5, s5, 2\ns_add_u32 s5, s5, s{sKG}\ns_lshl_b32 s69, s5, 8\ns_mov_b32 s82, s69")
    p(f"s_lshl_b32 s5, s{sNG}, 19\ns_add_u32 s5, s5, s69\nv_lshlrev_b32 v{vAD}, 16, v0\nv_lshrrev_b32 v34, 1, v0\nv_lshl_add_u32 v{vAD}, v34, 19, v{vAD}\nv_add_u32 v{vAD}, s5, v{vAD}")
    p(f"s_lshl_b32 s4, s4, 4\ns_add_u32 s4, s4, s{sHP}\ns_lshl_b32 s4, s4, 2\ns_add_u32 s70, s4, s{sW}")
    p("s_lshl_b32 s67, s70, 8\ns_add_u32 s67, s67, 0x40000")
    p(f"s_lshl_b32 s71, s{sW}, 8\ns_add_u32 s71, s71, s83")
    return p
ZF = lambda: [f"buffer_store_dword v{vAD+1}, v{vAD}, {srd(SFL)}, 0 offen sc1 ;ZF", f"buffer_store_dword v{vAD+1}, v{vAO}, {srd(SFL)}, s67 offen sc1 ;ZF"]
def late_srds():
    r = []
    for sr, lo, n in ((SW2, 50, 1023 * 1152 + 288), (SOUT, 84, 8 * 256 * 1152 * 2), (SDBG, 86, 256), (SXB, 72, 1024 * 15360)):
        r += [f"s_mov_b32 s{sr}, s{lo}", f"s_mov_b32 s{sr+1}, s{lo+1}", f"s_mov_b32 s{sr+2}, {n}", f"s_mov_b32 s{sr+3}, 0x20000"]
    return r

def flag_check(name, shift, want, bits=8):
    return [f"s_mov_b32 s55, 0x20000", f"{name}_RE:",
            f"v_readfirstlane_b32 s53, v{vFL}", "s_nop 0", f"s_bfe_u32 s53, s53, {shift | (bits << 16)}", f"s_cmp_ge_u32 s53, {want}",
            f"s_cbranch_scc0 {name}_SPIN", f"{name}_OK:"]
def flag_spin(name, which):
    cnt = {"FC1": 0, "FC4": 0}.get(name, 1 << (4 * int(name[2:])))
    return [f"{name}_SPIN:"] + ([f"s_add_u32 s49, s49, {cnt}"] if DIAG else []) + ["s_sub_u32 s55, s55, 1", f"s_cbranch_scc1 {name}_OK", f"s_sleep {1 if which == 'X' else 8}", poll("FS", which), "s_waitcnt vmcnt(0)", f"s_branch {name}_RE"]

SEL = 96
def gen_oproj(O):
    D = 2
    DF = O["defer"]
    mf = []; gs_ = []
    for r in range(14):
        s_, h = r >> 1, r & 1
        for nt in range(9):
            gs_.append(len(mf))
            for j in range(1 if s_ >= DF else 0, 4):
                for k in range(2):
                    mf.append(mf16(acc(j, nt), wf(9 * r + nt, k), of(s_, j, 2 * h + k), "0" if (r == 0 and k == 0) else acc(j, nt)))
    L7 = len(mf); gs_.append(L7)
    for j in (1, 2, 3, 0):
        for nt in range(9):
            for m_ in range(4):
                mf.append(mf16(acc(j, nt), wl(nt, m_), of(7, j, m_), acc(j, nt)))
    for s_ in range(DF, 7):
        for nt in range(9):
            for m_ in range(4):
                mf.append(mf16(acc(0, nt), wl(nt, m_), of(s_, 0, m_), acc(0, nt)))
    g = Gaps(mf)
    ST = lambda s_: gs_[18 * s_]
    def rdw(G):
        r, nt = G // 9, G % 9
        return sum((rdw1(wf(G, k), r >> 1, 2 * (r & 1) + k, nt) for k in range(2)), [])
    head = []
    for G in range(D): head += rdw(G)
    BARG = {}
    for G in range(126):
        g0 = gs_[G]; ge = gs_[G + 1] - 1
        if G + D < 126:
            for i, t in enumerate(rdw(G + D)): g.put(g0 + (i if ge - g0 == 7 or G % 18 != 17 - D else i // 2), t)
        if G % 18 == 17 - D:
            s_ = G // 18
            g.put(ge - 1, f"WAITVM PW{s_+1}")
            g.put(ge, "s_waitcnt lgkmcnt(0)"); g.put(ge, "s_barrier"); BARG[s_] = ge
        if G % 18 == 17 and G // 18 >= 1:
            g.put(ge, f"WAITVM PO{G // 18 + 1}{'b' if G // 18 == 6 else 'a'}")
        if G % 18 == 8 and G // 18 >= 2:
            g.put(ge, f"WAITVM PO{G // 18}b")
    gg = BARG[6] + 1
    for nt in range(9):
        for m_ in range(4):
            for t in rdw1(wl(nt, m_), 7, m_, nt): gg = g.place(t, max(gg, L7 if nt >= 5 else 0))
    assert gg < L7 + 30, gg - L7
    for i, s_ in enumerate(range(DF, 7)):
        p0 = L7 + 108 + 36 * i
        for nt in range(9):
            for m_ in range(4):
                for t in rdw1(wl(nt, m_), s_, m_, nt): g.put(p0 + 4 * nt + m_ + 4, t)
    ev = []
    for s_ in range(3, 8):
        d = dmw(s_)
        gs = [d[0:3], d[3:4], d[4:5], d[5:6], d[6:9], d[9:10], d[10:11], d[11:12], d[12:15]]
        ev += [(BARG[s_ - 3] + 1 + (O["wsp"] if s_ < 7 else O["wsp7"]) * i, gr, 1) for i, gr in enumerate(gs)]
    for i, ts in enumerate(o_stores(1)): ev.append((O["osg"] + i * O["ossp"], ts, 1))
    if O["eo2"]:
        c0 = O["c0g"]
        if c0 is not None:
            assert O["e2n"] == 0
            ev.append((c0, chk_c(0), 0))
        for i, ts in enumerate(ldo(2)[O["e2n"]:]): ev.append(((c0 or 0) + 1 + O["e2s2"] * i, ts, 1))
    if not O["eo2"]: ev.append((O["go"] - 2, chk_c(0), 0))
    ev.append((O["gs1"], sig_c(1), 0))
    ev.append((O["gp1"], [poll("P1", "O")], 1))
    ev.append((O["gc1"], chk_c(1), 0))
    n1 = 32 if O["eo2"] else 48
    osp1 = O.get("osp1", O["osp"])
    assert O["go"] + n1 * osp1 <= O["gc1"] + 2 and O["go"] + (n1 - 16) * osp1 >= 144 and O["gc1"] >= 432
    assert O["gc1"] + 2 + 16 * O["osp"] >= 576 and O["gc1"] + 2 + 32 * O["osp"] >= 720
    for g0, ss, sp in ((O["go"], (3, 4) if O["eo2"] else (2, 3, 4), osp1), (O["gc1"] + 2, (5, 6, 7), O["osp"])):
        for i, ts in enumerate(sum((ldo(s_) for s_ in ss), [])): ev.append((g0 + i * sp, ts, 1))
    su = Asm()
    su("v_lshlrev_b32 v34, 2, v31\nv_sub_u32 v34, v30, v34\nv_mov_b32 v35, 0x3f80\nv_mov_b32 v36, 0x3f800000")
    for i in range(2):
        su(f"v_cmp_eq_u32 vcc, {2*i}, v34\nv_mov_b32 v{SEL+2+i}, 0\nv_mov_b32 v{SEL+4+i}, 0\nv_cndmask_b32 v{SEL+i}, 0, v35, vcc")
        su(f"v_cmp_eq_u32 vcc, {2*i+1}, v34\nv_mov_b32 v37, 0\nv_mov_b32 v37, 0\nv_cndmask_b32 v{SEL+i}, v{SEL+i}, v36, vcc\nv_mov_b32 v{SEL+6+i}, v{SEL+i}")
    su(f"v_mul_u32_u24 v9, 304, v30\nv_lshl_add_u32 v9, v31, 3, v9\nv_add_u32 v9, s{sW8K}, v9\nv_add_u32 v9, {SP}, v9")
    for i in range(5):
        su(f"v_add_u32 v34, {64*i}, v0\nv_mul_u32_u24 v35, 3641, v34\nv_lshrrev_b32 v35, 16, v35\nv_mul_u32_u24 v36, 18, v35\nv_sub_u32 v36, v34, v36\nv_lshlrev_b32 v36, 4, v36")
        su(f"v_mul_u32_u24 v34, 304, v35\nv_add3_u32 v{10+i}, v34, v36, s{sW8K}\nv_add_u32 v{10+i}, {SP}, v{10+i}\nv_mul_u32_u24 v34, 2304, v35\nv_add_u32 v{15+i}, v34, v36")
    su("v_cmp_gt_u32 vcc, 32, v0\nv_mov_b32 v34, 0x7fff0000\nv_lshlrev_b32 v8, 3, v0\nv_cndmask_b32 v19, v34, v19, vcc")
    su_lines = su.lines
    for pi, j in enumerate((1, 2, 3)):
        gg = L7 + 36 * pi + 12
        first = True
        for n0 in range(0, 9, 2):
            d = ACC + 4 * (9 * j + n0)
            gg = max(gg, L7 + 36 * pi + 4 * min(n0 + 1, 8) + 3 + 5)
            cv = [f"v_cvt_pk_bf16_f32 v{d}, v{d}, v{d+1}", f"v_cvt_pk_bf16_f32 v{d+1}, v{d+2}, v{d+3}"]
            if n0 < 8: cv += [f"v_cvt_pk_bf16_f32 v{d+2}, v{d+4}, v{d+5}", f"v_cvt_pk_bf16_f32 v{d+3}, v{d+6}, v{d+7}"]
            for t in cv: gg = g.place(t, gg, cap=3 if gg >= L7 + 112 else 2)
            gg += 1
            if first:
                for t in (f"s_xor_b32 s71, s70, {j << 4}", "s_mul_i32 s71, s71, 15360", f"s_add_u32 s71, s71, {(j - 1) * 5120}"): gg = g.place(t, gg)
                first = False
            if n0 == 8:
                gg = g.place("s_add_u32 s71, s71, 4096", gg, cap=3)
                gg = g.place(f"buffer_store_dwordx2 v[{d}:{d+1}], v8, {srd(SXB)}, s71 offen sc1 ;XS{j}", gg, cap=3) + 1
            else:
                gg = g.place(f"buffer_store_dwordx4 v[{d}:{d+3}], v{vL16}, {srd(SXB)}, s71 offen offset:{(n0 // 2) * 1024} sc1 ;XS{j}", gg, cap=3 if gg >= L7 + 112 else 2) + 1
    ev.sort(key=lambda x: x[0])
    cur = 0
    for lo, items, stride in ev:
        gg = max(cur, lo)
        if stride == 0:
            g.val[gg] += items; gg += 1
        else:
            for u in items:
                gg = g.place(u, gg)
                if u.startswith("s_add_u32 m0"): gg += 1
                if u.startswith("buffer"): gg += stride
        cur = gg
    lastw = max(i for i in range(len(mf)) if any(";PW7" in u for u in g.pre[i]))
    gg = lastw + 1
    for t in su_lines: gg = g.place(t, gg)
    assert gg < L7 + 8, gg - L7
    for j, gp in zip((1, 2, 3), O["xsig"]):
        if gp is not None: g.val[L7 + gp] += xsig(j)
    for s_ in (0, 1, 2, 4, 6): g.val[ST(s_ + 1) - 1].append("STAMP2")
    return head + g.lines()

def xsig(j):
    return [f"s_xor_b32 s4, s70, {j << 4}", "s_lshl_b32 s4, s4, 8", "s_add_u32 s4, s4, 0x40000", f"WAITVM XS{j}",
            f"buffer_atomic_add v{vAD}, v{vAO}, {srd(SFL)}, s4 offen sc1 ;SG"]

def out_base(d):
    return [f"s_lshl_b32 s{d}, s{sB}, 4", f"s_lshl_b32 s6, s{sW}, 2", f"s_add_u32 s{d}, s{d}, s6", f"s_add_u32 s{d}, s{d}, s{sKG}", f"s_mul_i32 s{d}, s{d}, {16*2304}",
            f"s_mul_i32 s6, s{sBR}, 1152", f"s_add_u32 s{d}, s{d}, s6", f"s_mul_i32 s6, s{sNG}, 288", f"s_add_u32 s{d}, s{d}, s6"]
def gen_ored(O):
    e = Asm()
    for j, gp in zip((1, 2, 3), O["xsig"]):
        if gp is None: e.lines += xsig(j)
    e("STAMP2")
    e(poll("F4", "X"))
    e.lines += out_base(4) + ["s_mul_i32 s71, s70, 15360"]
    e("s_waitcnt vmcnt(0)")
    e.lines += flag_check("FC4", 0, 3) + ["STAMP2"]
    xr = lambda j, i: 20 * (j - 1) + 4 * i
    for i in range(5):
        for j in (1, 2, 3):
            e(f"s_add_u32 s{sT}, s71, {(j - 1) * 5120 + i * 1024}")
            if i < 4: e(f"buffer_load_dwordx4 {R('a', xr(j, i))}, v{vL16}, {srd(SXB)}, s{sT} offen sc1 ;XL{i}")
            else: e(f"buffer_load_dwordx2 a[{xr(j, i)}:{xr(j, i)+1}], v8, {srd(SXB)}, s{sT} offen sc1 ;XL{i}")
    for j in (1, 2, 3):
        e(f"v_accvgpr_write_b32 a{xr(j, 4)+2}, 0\nv_accvgpr_write_b32 a{xr(j, 4)+3}, 0")
    def fin(nt):
        d = ACC + 4 * nt
        e(f"v_cvt_pk_bf16_f32 v{d}, v{d}, v{d+1}\nv_cvt_pk_bf16_f32 v{d+1}, v{d+2}, v{d+3}")
        e(f"ds_write_b64 v9, v[{d}:{d+1}] offset:{nt*32}")
    for i in range(5):
        e(f"WAITVM XL{i}")
        for t in range(2 if i < 4 else 1):
            for j in (1, 2, 3):
                e(mf16(acc(0, 2 * i + t), R("v", SEL + 4 * t), R("a", xr(j, i)), acc(0, 2 * i + t)))
        if i >= 1:
            e("s_nop 1"); fin(2 * i - 2); fin(2 * i - 1)
    e("s_nop 1"); fin(8)
    e("s_waitcnt lgkmcnt(0)")
    for i in range(5): e(f"ds_read_b128 {R('v', 48+4*i)}, v{10+i}")
    for i in range(5): e(f"buffer_store_dwordx4 {R('v', 48+4*i)}, v{15+i}, {srd(SOUT)}, s4 offen {O['oaux']}")
    return e.lines

STAUX = 'sc1'
DIAG = False
def o_stores(hh):
    return [[f"s_add_u32 s72, s{sHO}, {(hh * 4 + m_) * 4096}",
             f"buffer_store_dwordx4 {of(hh, j, m_)}, v{vL16}, {srd(SOW)}, s72 offen offset:{j*1024} {STAUX} ;OC{hh}"] for m_ in range(4) for j in range(4)]
sig_c = lambda c: [f"WAITVM OC{c}"] + signal("O")
chk_c = lambda c: [f"WAITVM P{c}"] + flag_check(f"FO{c}", 0, 4) + [nextpoll]

def gen_fallback(hh):
    e = Asm(); n = f"FB{hh}"
    T0 = 10 if hh else 34
    e.label(n)
    e("s_waitcnt vmcnt(0) lgkmcnt(0)\ns_mov_b32 s7, m0")
    e("v_and_b32 v38, 1, v31\nv_lshrrev_b32 v39, 1, v31\nv_lshl_add_u32 v38, v38, 1, v39\nv_lshlrev_b32 v38, 4, v38\nv_lshl_add_u32 v38, v30, 8, v38".replace("v38", f"v{T0+4}").replace("v39", f"v{T0+5}"))
    e(f"v_lshl_add_u32 v39, v31, 2, v32\nv_lshlrev_b32 v39, 8, v39\nv_lshl_add_u32 v39, v33, 3, v39\nv_add_u32 v39, s{sW8K}, v39\nv_add_u32 v39, {SP}, v39".replace("v39", f"v{T0+5}"))
    for qb in range(4): e(f"v_mov_b32 v{T0+qb}, 0xff800000")
    kfr = lambda kt, ks: R("a", 192 + 16 * kt + 4 * ks)
    def kload():
        e("s_add_u32 s5, s4, 4096")
        for kt in range(2):
            for ks in range(4): e(f"buffer_load_dwordx4 {kfr(kt, ks)}, v{T0+4}, {srd(SK)}, s{4+kt} offen offset:{ks*64}")
    def qk(neg):
        for qb in range(4):
            for kt in range(2):
                d = R("v", S_ + 8 * qb + 4 * kt)
                for ks in range(4): e(mf16(d, kfr(kt, ks), qf(hh, qb, ks), (R("v", NEGM + 4 * qb) if neg else "0") if ks == 0 else d))
        e("s_nop 7")
    l1 = Asm(); l2 = Asm(); mid = Asm(); top = e
    e = l1
    kload(); e("s_waitcnt vmcnt(0)"); qk(False)
    for i in range(4):
        for qb in range(4): e(f"v_max3_f32 v{T0+qb}, v{T0+qb}, v{S_+8*qb+2*i}, v{S_+8*qb+2*i+1}")
    e = mid
    for op in ("v_permlane16_swap_b32", "v_permlane32_swap_b32"):
        for qb in range(4): e(f"v_mov_b32 v{S_+qb}, v{T0+qb}")
        e("s_nop 1")
        for qb in range(4): e(f"{op} v{T0+qb}, v{S_+qb}")
        for qb in range(4): e(f"v_max_f32 v{T0+qb}, v{T0+qb}, v{S_+qb}")
    for qb in range(4):
        for i in range(4): e(f"v_sub_f32 v{NEGM+4*qb+i}, 0, v{T0+qb}")
    for i in range(128): e(f"v_mov_b32 v{O_+i}, 0")
    for i in range(16): e(f"v_mov_b32 v{L_+i}, 0")
    e = l2
    kload()
    for hf in range(2):
        e(f"s_add_u32 m0, s{sW8K}, {SP + hf * 4096}\ns_nop 0")
        for i in range(4): e(f"buffer_load_dwordx4 v{vL16}, {srd(SV)}, s{4+hf} offen offset:{i*1024} lds")
    e("s_waitcnt vmcnt(0)")
    for dt in range(8):
        for h in range(2): e(f"ds_read_b64_tr_b16 a[{224+4*dt+2*h}:{225+4*dt+2*h}], v{T0+5} offset:{h*4096 + dt*32}")
    qk(True)
    for i in range(32): e(f"v_exp_f32 v{S_+i}, v{S_+i}")
    e("s_nop 0")
    for j in range(16): e(f"v_cvt_pk_bf16_f32 v{P_+j}, v{S_+2*j}, v{S_+2*j+1}")
    e("s_waitcnt lgkmcnt(0)\ns_nop 0")
    for qb in range(4):
        for dt in range(8):
            o = R("v", O_ + 32 * qb + 4 * dt)
            e(mf16(o, R("a", 224 + 4 * dt), R("v", P_ + 4 * qb), o))
        e(mf16(R("v", L_ + 4 * qb), R("v", ONES), R("v", P_ + 4 * qb), R("v", L_ + 4 * qb)))
    redo = (pre_mf(1) + ["s_nop 7"] + pre_valu()) if hh == 0 else []
    lo, hi = hh * 262144, (hh + 1) * 262144
    nxt = lambda lab: ["s_add_u32 s4, s4, 8192", f"s_cmp_lt_u32 s4, {hi}", f"s_cbranch_scc1 {lab}"]
    code = top.lines + [f"s_mov_b32 s4, {lo}", f"{n}_L1:"] + l1.lines + nxt(f"{n}_L1") + mid.lines + [f"s_mov_b32 s4, {lo}", f"{n}_L2:"] + l2.lines + nxt(f"{n}_L2") + redo + ["s_mov_b32 m0, s7", "s_nop 7", f"s_branch {n}_RET"]
    trace = top.lines + l1.lines + nxt("x") + l1.lines + nxt("x") + mid.lines + l2.lines + nxt("x") + l2.lines + nxt("x") + redo + ["s_nop 7"]
    return code, trace

def l_check(hh):
    r = [f"v_cmp_nge_f32 s[{4+2*(qb&1)}:{5+2*(qb&1)}], s{sTH}, v{L_+4*qb}" if qb < 2 else f"v_cmp_nge_f32 {'vcc' if qb == 2 else 's[100:101]'}, s{sTH}, v{L_+4*qb}" for qb in range(4)]
    r += ["s_nop 0", "s_or_b64 s[4:5], s[4:5], s[6:7]", "s_or_b64 vcc, vcc, s[100:101]", "s_or_b64 s[4:5], s[4:5], vcc", f"s_cbranch_scc1 FB{hh}", f"FB{hh}_RET:"]
    return r

def gen_epi(O, last):
    p = Asm()
    p("s_nop 7")
    p.lines += l_check(1 if last else 0)
    rl = lambda qb: 112 + 2 * qb
    for qb in range(4): p(f"v_rcp_f32 v{rl(qb)}, v{L_+4*qb}")
    if not last:
        p.lines += signal("W")
        p.lines += [t for _, t in v_reads(slot_of(16))]
    for qb in range(4):
        o = O_ + 32 * qb
        for i in range(0, 32, 2):
            p(f"v_pk_mul_f32 v[{o+i}:{o+i+1}], v[{o+i}:{o+i+1}], v[{rl(qb)}:{rl(qb)+1}] op_sel_hi:[1,0]")
        if last:
            for j in range(16): p(f"v_cvt_pk_bf16_f32 v{OPK + 16 * qb + j}, v{o+2*j}, v{o+2*j+1}")
    return p

def stamp(i):
    return [f"s_memtime s[96:97]", "s_memrealtime s[98:99]", "s_waitcnt lgkmcnt(0)", f"v_writelane_b32 v43, s96, {i}", f"v_writelane_b32 v43, s98, {32+i}"]

def gen_kf(stamps=False, **opt):
    st = (lambda i: stamp(i)) if stamps else (lambda i: [])
    O = dict(r31=(5, 2), r31o=20, c0g=None, e2s2=4, kx=0, vx=0, jits=(), tlb=None, rsv=0, npre=4, t2=0, wm=0, wm0=3, wm1=28, dcap=3, kw=None, kwv=0, defer=5, wsp7=9, xsig=(130, 160, 190), touch=0, oaux='', eo2=1, e2g=44, e2s=4, e2n=4, osg=50, la=[(2, 2.28), (25, 2.28), (32, 3.4)], dsp=1.0, doff=0, cp2=1, wdv=0, o0g=66+136*12+20, wpf=(1140, 1141, 1142, 1143), o0sp=15, gs0=66+136*14+70, ossp=14, gp0=5, go=230, gs1=330, gp1=440, gc1=520, osp=8, wsp=14, xd=6, cpf=1, pro=('W0', 'X0', 'W1', 'S1'), ear=('S2', 'W2', 'X1', 'W3'), gpf={'S3': 60, 'S4': 136, 'S5': 264, 3: 392, 'S8': 520}, gcpf=521, gzf=1100, ccap=4, hcpf=(1200,), xaux='', waux='', st=8, xp=92, xs=9, t0=(600, 760), t1=(760, 930))
    O.update(opt)
    global DIAG, XAUX, WAUX, VMLOOK, KW, RSV, WAREA
    RSV = O['rsv']; WAREA = {0: [49152, 114688, 32768, 98304], 1: [16384, 81920, 0, 65536], 2: [49152, 114688, 16384, 81920]}[RSV]
    KW = O['kw']
    VMLOOK = O.get("vml", 6)
    DIAG = stamps; XAUX = O["xaux"]; WAUX = O["waux"]
    pro = gen_prologue().lines
    for it in O["pro"]: pro += early_item(it)
    if O.get("skipkv"):
        pro2 = gen_prologue2(O).lines + ["s_lshr_b32 s4, s2, 3", f"s_mul_i32 s4, s4, {O['skipkv'][0]}", "s_and_b32 s4, s4, 31", f"s_cmp_lt_u32 s4, {O['skipkv'][1]}",
                                         "s_cselect_b32 s100, 0, -1"]
        pro += pro2 + gen_prologue3().lines + gen_addr2().lines + gen_op_setup().lines
    else: pro += gen_prologue2(O).lines + gen_prologue3().lines + gen_addr2().lines + gen_op_setup().lines
    if stamps:
        if O.get("pst"):
            i1 = pro.index("s_waitcnt lgkmcnt(0)")
            i2 = next(i for i, l in enumerate(pro) if l.startswith("buffer_"))
            i3 = next(i for i, l in enumerate(pro) if l.startswith("s_getpc"))
            pro = pro[:i1 + 1] + st(23) + pro[i1 + 1:i2] + st(24) + pro[i2:i3] + st(25) + pro[i3:] + st(26)
        pro = pro[:4] + ["v_mov_b32 v43, 0"] + st(0) + pro[4:]
    qp = gen_qproj(O)
    S_T = ["STAMP"]
    h0 = gen_head(0, O, st); h1 = gen_head(1, O, st)
    epi0 = gen_epi(O, False).lines
    prog = pro + qp[:3] + S_T + qp[3:] + [t for _, t in k_reads(slot_of(0))] + ["s_nop 1"] + gen_prepass0() + S_T + h0 + S_T + epi0 + S_T + h1 + S_T + \
        gen_epi(O, True).lines + S_T + gen_oproj(O) + S_T + gen_ored(O) + S_T
    nb = []; si = 1
    for l in prog:
        if l == "STAMP": nb += st(si); si += 1
        elif l == "STAMP2":
            if O.get("fine"): nb += st(si); si += 1
        else: nb.append(l)
    if O.get("skipkv"): nb = [l.replace(" nt lds ;T0", " lds ;T0").replace("s[100:101]", "s[6:7]") for l in nb]
    prog = resolve_vm(nb)
    prog, _ = auto_lgkm(prog)
    a = Asm()
    cold = []
    for n, w_ in [("FC1", "W"), ("FC4", "X")] + [(f"FO{c}", "O") for c in range(2)]: cold += flag_spin(n, w_)
    k0 = prog.index("FB0_RET:")
    fb = []
    for hh in range(2):
        code, tr = gen_fallback(hh)
        fb.append(code)
        k = prog.index(f"FB{hh}_RET:")
        assert not chk.check(prog[k - 200:k] + tr + prog[k:k + 300], verbose=False)
    a.lines += prog
    if stamps:
        a("s_waitcnt vmcnt(0)")
        a.lines += st(si)
        print('stamps', si + 1)
        a('v_writelane_b32 v43, s49, 31')
        a(f"s_lshl_b32 s4, s2, 2\ns_add_u32 s4, s4, s{sW}\ns_lshl_b32 s4, s4, 8\ns_add_u32 s4, s4, 0x8000000")
        a("s_mov_b32 s8, s88\ns_mov_b32 s9, s89\ns_mov_b32 s10, 0x10000000\ns_mov_b32 s11, 0x20000\nv_lshlrev_b32 v41, 2, v0")
        a("buffer_store_dword v43, v41, s[8:11], s4 offen")
    a("s_endpgm")
    a.label("K1_COLD")
    a.lines += cold + fb[0] + fb[1]
    a.label("K1_END")
    trace = prog
    errs = chk.check(trace, maxerr=8)
    assert not errs or O.get('diag')
    return a.text()

if __name__ == "__main__":
    import sys
    for name, kw in eval(sys.argv[1] if len(sys.argv) > 1 else "[('kf', {})]"):
        kw.setdefault("stamps", True)
        body = gen_kf(**kw)
        open(name + ".s", "w").write(single_kernel_file(body, 256, 256, 160 * 1024, vgpr=512, accum=256))
```
